```python
import torch

def _softmax(x, axis=-1):
    return torch.softmax(x, dim=axis)
def _gelu(x):
    return torch.nn.functional.gelu(x, approximate="tanh")
def _silu(x):
    return torch.nn.functional.silu(x)
def _sigmoid(x):
    return torch.sigmoid(x)
def _layernorm(x, axis=-1, eps=1e-5):
    m = x.mean(dim=axis, keepdim=True)
    v = x.var(dim=axis, keepdim=True, unbiased=False)
    return (x - m) / torch.sqrt(v + eps)
def _scatter_add(tgt, idx, src, axis=0):
    return tgt.clone().index_add_(axis, idx, src)
def _segment_sum(src, seg, n):
    out = torch.zeros((n,) + src.shape[1:], dtype=src.dtype)
    return out.index_add_(0, seg, src)
def _pad(x, pw):
    flat = tuple(v for pair in reversed(pw) for v in pair)
    return torch.nn.functional.pad(x, flat)

kernel_name = 'standalone__attention_interact_autoint__recsys'

def setup_inputs():

    _w = (lambda a: (lambda t: t.to(torch.bfloat16) if t.is_floating_point() else t)(torch.as_tensor(a)))
    B, F = 4096, 100
    D = max(2, (64 // 2) * 2)
    H = 2
    Dh = D // H
    return {
        "e": _w((lambda *s: torch.randn(*s, dtype=torch.bfloat16) * 0.05)(B, F, D).to(float)),
        "wq": _w((lambda *s: torch.randn(*s, dtype=torch.bfloat16) * 3.2)(H, D, Dh).to(float)),
        "wk": _w((lambda *s: torch.randn(*s, dtype=torch.bfloat16) * 3.2)(H, D, Dh).to(float)),
        "wv": _w((lambda *s: torch.randn(*s, dtype=torch.bfloat16) * 0.05)(H, D, Dh).to(float)),
        "wres": _w((lambda *s: torch.randn(*s, dtype=torch.bfloat16) * 0.05)(D, D).to(float)),
    }

def reference(e, wq, wk, wv, wres):
    H, D, Dh = wq.shape[0], wq.shape[1], wq.shape[2]
    B, F = e.shape[0], e.shape[1]
    q = torch.einsum('bfd,hdk->bhfk', e, wq)
    k = torch.einsum('bfd,hdk->bhfk', e, wk)
    v = torch.einsum('bfd,hdk->bhfk', e, wv)
    scale = float(Dh) ** -0.5
    scores = torch.einsum('bhfk,bhgk->bhfg', q, k) * scale
    attn = _softmax(scores, axis=-1)
    attn = (lambda x, dt: x.to(dt))(attn, v.dtype)
    ctx = torch.einsum('bhfg,bhgk->bhfk', attn, v)
    ctx = (lambda x, *d: x.permute(*d))(ctx, 0, 2, 1, 3).reshape(B, F, H * Dh)
    res = torch.einsum('bfd,de->bfe', e, wres)
    out = ctx + res
    mask = (lambda x, dt: x.to(dt))(out > 0, out.dtype)
    return out * mask
```

```python
import re

REG_RE = re.compile(r'^(-|abs\()?([vas])(\d+)\)?$')
RNG_RE = re.compile(r'^(-|abs\()?([vas])\[(\d+):(\d+)\]\)?$')

def regs_of(tok):
    tok = tok.strip()
    m = REG_RE.match(tok)
    if m:
        return [(m.group(2), int(m.group(3)))]
    m = RNG_RE.match(tok)
    if m:
        return [(m.group(2), i) for i in range(int(m.group(3)), int(m.group(4)) + 1)]
    if tok == 'vcc':
        return [('s', 106), ('s', 107)]
    if tok == 'exec':
        return [('s', 126), ('s', 127)]
    if tok == 'm0':
        return [('s', 124)]
    if tok == 'scc':
        return [('s', 200)]
    return []

TRANS = ('v_exp_f32', 'v_log_f32', 'v_rcp_f32', 'v_rsq_f32', 'v_sqrt_f32', 'v_sin_f32', 'v_cos_f32')

class Ins:
    __slots__ = ('text', 'op', 'cls', 'rd', 'wr', 'srcc', 'ab', 'passes', 'comment', 'lds_dma', 'wide_store', 'extra')
    def __init__(self, text, comment=None):
        self.text = text
        self.comment = comment
        parts = text.split(None, 1)
        self.op = parts[0]
        rest = parts[1] if len(parts) > 1 else ''
        ops = []
        cur = ''
        depth = 0
        for ch in rest:
            if ch == '[': depth += 1
            if ch == ']': depth -= 1
            if ch == ',' and depth == 0:
                ops.append(cur.strip()); cur = ''
            else:
                cur += ch
        if cur.strip(): ops.append(cur.strip())
        mods = []
        if ops:
            toks = ops[-1].split()
            ops[-1] = toks[0]
            mods = toks[1:]
        op = self.op
        self.rd = set(); self.wr = set(); self.srcc = set(); self.ab = set()
        self.passes = 0; self.lds_dma = False; self.wide_store = False
        self.extra = None
        R = lambda i: regs_of(ops[i]) if i < len(ops) else []
        if op.startswith('v_mfma'):
            self.cls = 'mfma'
            self.passes = 8 if '32x32' in op else 4
            self.wr |= set(R(0)); self.ab |= set(R(1)) | set(R(2)); self.srcc |= set(R(3))
            self.rd |= self.ab | self.srcc
        elif op.startswith('v_cmp'):
            self.cls = 'valu'
            self.wr |= set(R(0))
            for i in range(1, len(ops)): self.rd |= set(R(i))
        elif op.startswith('v_permlane') and 'swap' in op:
            self.cls = 'valu'
            self.wr |= set(R(0)) | set(R(1)); self.rd |= set(R(0)) | set(R(1))
        elif op.startswith('v_'):
            self.cls = 'trans' if op.replace('_e32', '').replace('_e64', '') in TRANS else 'valu'
            self.wr |= set(R(0))
            start = 1
            if op.startswith(('v_add_co', 'v_sub_co', 'v_addc_co', 'v_subb_co')):
                self.wr |= set(R(1)); start = 2
            for i in range(start, len(ops)): self.rd |= set(R(i))
            if op.startswith(('v_fmac', 'v_pk_fmac', 'v_dot2c')): self.rd |= set(R(0))
            if op.startswith('v_cndmask') and len(ops) == 3: self.rd |= set(regs_of('vcc'))
        elif op.startswith('ds_read') or op.startswith('ds_bpermute') or op.startswith('ds_permute') or op.startswith('ds_swizzle'):
            self.cls = 'lds'
            self.wr |= set(R(0))
            for i in range(1, len(ops)): self.rd |= set(R(i))
        elif op.startswith('ds_write'):
            self.cls = 'lds'
            for i in range(len(ops)): self.rd |= set(R(i))
        elif op.startswith('buffer_load') or op.startswith('global_load'):
            self.cls = 'vmem'
            if 'lds' in mods or '_lds_' in op:
                self.lds_dma = True
                for i in range(len(ops)): self.rd |= set(R(i))
                self.rd |= set(regs_of('m0'))
            else:
                self.wr |= set(R(0))
                for i in range(1, len(ops)): self.rd |= set(R(i))
        elif op.startswith('buffer_store') or op.startswith('global_store'):
            self.cls = 'vmem'
            for i in range(len(ops)): self.rd |= set(R(i))
            if 'x4' in op or 'x3' in op:
                self.wide_store = True
                self.extra = set(R(0)) if op.startswith('buffer') else set(R(1))
        elif op.startswith('s_load') or op.startswith('s_memtime') or op.startswith('s_buffer_load'):
            self.cls = 'smem'
            self.wr |= set(R(0))
            for i in range(1, len(ops)): self.rd |= set(R(i))
        elif op in ('s_nop', 's_waitcnt', 's_barrier', 's_endpgm', 's_setprio', 's_sleep') or op.startswith(('s_branch', 's_cbranch')):
            self.cls = 'ctl'
        elif op.startswith('s_cmp') or op.startswith('s_bitcmp'):
            self.cls = 'salu'
            for i in range(len(ops)): self.rd |= set(R(i))
            self.wr |= set(regs_of('scc'))
        elif op.startswith('s_'):
            self.cls = 'salu'
            self.wr |= set(R(0))
            for i in range(1, len(ops)): self.rd |= set(R(i))
            if 'saveexec' in op:
                self.wr |= set(regs_of('exec')); self.rd |= set(regs_of('exec'))
            if op.startswith(('s_cselect', 's_addc', 's_subb')): self.rd |= set(regs_of('scc'))
            if not op.startswith(('s_mov', 's_cselect', 's_getpc', 's_mul')): self.wr |= set(regs_of('scc'))
        else:
            raise ValueError('unknown op ' + text)

    def states(self):
        if self.op == 's_nop':
            return int(self.text.split()[1]) + 1
        return 1

def is_valu(i): return i.cls in ('valu', 'trans')
def vg(s): return set(r for r in s if r[0] in 'va')
def sg(s): return set(r for r in s if r[0] == 's')

def need_states(p, c):
    n = 0
    if p.cls == 'mfma':
        big = p.passes == 8
        if c.cls == 'mfma':
            if p.wr & c.ab: n = max(n, 12 if big else 8)
            if p.wr & c.srcc:
                if p.wr == c.srcc and p.passes == c.passes: pass
                else: n = max(n, 10 if big else 6)
            elif p.wr & c.wr:
                n = max(n, 10 if big else 6)
        elif is_valu(c) or c.cls in ('lds', 'vmem'):
            if p.wr & (c.rd | c.wr): n = max(n, 12 if big else 8)
            if is_valu(c) and (p.srcc & c.wr): n = max(n, 7 if big else 3)
    elif is_valu(p):
        pw_v = vg(p.wr); pw_s = sg(p.wr)
        if c.cls == 'mfma' and (pw_v & c.rd): n = max(n, 2)
        if p.cls == 'trans' and c.cls == 'valu' and (pw_v & c.rd): n = max(n, 1)
        if p.cls == 'trans' and c.cls in ('lds', 'vmem') and (pw_v & c.rd): n = max(n, 1)
        if is_valu(c):
            if c.op.startswith('v_permlane') and (pw_v & c.rd): n = max(n, 2)
            if ('dpp' in c.text or 'row_' in c.text or 'quad_perm' in c.text) and (pw_v & c.rd): n = max(n, 2)
            if c.op.startswith(('v_readlane', 'v_readfirstlane')) and (pw_v & c.rd): n = max(n, 1)
            if pw_s & c.rd: n = max(n, 4 if c.op.startswith(('v_readlane', 'v_writelane')) else 2)
            if ('op_sel' in p.text and not p.op.startswith('v_pk_')) or 'sdwa' in p.text:
                if pw_v & (c.rd | c.wr): n = max(n, 1)
        if c.cls == 'vmem' and (pw_s & c.rd): n = max(n, 5)
        if c.cls in ('salu', 'ctl') and (pw_s & c.rd): n = max(n, 1)
    elif p.cls == 'salu':
        if c.lds_dma and (('s', 124) in p.wr): n = max(n, 1)
    elif p.cls == 'vmem' and p.wide_store:
        if (is_valu(c) or c.cls == 'mfma') and (p.extra & c.wr): n = max(n, 2)
        elif p.extra & c.wr: n = max(n, 1)
    return n

MAXLOOK = 14

class Prog:
    def __init__(self):
        self.items = []
    def I(self, text, comment=None):
        self.items.append(Ins(text, comment))
    def raw(self, text):
        self.items.append(text)
    def label(self, name):
        self.items.append(name + ':')
    def c(self, text):
        self.items.append('    ; ' + text)

    def finalize(self, auto_wait=True):
        out = []
        vm = []
        lg = []
        smem_out = False
        def flush_all():
            pass
        for it in self.items:
            if isinstance(it, str):
                if it.endswith(':') and auto_wait:
                    if any(w for w in vm) or any(w for w in lg) or smem_out:
                        out.append(Ins('s_waitcnt vmcnt(0) lgkmcnt(0)', 'auto: label'))
                    vm = []; lg = []; smem_out = False
                out.append(it)
                continue
            ins = it
            if auto_wait:
                touched = ins.rd | ins.wr
                nv = None; nl = None
                for k in range(len(vm) - 1, -1, -1):
                    if vm[k] & touched:
                        nv = len(vm) - 1 - k; break
                for k in range(len(lg) - 1, -1, -1):
                    if lg[k] & touched:
                        nl = len(lg) - 1 - k; break
                if nl is not None and smem_out: nl = 0
                if ins.op.startswith(('s_branch', 's_cbranch')):
                    if any(w for w in vm): nv = 0
                    if any(w for w in lg): nl = 0
                if nv is not None or nl is not None:
                    t = 's_waitcnt'
                    if nv is not None:
                        nv = min(nv, 63)
                        t += f' vmcnt({nv})'; vm = vm[len(vm) - nv:] if nv else []
                    if nl is not None:
                        nl = min(nl, 15)
                        t += f' lgkmcnt({nl})'; lg = lg[len(lg) - nl:] if nl else []
                        if nl == 0: smem_out = False
                    out.append(Ins(t, 'auto'))
                if ins.op == 's_waitcnt':
                    m = re.search(r'vmcnt\((\d+)\)', ins.text)
                    if m:
                        n = int(m.group(1)); vm = vm[len(vm) - n:] if n and n < len(vm) else ([] if n == 0 else vm)
                    m = re.search(r'lgkmcnt\((\d+)\)', ins.text)
                    if m:
                        n = int(m.group(1)); lg = lg[len(lg) - n:] if n and n < len(lg) else ([] if n == 0 else lg)
                        if n == 0: smem_out = False
                if ins.cls == 'vmem': vm.append(set(ins.wr))
                if ins.cls == 'lds': lg.append(set(ins.wr))
                if ins.cls == 'smem':
                    lg.append(set(ins.wr)); smem_out = True
            out.append(ins)
        res = []
        hist = []
        for it in out:
            if isinstance(it, str):
                if it.endswith(':'):
                    res.append(it)
                    hist.append('LABEL')
                else:
                    res.append(it)
                continue
            dist = 0
            need = 0
            for p in reversed(hist[-MAXLOOK:]):
                if p == 'LABEL':
                    continue
                n = need_states(p, it)
                if n > dist: need = max(need, n - dist)
                dist += p.states()
                if dist >= 13: break
            while need > 0:
                k = min(need, 16)
                nop = Ins(f's_nop {k-1}', 'hazard')
                res.append(nop); hist.append(nop)
                need -= k
            res.append(it); hist.append(it)
        self.final = res
        return res

    def text(self):
        lines = []
        for it in self.final:
            if isinstance(it, str): lines.append(it)
            else:
                lines.append('    ' + it.text + (('    ; ' + it.comment) if it.comment else ''))
        return '\n'.join(lines) + '\n'

def V(a, n=1):
    return f'v{a}' if n == 1 else f'v[{a}:{a+n-1}]'
def S(a, n=1):
    return f's{a}' if n == 1 else f's[{a}:{a+n-1}]'
```

```python
import sys, struct
sys.path.insert(0, 'gen')
from asmlib import *

NAME = 'standalone__attention_interact_autoint__recsys'
HEADER = open('cdna_kernels/%s.s.ref' % NAME).read().split('; Override launch')[0]

def f32bits(x): return struct.unpack('<I', struct.pack('<f', x))[0]
CSCALE = f32bits((32.0 ** -0.5) * 1.4426950408889634)

MF32 = 'v_mfma_f32_32x32x16_bf16'

def gen():
    p = Prog(); I = p.I
    p.raw(HEADER.rstrip())
    p.raw('; @launch grid=(256,1,1) block=(512,1,1) lds=32768')
    p.raw('.amdgcn_target "amdgcn-amd-amdhsa--gfx950"')
    p.raw('.text')
    p.raw(f'.globl {NAME}_kernel')
    p.raw('.p2align 8')
    p.raw(f'.type {NAME}_kernel,@function')
    p.raw(f'{NAME}_kernel:')
    I('s_cmp_ge_u32 s2, 256')
    I('s_cbranch_scc1 L_end')
    I('s_load_dwordx4 s[4:7], s[0:1], 0')
    I('s_load_dwordx4 s[8:11], s[0:1], 16')
    I('s_load_dwordx4 s[12:15], s[0:1], 32')
    I('v_lshrrev_b32 v2, 6, v0')
    I('v_and_b32 v1, 63, v0', 'lane')
    I('v_readfirstlane_b32 s20, v2', 'wave id')
    I('s_waitcnt lgkmcnt(0)')
    I('s_mov_b32 s24, s4'); I('s_mov_b32 s25, s5'); I('s_mov_b32 s26, 52428800'); I('s_mov_b32 s27, 0x00020000')
    I('s_mov_b32 s28, s14'); I('s_mov_b32 s29, s15'); I('s_mov_b32 s30, 52428800'); I('s_mov_b32 s31, 0x00020000')
    I('s_lshr_b32 s21, s20, 1', 'm')
    I('s_and_b32 s22, s20, 1', 'h')
    I('s_mov_b32 s32, s6'); I('s_mov_b32 s33, s7')
    I('s_cmp_eq_u32 s21, 1'); I('s_cselect_b32 s32, s8, s32'); I('s_cselect_b32 s33, s9, s33')
    I('s_cmp_eq_u32 s21, 2'); I('s_cselect_b32 s32, s10, s32'); I('s_cselect_b32 s33, s11, s33')
    I('s_cmp_eq_u32 s21, 3'); I('s_cselect_b32 s32, s12, s32'); I('s_cselect_b32 s33, s13, s33')
    I('s_cselect_b32 s36, 128, 64', 'row stride')
    I('s_cselect_b32 s37, 64, 4096', 'head offset unit')
    I('s_mov_b32 s34, 8192'); I('s_mov_b32 s35, 0x00020000')
    I('s_mul_i32 s37, s37, s22', 'head offset')
    I('s_cmp_eq_u32 s21, 0')
    I(f's_cselect_b32 s39, 0x{CSCALE:08x}, 1.0', 'scale')
    I('v_lshrrev_b32 v2, 3, v1', 'dg')
    I('v_and_b32 v3, 7, v1', 'cq')
    I('s_lshl_b32 s38, s36, 3')
    I('v_mul_lo_u32 v4, v2, s38')
    I('v_lshl_add_u32 v4, v3, 3, v4')
    for j in range(8):
        I(f'buffer_load_dwordx2 v[{16+2*j}:{17+2*j}], v4, s[32:35], s37 offen')
        if j < 7: I('s_add_u32 s37, s37, s36')
    I('v_and_b32 v5, 4, v3')
    I('v_and_b32 v6, 1, v3')
    I('v_lshl_or_b32 v5, v6, 1, v5')
    I('v_bfe_u32 v6, v3, 1, 1')
    I('v_or_b32 v5, v5, v6', 'iq')
    I('v_lshlrev_b32 v5, 6, v5')
    I('v_lshl_add_u32 v5, v2, 9, v5')
    I('s_lshl_b32 s38, s20, 12')
    I('v_add_u32 v5, s38, v5')
    for j in range(8):
        for b in range(4):
            src = 16 + 2 * j + (b >> 1)
            t = 32 + 4 * j + b
            if b & 1: I(f'v_and_b32 v{t}, 0xffff0000, v{src}')
            else: I(f'v_lshlrev_b32 v{t}, 16, v{src}')
            I(f'v_mul_f32 v{t}, s39, v{t}')
    for b in range(4):
        for i in range(4):
            I(f'v_cvt_pk_bf16_f32 v{64+4*b+i}, v{32+4*(2*i)+b}, v{32+4*(2*i+1)+b}')
        I(f'ds_write_b128 v5, v[{64+4*b}:{67+4*b}] offset:{16*b}')
    I('v_and_b32 v6, 31, v1', 'row')
    I('v_lshrrev_b32 v7, 5, v1', 'half')
    I('v_lshlrev_b32 v2, 7, v6')
    I('v_lshl_add_u32 v2, v7, 4, v2', 'voffE')
    I('v_mov_b32 v3, 0x40000000')
    I('v_cmp_gt_u32 vcc, 4, v6')
    I('v_cndmask_b32 v3, v3, v2, vcc', 'voffE3')
    I('v_lshlrev_b32 v4, 4, v1', 'lds frag addr')
    I('v_mov_b32 v5, 0xff800000', '-inf (after ds_writes consumed v5)')
    I('s_mov_b32 s44, 0'); I('s_mov_b32 s45, -1')
    I('s_lshl_b32 s40, s2, 4'); I('s_add_u32 s40, s40, s20', 'batch')
    I('s_mul_i32 s40, s40, 12800', 'batch byte base')
    I('s_mov_b32 s41, 0', 'iteration')
    I('s_waitcnt lgkmcnt(0)')
    I('s_barrier')
    p.label('L_batch')
    E = lambda t, s: 16 + 16 * t + 4 * s
    KF = lambda t, ks: 80 + 8 * t + 4 * ks
    VF = lambda u: 112 + 4 * u
    W1 = lambda s: 140 + 4 * s
    W2 = lambda s: 156 + 4 * s
    QA = 172
    SS = lambda t: 188 + 16 * t
    for t in range(4):
        I(f's_add_u32 s{48+t}, s40, {4096*t}')
    for t in range(4):
        for s in range(4):
            I(f'buffer_load_dwordx4 {V(E(t,s),4)}, v{3 if t==3 else 2}, s[24:27], s{48+t} offen offset:{32*s}')
    def wread(dst, m, h):
        for s in range(4):
            I(f'ds_read_b128 {V(dst(s),4)}, v4 offset:{((m*2+h)*4+s)*1024}')
    for h in range(2):
        wread(W1, 1, h); wread(W2, 2, h)
        for t in range(4):
            acc = SS(t)
            for s in range(4):
                I(f'{MF32} {V(acc,16)}, {V(W1(s),4)}, {V(E(t,s),4)}, {"0" if s==0 else V(acc,16)}')
        for t in range(4):
            acc = SS(t)
            for i in range(8):
                I(f'v_cvt_pk_bf16_f32 v{KF(t,0)+i}, v{acc+2*i}, v{acc+2*i+1}')
        for t in range(4):
            acc = SS(t)
            for s in range(4):
                I(f'{MF32} {V(acc,16)}, {V(E(t,s),4)}, {V(W2(s),4)}, {"0" if s==0 else V(acc,16)}')
        for t in range(4):
            acc = SS(t)
            for i in range(8 if t < 3 else 4):
                I(f'v_cvt_pk_bf16_f32 v{VF(2*t)+i}, v{acc+2*i}, v{acc+2*i+1}')
        wread(W1, 0, h); wread(W2, 3, h)
        for ft in range(4):
            for s in range(4):
                I(f'{MF32} {V(QA,16)}, {V(W1(s),4)}, {V(E(ft,s),4)}, {"0" if s==0 else V(QA,16)}')
            for i in range(8):
                I(f'v_cvt_pk_bf16_f32 v{QA+i}, v{QA+2*i}, v{QA+2*i+1}')
            for t in range(4):
                I(f'{MF32} {V(SS(t),16)}, {V(KF(t,0),4)}, {V(QA,4)}, 0')
                I(f'{MF32} {V(SS(t),16)}, {V(KF(t,1),4)}, {V(QA+4,4)}, {V(SS(t),16)}')
            for r in range(4):
                I(f'v_cndmask_b32 v{SS(3)+r}, v{SS(3)+r}, v5, s[44:45]')
            vals = [SS(0) + i for i in range(52)]
            I(f'v_max3_f32 v8, v{vals[0]}, v{vals[1]}, v{vals[2]}')
            k = 3
            while k < 52:
                if k + 1 < 52:
                    I(f'v_max3_f32 v8, v8, v{vals[k]}, v{vals[k+1]}'); k += 2
                else:
                    I(f'v_max_f32 v8, v8, v{vals[k]}'); k += 1
            I('v_mov_b32 v9, v8')
            I('v_permlane32_swap_b32 v9, v8')
            I('v_max_f32 v8, v8, v9')
            for k in range(0, 52, 2):
                I(f'v_pk_add_f32 {V(vals[k],2)}, {V(vals[k],2)}, v[8:9] op_sel_hi:[1,0] neg_lo:[0,1] neg_hi:[0,1]')
            for k in range(52):
                I(f'v_exp_f32 v{vals[k]}, v{vals[k]}')
            I(f'v_pk_add_f32 v[10:11], {V(vals[0],2)}, {V(vals[2],2)}')
            for k in range(4, 52, 2):
                I(f'v_pk_add_f32 v[10:11], v[10:11], {V(vals[k],2)}')
            I('v_add_f32 v10, v10, v11')
            I('v_mov_b32 v11, v10')
            I('v_permlane32_swap_b32 v11, v10')
            I('v_add_f32 v10, v10, v11')
            I('v_rcp_f32 v10, v10')
            PF = {0: SS(0), 1: SS(0) + 4, 2: SS(0) + 8, 3: SS(0) + 12, 4: SS(2), 5: SS(2) + 4, 6: SS(2) + 8}
            for t in range(3):
                dst = PF[2 * t]
                for i in range(8):
                    I(f'v_cvt_pk_bf16_f32 v{dst+i}, v{SS(t)+2*i}, v{SS(t)+2*i+1}')
            I(f'v_cvt_pk_bf16_f32 v{PF[6]}, v{SS(3)}, v{SS(3)+1}')
            I(f'v_cvt_pk_bf16_f32 v{PF[6]+1}, v{SS(3)+2}, v{SS(3)+3}')
            I(f'v_mov_b32 v{PF[6]+2}, 0')
            I(f'v_mov_b32 v{PF[6]+3}, 0')
            RA = SS(1)
            for s in range(4):
                I(f'{MF32} {V(RA,16)}, {V(W2(s),4)}, {V(E(ft,s),4)}, {"0" if s==0 else V(RA,16)}')
            OA = QA
            for u in range(7):
                I(f'{MF32} {V(OA,16)}, {V(VF(u),4)}, {V(PF[u],4)}, {"0" if u==0 else V(OA,16)}')
            for k in range(0, 16, 2):
                I(f'v_pk_fma_f32 {V(OA+k,2)}, {V(OA+k,2)}, v[10:11], {V(RA+k,2)} op_sel_hi:[1,0,1]')
            for i in range(8):
                I(f'v_cvt_pk_bf16_f32 v{OA+i}, v{OA+2*i}, v{OA+2*i+1}')
            for i in range(8):
                I(f'v_pk_max_i16 v{OA+i}, v{OA+i}, 0')
            for k in range(2):
                I(f'buffer_store_dwordx4 {V(OA+4*k,4)}, v{3 if ft==3 else 2}, s[28:31], s{48+ft} offen offset:{64*h+32*k}')
    I('s_add_u32 s40, s40, 102400')
    I('s_add_u32 s41, s41, 1')
    I('s_cmp_lt_u32 s41, 2')
    I('s_nop 15')
    I('s_cbranch_scc1 L_batch')
    p.label('L_end')
    I('s_endpgm')
    p.raw('.section .rodata,"a"')
    p.raw('.p2align 6')
    p.raw(f'.amdhsa_kernel {NAME}_kernel')
    p.raw('  .amdhsa_next_free_vgpr 256')
    p.raw('  .amdhsa_next_free_sgpr 64')
    p.raw('  .amdhsa_accum_offset 256')
    p.raw('  .amdhsa_group_segment_fixed_size 0')
    p.raw('  .amdhsa_kernarg_size 64')
    p.raw('  .amdhsa_user_sgpr_count 2')
    p.raw('  .amdhsa_user_sgpr_kernarg_segment_ptr 1')
    p.raw('  .amdhsa_system_sgpr_workgroup_id_x 1')
    p.raw('.end_amdhsa_kernel')
    p.finalize()
    return p.text()

if __name__ == '__main__':
    out = sys.argv[1] if len(sys.argv) > 1 else f'cdna_kernels/{NAME}.s'
    open(out, 'w').write(gen())
```

```python
import re

REG_RE = re.compile(r'^(-|abs\()?([vas])(\d+)\)?$')
RNG_RE = re.compile(r'^(-|abs\()?([vas])\[(\d+):(\d+)\]\)?$')

def regs_of(tok):
    tok = tok.strip()
    m = REG_RE.match(tok)
    if m:
        return [(m.group(2), int(m.group(3)))]
    m = RNG_RE.match(tok)
    if m:
        return [(m.group(2), i) for i in range(int(m.group(3)), int(m.group(4)) + 1)]
    if tok == 'vcc':
        return [('s', 106), ('s', 107)]
    if tok == 'exec':
        return [('s', 126), ('s', 127)]
    if tok == 'm0':
        return [('s', 124)]
    if tok == 'scc':
        return [('s', 200)]
    return []

TRANS = ('v_exp_f32', 'v_log_f32', 'v_rcp_f32', 'v_rsq_f32', 'v_sqrt_f32', 'v_sin_f32', 'v_cos_f32')

class Ins:
    __slots__ = ('text', 'op', 'cls', 'rd', 'wr', 'srcc', 'ab', 'passes', 'comment', 'lds_dma', 'wide_store', 'extra', 'xrd', 'xwr', 'pw', 'pt')
    def __init__(self, text, comment=None):
        self.text = text
        self.comment = comment
        self.xrd = set(); self.xwr = set()
        self.pw = set(); self.pt = set()
        parts = text.split(None, 1)
        self.op = parts[0]
        rest = parts[1] if len(parts) > 1 else ''
        ops = []
        cur = ''
        depth = 0
        for ch in rest:
            if ch == '[': depth += 1
            if ch == ']': depth -= 1
            if ch == ',' and depth == 0:
                ops.append(cur.strip()); cur = ''
            else:
                cur += ch
        if cur.strip(): ops.append(cur.strip())
        mods = []
        if ops:
            toks = ops[-1].split()
            ops[-1] = toks[0]
            mods = toks[1:]
        op = self.op
        self.rd = set(); self.wr = set(); self.srcc = set(); self.ab = set()
        self.passes = 0; self.lds_dma = False; self.wide_store = False
        self.extra = None
        R = lambda i: regs_of(ops[i]) if i < len(ops) else []
        if op.startswith('v_mfma'):
            self.cls = 'mfma'
            self.passes = 8 if '32x32' in op else 4
            self.wr |= set(R(0)); self.ab |= set(R(1)) | set(R(2)); self.srcc |= set(R(3))
            self.rd |= self.ab | self.srcc
        elif op.startswith('v_cmp'):
            self.cls = 'valu'
            self.wr |= set(R(0))
            for i in range(1, len(ops)): self.rd |= set(R(i))
        elif op.startswith('v_permlane') and 'swap' in op:
            self.cls = 'valu'
            self.wr |= set(R(0)) | set(R(1)); self.rd |= set(R(0)) | set(R(1))
        elif op.startswith('v_'):
            self.cls = 'trans' if op.replace('_e32', '').replace('_e64', '') in TRANS else 'valu'
            self.wr |= set(R(0))
            start = 1
            if op.startswith(('v_add_co', 'v_sub_co', 'v_addc_co', 'v_subb_co')):
                self.wr |= set(R(1)); start = 2
            for i in range(start, len(ops)): self.rd |= set(R(i))
            if op.startswith(('v_fmac', 'v_pk_fmac', 'v_dot2c')): self.rd |= set(R(0))
            if op.startswith('v_cndmask') and len(ops) == 3: self.rd |= set(regs_of('vcc'))
        elif op.startswith('ds_read') or op.startswith('ds_bpermute') or op.startswith('ds_permute') or op.startswith('ds_swizzle'):
            self.cls = 'lds'
            self.wr |= set(R(0))
            for i in range(1, len(ops)): self.rd |= set(R(i))
        elif op.startswith('ds_write'):
            self.cls = 'lds'
            for i in range(len(ops)): self.rd |= set(R(i))
        elif op.startswith('buffer_load') or op.startswith('global_load'):
            self.cls = 'vmem'
            if 'lds' in mods or '_lds_' in op:
                self.lds_dma = True
                for i in range(len(ops)): self.rd |= set(R(i))
                self.rd |= set(regs_of('m0'))
            else:
                self.wr |= set(R(0))
                for i in range(1, len(ops)): self.rd |= set(R(i))
        elif op.startswith('buffer_store') or op.startswith('global_store'):
            self.cls = 'vmem'
            for i in range(len(ops)): self.rd |= set(R(i))
            if 'x4' in op or 'x3' in op:
                self.wide_store = True
                self.extra = set(R(0)) if op.startswith('buffer') else set(R(1))
        elif op.startswith('s_load') or op.startswith('s_memtime') or op.startswith('s_buffer_load'):
            self.cls = 'smem'
            self.wr |= set(R(0))
            for i in range(1, len(ops)): self.rd |= set(R(i))
        elif op in ('s_nop', 's_waitcnt', 's_barrier', 's_endpgm', 's_setprio', 's_sleep') or op.startswith(('s_branch', 's_cbranch')):
            self.cls = 'ctl'
        elif op.startswith('s_cmp') or op.startswith('s_bitcmp'):
            self.cls = 'salu'
            for i in range(len(ops)): self.rd |= set(R(i))
            self.wr |= set(regs_of('scc'))
        elif op.startswith('s_'):
            self.cls = 'salu'
            self.wr |= set(R(0))
            for i in range(1, len(ops)): self.rd |= set(R(i))
            if 'saveexec' in op:
                self.wr |= set(regs_of('exec')); self.rd |= set(regs_of('exec'))
            if op.startswith(('s_cselect', 's_addc', 's_subb')): self.rd |= set(regs_of('scc'))
            if not op.startswith(('s_mov', 's_cselect', 's_getpc', 's_mul')): self.wr |= set(regs_of('scc'))
        else:
            raise ValueError('unknown op ' + text)

    def states(self):
        if self.op == 's_nop':
            return int(self.text.split()[1]) + 1
        return 1

def is_valu(i): return i.cls in ('valu', 'trans')
def vg(s): return set(r for r in s if r[0] in 'va')
def sg(s): return set(r for r in s if r[0] == 's')

def need_states(p, c):
    n = 0
    if p.cls == 'mfma':
        big = p.passes == 8
        if c.cls == 'mfma':
            if p.wr & c.ab: n = max(n, 12 if big else 8)
            if p.wr & c.srcc:
                if p.wr == c.srcc and p.passes == c.passes: pass
                else: n = max(n, 10 if big else 6)
            elif p.wr & c.wr:
                n = max(n, 10 if big else 6)
        elif is_valu(c) or c.cls in ('lds', 'vmem'):
            if p.wr & (c.rd | c.wr): n = max(n, 12 if big else 8)
            if is_valu(c) and (p.srcc & c.wr): n = max(n, 7 if big else 3)
    elif is_valu(p):
        pw_v = vg(p.wr); pw_s = sg(p.wr)
        if c.cls == 'mfma' and (pw_v & c.rd): n = max(n, 2)
        if p.cls == 'trans' and c.cls == 'valu' and (pw_v & c.rd): n = max(n, 1)
        if p.cls == 'trans' and c.cls in ('lds', 'vmem') and (pw_v & c.rd): n = max(n, 1)
        if is_valu(c):
            if c.op.startswith('v_permlane') and (pw_v & c.rd): n = max(n, 2)
            if ('dpp' in c.text or 'row_' in c.text or 'quad_perm' in c.text) and (pw_v & c.rd): n = max(n, 2)
            if c.op.startswith(('v_readlane', 'v_readfirstlane')) and (pw_v & c.rd): n = max(n, 1)
            if pw_s & c.rd: n = max(n, 4 if c.op.startswith(('v_readlane', 'v_writelane')) else 2)
            if ('op_sel' in p.text and not p.op.startswith('v_pk_')) or 'sdwa' in p.text:
                if pw_v & (c.rd | c.wr): n = max(n, 1)
        if c.cls == 'vmem' and (pw_s & c.rd): n = max(n, 5)
        if c.cls in ('salu', 'ctl') and (pw_s & c.rd): n = max(n, 1)
    elif p.cls == 'salu':
        if c.lds_dma and (('s', 124) in p.wr): n = max(n, 1)
    elif p.cls == 'vmem' and p.wide_store:
        if (is_valu(c) or c.cls == 'mfma') and (p.extra & c.wr): n = max(n, 2)
        elif p.extra & c.wr: n = max(n, 1)
    return n

MAXLOOK = 14

class Prog:
    def __init__(self):
        self.items = []
    def I(self, text, comment=None):
        self.items.append(Ins(text, comment))
    def raw(self, text):
        self.items.append(text)
    def label(self, name):
        self.items.append(name + ':')
    def c(self, text):
        self.items.append('    ; ' + text)

    def finalize(self, auto_wait=True):
        out = []
        vm = []
        lg = []
        smem_out = False
        def flush_all():
            pass
        for it in self.items:
            if isinstance(it, str):
                if it.endswith(':') and auto_wait:
                    if any(w for w in vm) or any(w for w in lg) or smem_out:
                        out.append(Ins('s_waitcnt vmcnt(0) lgkmcnt(0)', 'auto: label'))
                    vm = []; lg = []; smem_out = False
                out.append(it)
                continue
            ins = it
            if auto_wait:
                touched = ins.rd | ins.wr | ins.pt
                nv = None; nl = None
                for k in range(len(vm) - 1, -1, -1):
                    if vm[k] & touched:
                        nv = len(vm) - 1 - k; break
                for k in range(len(lg) - 1, -1, -1):
                    if lg[k] & touched:
                        nl = len(lg) - 1 - k; break
                if nl is not None and smem_out: nl = 0
                if ins.op.startswith(('s_branch', 's_cbranch')):
                    if any(w for w in vm): nv = 0
                    if any(w for w in lg): nl = 0
                if nv is not None or nl is not None:
                    t = 's_waitcnt'
                    if nv is not None:
                        nv = min(nv, 63)
                        t += f' vmcnt({nv})'; vm = vm[len(vm) - nv:] if nv else []
                    if nl is not None:
                        nl = min(nl, 15)
                        t += f' lgkmcnt({nl})'; lg = lg[len(lg) - nl:] if nl else []
                        if nl == 0: smem_out = False
                    out.append(Ins(t, 'auto'))
                if ins.op == 's_waitcnt':
                    m = re.search(r'vmcnt\((\d+)\)', ins.text)
                    if m:
                        n = int(m.group(1)); vm = vm[len(vm) - n:] if n and n < len(vm) else ([] if n == 0 else vm)
                    m = re.search(r'lgkmcnt\((\d+)\)', ins.text)
                    if m:
                        n = int(m.group(1)); lg = lg[len(lg) - n:] if n and n < len(lg) else ([] if n == 0 else lg)
                        if n == 0: smem_out = False
                if ins.cls == 'vmem': vm.append(set(ins.wr) | ins.pw)
                if ins.cls == 'lds': lg.append(set(ins.wr) | ins.pw)
                if ins.cls == 'smem':
                    lg.append(set(ins.wr)); smem_out = True
            out.append(ins)
        res = []
        hist = []
        for it in out:
            if isinstance(it, str):
                if it.endswith(':'):
                    res.append(it)
                    hist.append('LABEL')
                else:
                    res.append(it)
                continue
            dist = 0
            need = 0
            for p in reversed(hist[-MAXLOOK:]):
                if p == 'LABEL':
                    continue
                n = need_states(p, it)
                if n > dist: need = max(need, n - dist)
                dist += p.states()
                if dist >= 13: break
            while need > 0:
                k = min(need, 16)
                nop = Ins(f's_nop {k-1}', 'hazard')
                res.append(nop); hist.append(nop)
                need -= k
            res.append(it); hist.append(it)
        self.final = res
        return res

    def text(self):
        lines = []
        for it in self.final:
            if isinstance(it, str): lines.append(it)
            else:
                lines.append('    ' + it.text + (('    ; ' + it.comment) if it.comment else ''))
        return '\n'.join(lines) + '\n'

def V(a, n=1):
    return f'v{a}' if n == 1 else f'v[{a}:{a+n-1}]'
def S(a, n=1):
    return f's{a}' if n == 1 else f's[{a}:{a+n-1}]'
```

```python
import heapq
from asmlib import Ins, need_states, is_valu

class Node:
    __slots__ = ('ins', 'idx', 'rd', 'wr', 'preds', 'succs', 'npred', 'prio', 'ready', 'pos_end', 't_issue', 'kind', 'wave', 'port', 'pipe')
    def __init__(self, ins_list, idx):
        self.ins = ins_list
        self.idx = idx
        self.rd = set(); self.wr = set()
        for i in ins_list:
            self.rd |= i.rd | getattr(i, 'xrd', set())
            self.wr |= i.wr | getattr(i, 'xwr', set())
        self.preds = []; self.succs = []
        self.prio = 0; self.ready = 0
        wave = 0; port = 0; pipe = 0
        for i in ins_list:
            w, p, m = cost(i)
            wave += w; port += p; pipe += m
        self.wave = wave; self.port = port; self.pipe = pipe
        self.kind = ins_list[0].cls if len(ins_list) == 1 else 'group'

def cost(i):
    if i.cls == 'mfma':
        return (4, 8, 32 if i.passes == 8 else 16)
    if i.cls == 'trans' or i.op.startswith('v_permlane'):
        return (8, 8, 0)
    if i.cls == 'valu':
        return (4, 4, 0)
    if i.cls == 'lds':
        return (12 if i.op.startswith('ds_write') else 6, 0, 0)
    if i.cls == 'vmem':
        return (16, 0, 0)
    return (4, 0, 0)

LDS_LAT = 128

def latency(p, c, regs):
    pi = p.ins[-1]
    if p.kind == 'mfma':
        ci = c.ins[0]
        if ci.cls == 'mfma' and (regs <= ci.srcc) and not (regs & ci.ab):
            return 4
        return 56 if pi.passes == 8 else 40
    if p.kind == 'lds' and pi.wr:
        if any(r[0] in 'va' for r in regs): return LDS_LAT
        return 4
    if p.kind == 'vmem' and pi.wr:
        if any(r[0] in 'va' for r in regs): return 600
        return 4
    return p.wave

def schedule(items, window=600, verbose=False, mfma_bias=True):
    nodes = [Node(it if isinstance(it, list) else [it], k) for k, it in enumerate(items)]
    lastw = {}; readers = {}
    for n in nodes:
        deps = {}
        for r in n.rd:
            w = lastw.get(r)
            if w is not None: deps.setdefault(w, [set(), False])[0].add(r)
        for r in n.wr:
            w = lastw.get(r)
            if w is not None:
                d = deps.setdefault(w, [set(), False])
                d[0].add(r)
            for q in readers.get(r, ()):
                if q is not n: deps.setdefault(q, [set(), False])
        for pnode, (regs, _) in deps.items():
            lat = latency(pnode, n, regs) if regs else pnode.wave
            n.preds.append((pnode, lat)); pnode.succs.append((n, lat))
        for r in n.rd: readers.setdefault(r, []).append(n)
        for r in n.wr:
            lastw[r] = n; readers[r] = []
    for n in reversed(nodes):
        best = 0
        for s, lat in n.succs:
            best = max(best, lat + s.prio)
        n.prio = best + max(n.wave, n.port, n.pipe // 2)
    for n in nodes: n.npred = len(n.preds)
    ready = [n for n in nodes if n.npred == 0]
    now = 0; port_free = 0; pipe_free = 0; pos = 0
    out = []
    done = [False] * len(nodes)
    oldest = 0
    busy_port = 0; busy_pipe = 0
    while ready:
        while oldest < len(nodes) and done[oldest]: oldest += 1
        best = None; bestkey = None
        for n in ready:
            if n.idx > oldest + window: continue
            est = max(now, n.ready)
            if n.port: est = max(est, port_free)
            if n.pipe: est = max(est, pipe_free)
            miss = 0
            for p, _ in n.preds:
                d = pos - p.pos_end
                if d < 13:
                    ns = need_states(p.ins[-1], n.ins[0])
                    if ns > d: miss = max(miss, ns - d)
            if miss: est = max(est, now + 4 * miss)
            key = (est - (2 if (mfma_bias and n.pipe) else 0), -n.prio, n.idx)
            if bestkey is None or key < bestkey:
                best = n; bestkey = key; best_est = est
        n = best
        ready.remove(n)
        done[n.idx] = True
        t = best_est
        n.t_issue = t
        if t > now: pos += (t - now) // 4 if False else 0
        now = t + n.wave
        if n.port: port_free = t + n.port; busy_port += n.port
        if n.pipe: pipe_free = t + n.pipe; busy_pipe += n.pipe
        pos += len(n.ins)
        n.pos_end = pos
        out.extend(n.ins)
        for s, lat in n.succs:
            s.ready = max(s.ready, t + lat)
            s.npred -= 1
            if s.npred == 0: ready.append(s)
    assert len(out) == sum(len(n.ins) for n in nodes)
    if verbose:
        print(f'schedule: {len(out)} instrs, est {now} cycles, port busy {busy_port}, pipe busy {busy_pipe}')
    return out, now
```

```python
import sys, struct, argparse
sys.path.insert(0, 'gen')
from asmlib import *
from sched import schedule

NAME = 'standalone__attention_interact_autoint__recsys'
HEADER = open('cdna_kernels/%s.s.ref' % NAME).read().split('; Override launch')[0]
def f32bits(x): return struct.unpack('<I', struct.pack('<f', x))[0]
CSCALE = f32bits((32.0 ** -0.5) * 1.4426950408889634)
MF32 = 'v_mfma_f32_32x32x16_bf16'
MF32K8 = 'v_mfma_f32_32x32x8_bf16'
MF16 = 'v_mfma_f32_16x16x32_bf16'
MF16K16 = 'v_mfma_f32_16x16x16_bf16'
OOB_G = 0x40000000
OOB_L = 0x40000

ACC = [0, 16, 32, 48]
STR0 = 64; NSTR = 8
QF = [96, 104]
LS = [112, 116]
SR = 120
HOLD = 124
INV = [132, 133]
aKR = 134; BAD = 135
SEL = 136; SEL16 = 140
VREM = lambda bb, h: 142 + 4 * bb + 2 * h
RR = lambda bb: 150 + 2 * bb
aW = 154; aE = 155; vA = 156; vB = 157; aOW = 158; aSR = 159
KF = lambda h, t, ks: 160 + 24 * h + 8 * t + 4 * ks
VF = lambda h, t, sub: 208 + 24 * h + 8 * t + 4 * sub
sE = 24; sO = 28; sWd = 32
sB = [40, 41]
sEL = 42
sT = 43; sT2 = 44
sLO = 46; sHI = 48
sB3 = 50
sVM = 52
sLIM = 54
LDS_E = 32768; LDS_SCR = 131072

class Gen:
    def __init__(self, opt):
        self.opt = opt
        self.p = Prog()
        self.reg = None
        self.strn = 0
    def I(self, text, comment=None, xrd=(), xwr=(), pw=(), pt=()):
        ins = Ins(text, comment)
        ins.xrd = set(xrd); ins.xwr = set(xwr); ins.pw = set(pw); ins.pt = set(pt)
        if ins.cls == 'vmem': ins.xwr.add(('X', 'vmem'))
        if self.reg is None: self.p.items.append(ins)
        else: self.reg.append(ins)
        return ins
    def group(self, lst):
        g = []
        for text, kw in lst:
            ins = Ins(text, kw.get('comment'))
            ins.xrd = set(kw.get('xrd', ())); ins.xwr = set(kw.get('xwr', ())); ins.pw = set(kw.get('pw', ())); ins.pt = set(kw.get('pt', ()))
            if ins.cls == 'vmem': ins.xwr.add(('X', 'vmem'))
            g.append(ins)
        if self.reg is None: self.p.items.extend(g)
        else: self.reg.append(g)
    def begin(self): self.reg = []
    def end(self):
        r = self.reg; self.reg = None
        if self.opt.nosched:
            flat = []
            for it in r: flat.extend(it if isinstance(it, list) else [it])
        else:
            flat, est = schedule(r, window=self.opt.window, verbose=True)
        self.p.items.extend(flat)
    def slot(self):
        r = STR0 + 4 * (self.strn % NSTR); self.strn += 1
        return r
    def wread(self, m, h, s):
        r = self.slot()
        self.I(f'ds_read_b128 {V(r,4)}, v{aW} offset:{((m*2+h)*4+s)*1024}')
        return r
    def eread(self, t, s, dst=None):
        r = self.slot() if dst is None else dst
        self.I(f'ds_read_b128 {V(r,4)}, v{aE} offset:{t*4096+s*256}', xrd=[('L', f'E{t}')], pt=[('L', f'E{t}')], pw=[('LR', f'E{t}')])
        return r
    def dma(self, bb, t):
        ld = self.opt.ldmod
        lst = [(f's_add_u32 m0, s{sEL}, {t*4096}', {}), (f's_add_u32 s{sT}, s{sB[bb]}, {t*4096}', {})]
        for g in range(4):
            lst.append((f'buffer_load_dwordx4 v{vA if g < 2 else vB}, s[{sE}:{sE+3}], s{sT} offen offset:{g*1024} {ld} lds',
                        dict(xwr=[('L', f'E{t}')], pw=[('L', f'E{t}')], pt=[('LR', f'E{t}')])))
        self.group(lst)
    def cvt(self, dst, a, b=None):
        self.I(f'v_cvt_pk_bf16_f32 v{dst}, v{a}, v{a+1 if b is None else b}')

    def prologue(self):
        I = self.I; p = self.p; o = self.opt
        I('s_cmp_ge_u32 s2, 256')
        I('s_cbranch_scc1 L_end')
        I('s_load_dwordx4 s[4:7], s[0:1], 0')
        I('s_load_dwordx4 s[8:11], s[0:1], 16')
        I('s_load_dwordx4 s[12:15], s[0:1], 32')
        if o.prio: I('s_setprio 3')
        I('v_lshrrev_b32 v2, 6, v0')
        I('v_and_b32 v1, 63, v0', 'lane')
        I('v_readfirstlane_b32 s20, v2', 'wave id')
        if o.codepf:
            I('s_getpc_b64 s[16:17]')
            I(f'v_lshlrev_b32 v4, 4, v0', 'tid*16: 8 KB per pass')
            I('v_mov_b32 v5, s17')
            I('v_add_co_u32 v4, vcc, s16, v4')
            I('v_addc_co_u32 v5, vcc, 0, v5, vcc')
            for k in range(o.codepf):
                if k:
                    I('v_add_co_u32 v4, vcc, 0x2000, v4')
                    I('v_addc_co_u32 v5, vcc, 0, v5, vcc')
                I(f'global_load_dwordx4 v[{100+4*k}:{103+4*k}], v[4:5], off')
        I(f'v_lshlrev_b32 v{aW}, 4, v1', 'lane*16')
        I('v_and_b32 v6, 7, v1'); I('v_lshrrev_b32 v7, 3, v1')
        I(f'v_lshlrev_b32 v{vA}, 7, v6')
        I(f'v_xor_b32 v8, 1, v7')
        I(f'v_lshl_add_u32 v{vB}, v8, 4, v{vA}')
        I(f'v_lshl_add_u32 v{vA}, v7, 4, v{vA}')
        I('v_and_b32 v8, 3, v1', 'fq'); I('v_bfe_u32 v9, v1, 2, 1', 'ih/gh'); I('v_bfe_u32 v10, v1, 3, 1', 'bit3')
        I('v_bfe_u32 v11, v1, 4, 1', 'q&1'); I('v_lshrrev_b32 v12, 5, v1', 'q>>1')
        I('v_mul_u32_u24 v13, 102400, v10')
        I('v_lshl_add_u32 v13, v8, 7, v13')
        I('v_lshl_add_u32 v13, v12, 4, v13')
        I('v_add_u32 v13, 12288, v13')
        I(f'v_mov_b32 v14, 0x{OOB_G:x}')
        I('v_cmp_eq_u32 vcc, v9, v11')
        I('v_cndmask_b32 v13, v14, v13, vcc', 'ER voffset')
        I('s_waitcnt lgkmcnt(0)')
        for (d, src, n) in ((sE, 4, 52428800), (sO, 14, 52428800)):
            I(f's_mov_b32 s{d}, s{src}'); I(f's_mov_b32 s{d+1}, s{src+1}'); I(f's_mov_b32 s{d+2}, {n}'); I(f's_mov_b32 s{d+3}, 0x00020000')
        I('s_lshr_b32 s21, s20, 1', 'm'); I('s_and_b32 s22, s20, 1', 'h')
        I('s_mov_b32 s32, s6'); I('s_mov_b32 s33, s7')
        I('s_cmp_eq_u32 s21, 1'); I('s_cselect_b32 s32, s8, s32'); I('s_cselect_b32 s33, s9, s33')
        I('s_cmp_eq_u32 s21, 2'); I('s_cselect_b32 s32, s10, s32'); I('s_cselect_b32 s33, s11, s33')
        I('s_cmp_eq_u32 s21, 3'); I('s_cselect_b32 s32, s12, s32'); I('s_cselect_b32 s33, s13, s33')
        I('s_cselect_b32 s36, 128, 64', 'row stride'); I('s_cselect_b32 s37, 64, 4096', 'head offset unit')
        I('s_mov_b32 s34, 8192'); I('s_mov_b32 s35, 0x00020000')
        I('s_mul_i32 s37, s37, s22')
        I('s_cmp_eq_u32 s21, 0'); I(f's_cselect_b32 s39, 0x{CSCALE:08x}, 1.0', 'scale*log2e folded into Wq')
        I('s_lshl_b32 s38, s36, 3')
        I('v_mul_lo_u32 v4, v7, s38')
        I('v_lshl_add_u32 v4, v6, 3, v4')
        for j in range(8):
            I(f'buffer_load_dwordx2 v[{16+2*j}:{17+2*j}], v4, s[32:35], s37 offen')
            if j < 7: I('s_add_u32 s37, s37, s36')
        I(f's_lshl_b32 s{sB[0]}, s2, 4'); I(f's_add_u32 s{sB[0]}, s{sB[0]}, s20'); I(f's_mul_i32 s{sB[0]}, s{sB[0]}, 12800')
        I(f's_add_u32 s{sB[1]}, s{sB[0]}, 102400')
        for s in range(4):
            I(f'buffer_load_dwordx4 {V(208+4*s,4)}, v13, s[{sE}:{sE+3}], s{sB[0]} offen offset:{32*s}')
        I(f's_mul_i32 s{sEL}, s20, 12288'); I(f's_add_u32 s{sEL}, s{sEL}, {LDS_E}')
        for t in range(3): self.dma(0, t)
        I('s_lshl_b32 s45, s20, 12'); I(f's_add_u32 s45, s45, {LDS_SCR}', 'scratch base')
        I('v_bfe_u32 v14, v1, 3, 2', 'g')
        I('v_xor_b32 v15, v12, v11', 'hf ^ (g>>1)   (g>>1 = lane bit4)')
        I(f'v_lshlrev_b32 v{aE}, 10, v14')
        I(f'v_lshl_add_u32 v{aE}, v15, 7, v{aE}')
        I(f'v_lshl_add_u32 v{aE}, v6, 4, v{aE}')
        I(f'v_add_u32 v{aE}, s{sEL}, v{aE}')
        I(f'v_lshlrev_b32 v{aOW}, 10, v10')
        I(f'v_lshl_add_u32 v{aOW}, v12, 7, v{aOW}')
        I(f'v_lshl_add_u32 v{aOW}, v6, 4, v{aOW}')
        I(f'v_add_u32 v{aOW}, s45, v{aOW}')
        I(f'v_add_u32 v{aSR}, s45, v{aW}')
        I(f'v_lshlrev_b32 v{aKR}, 5, v8')
        I(f'v_lshl_add_u32 v{aKR}, v12, 4, v{aKR}')
        I(f'v_add_u32 v{aKR}, s45, v{aKR}')
        I('v_xor_b32 v14, v9, v11')
        I('v_or_b32 v14, v14, v10')
        I(f'v_mov_b32 v15, 0x{OOB_L:x}')
        I('v_cmp_eq_u32 vcc, 0, v14')
        I(f'v_cndmask_b32 v{aKR}, v15, v{aKR}, vcc')
        I('v_mov_b32 v15, 0x3f803f80')
        I('v_cmp_eq_u32 vcc, v9, v11')
        for k in range(4): I(f'v_cndmask_b32 v{SEL+k}, 0, v15, vcc')
        I('v_cmp_eq_u32 vcc, 0, v12')
        for k in range(2): I(f'v_cndmask_b32 v{SEL16+k}, 0, v{SEL}, vcc')
        I(f'v_mov_b32 v{BAD}, 0')
        I(f's_mov_b32 s{sLO}, 0x0000ffff'); I(f's_mov_b32 s{sLO+1}, 0x0000ffff')
        I(f's_mov_b32 s{sHI}, 0xffff0000'); I(f's_mov_b32 s{sHI+1}, 0xffff0000')
        I(f's_mov_b32 s{sB3}, 0xff00ff00'); I(f's_mov_b32 s{sB3+1}, 0xff00ff00')
        I(f's_mov_b32 s{sVM}, 0x00000f0f'); I(f's_mov_b32 s{sVM+1}, 0')
        I(f's_mov_b32 s{sLIM}, 0x5f800000', '2^64')
        I('v_lshlrev_b32 v3, 9, v10')
        I('v_lshl_add_u32 v3, v9, 7, v3')
        I('v_lshl_add_u32 v3, v8, 5, v3')
        I('v_lshl_add_u32 v3, v11, 4, v3')
        I('v_lshl_add_u32 v3, v12, 3, v3')
        I(f'v_add_u32 v{INV[0]}, s45, v3', 'kept in INV0 until rem projections are written')
        I('v_and_b32 v5, 4, v6'); I('v_and_b32 v14, 1, v6'); I('v_lshl_or_b32 v5, v14, 1, v5')
        I('v_bfe_u32 v14, v6, 1, 1'); I('v_or_b32 v5, v5, v14')
        I('v_lshlrev_b32 v5, 6, v5'); I('v_lshl_add_u32 v5, v7, 9, v5')
        I('s_lshl_b32 s38, s20, 12'); I('v_add_u32 v5, s38, v5')
        for j in range(8):
            for b in range(4):
                src = 16 + 2 * j + (b >> 1); t = 32 + 4 * j + b
                if b & 1: I(f'v_and_b32 v{t}, 0xffff0000, v{src}')
                else: I(f'v_lshlrev_b32 v{t}, 16, v{src}')
                I(f'v_mul_f32 v{t}, s39, v{t}')
        for b in range(4):
            for i in range(4):
                I(f'v_cvt_pk_bf16_f32 v{64+4*b+i}, v{32+4*(2*i)+b}, v{32+4*(2*i+1)+b}')
            I(f'ds_write_b128 v5, v[{64+4*b}:{67+4*b}] offset:{16*b}')
        I('s_waitcnt lgkmcnt(0)')
        I('s_barrier')

    def rem_proj(self):
        I = self.I
        ER = lambda s: 208 + 4 * s
        D = lambda m, h: 160 + 4 * (2 * m + h)
        for m in (1, 0, 2, 3):
            for h in range(2):
                d = D(m, h)
                for s in range(4):
                    w = self.wread(m, h, s)
                    c = '0' if s == 0 else V(d, 4)
                    if m == 2: I(f'{MF16} {V(d,4)}, {V(ER(s),4)}, {V(w,4)}, {c}')
                    else: I(f'{MF16} {V(d,4)}, {V(w,4)}, {V(ER(s),4)}, {c}')
        for m in (1, 0):
            for h in range(2):
                d = D(m, h)
                self.cvt(d, d); self.cvt(d + 1, d + 2)
                I(f'ds_write_b64 v{INV[0]}, {V(d,2)} offset:{h*256 + (1024 if m == 0 else 0)}', xwr=[('L', 'REM')])
        for h in range(2):
            d = D(2, h)
            self.cvt(VREM(0, h), d); self.cvt(VREM(0, h) + 1, d + 2)
            for k in range(2):
                I(f'v_mov_b32 v{VREM(1,h)+k}, 0')
                I(f'v_permlane32_swap_b32 v{VREM(0,h)+k}, v{VREM(1,h)+k}')
        for h in range(2):
            d = D(3, h)
            self.cvt(RR(h), d); self.cvt(RR(h) + 1, d + 2)
        for k in range(2):
            t = D(3, 0) + k
            I(f'v_mov_b32 v{t}, v{RR(0)+k}')
            I(f'v_mov_b32_dpp v{RR(0)+k}, v{RR(1)+k} row_ror:8 row_mask:0xf bank_mask:0xc', xrd=[('v', RR(0)+k)])
            I(f'v_mov_b32_dpp v{RR(1)+k}, v{t} row_ror:8 row_mask:0xf bank_mask:0x3', xrd=[('v', RR(1)+k)])

    def kv_proj(self, bb):
        I = self.I
        EB = lambda t, s: (ACC[2] + 16 * t + 4 * s) if t < 2 else (QF[0] + 4 * s)
        self.frem_addr()
        for t in range(3):
            for s in range(4): self.eread(t, s, EB(t, s))
        n = 0
        for (m, h) in ((1, 0), (1, 1), (2, 0), (2, 1)):
            w = [self.wread(m, h, s) for s in range(4)]
            for t in range(3):
                acc = ACC[n & 1]; n += 1
                for s in range(4):
                    c = '0' if s == 0 else V(acc, 16)
                    if m == 1: I(f'{MF32} {V(acc,16)}, {V(w[s],4)}, {V(EB(t,s),4)}, {c}')
                    else: I(f'{MF32} {V(acc,16)}, {V(EB(t,s),4)}, {V(w[s],4)}, {c}')
                dst = KF(h, t, 0) if m == 1 else VF(h, t, 0)
                for i in range(8): self.cvt(dst + i, acc + 2 * i)
            if (m, h) == (1, 1): self.frem_s(bb)

    def krem_read(self, bb, h, ks, isq=False, addr=None):
        r = self.slot()
        off = bb * 512 + h * 256 + ks * 128 + (1024 if isq else 0)
        self.I(f'ds_read_b128 {V(r,4)}, v{aKR if addr is None else addr} offset:{off}', xrd=[('L', 'REM')])
        return r

    def frem_addr(self):
        I = self.I
        T = 248
        I(f'v_bfe_u32 v{T}, v{aW}, 4, 2', 'fq'); I(f'v_bfe_u32 v{T+1}, v{aW}, 6, 1', 'bit2'); I(f'v_bfe_u32 v{T+2}, v{aW}, 7, 1', 'bit3')
        I(f'v_bfe_u32 v{T+3}, v{aW}, 8, 1', 'q&1'); I(f'v_lshrrev_b32 v{T+4}, 9, v{aW}', 'q>>1')
        I(f'v_sub_u32 v{T+5}, v{aSR}, v{aW}', 'scratch base')
        I(f'v_lshl_add_u32 v{T+5}, v{T}, 5, v{T+5}', '+fq*32')
        I(f'v_lshl_add_u32 v{T+6}, v{T+4}, 4, v{T+5}', '+(q>>1)*16')
        I(f'v_mov_b32 v{T+7}, 0x{OOB_L:x}')
        I(f'v_cmp_eq_u32 vcc, v{T+1}, v{T+3}')
        I(f'v_cndmask_b32 v{T+6}, v{T+7}, v{T+6}, vcc', 'valid iff (q&1)==bit2')
        I(f'v_cndmask_b32 v{SR}, v{T+7}, v{T+6}, s[{sB3}:{sB3+1}]', 'Q rem head1 read addr')
        I(f'v_lshl_add_u32 v{INV[0]}, v{T+2}, 7, v{T+6}', 'P read addr (+hd*128)')
        I(f'v_lshlrev_b32 v{T+7}, 4, v{T+3}')
        I(f'v_lshl_add_u32 v{T+7}, v{T+4}, 3, v{T+7}', '(q&1)*16 + (q>>1)*8')
        I(f'v_lshl_add_u32 v{SR+1}, v{T+1}, 8, v{T+5}')
        I(f'v_lshl_add_u32 v{SR+1}, v{T+2}, 7, v{SR+1}')
        I(f'v_add_u32 v{SR+1}, v{SR+1}, v{T+7}', 'P write addr')
        I(f'v_lshl_add_u32 v{T+7}, v{T}, 7, v{T+7}')
        I(f'v_lshl_add_u32 v{T+7}, v{T+2}, 6, v{T+7}')
        I(f'v_lshl_add_u32 v{INV[1]}, v{T+1}, 5, v{T+7}', 'out offset')
        I(f'v_mov_b32 v{SR+2}, 0xff800000')

    def frem_s(self, bb):
        I = self.I
        D = lambda t: (HOLD, HOLD + 4, LS[0], LS[1])[t]
        first = [True] * 4
        for h in range(2):
            for ks in range(2):
                qb = self.krem_read(bb, h, ks, isq=True, addr=(aKR if h == 0 else SR))
                ka = self.krem_read(bb, h, ks)
                for t in range(4):
                    a = KF(h, t, ks) if t < 3 else ka
                    c = '0' if first[t] else V(D(t), 4); first[t] = False
                    I(f'{MF16} {V(D(t),4)}, {V(a,4)}, {V(qb,4)}, {c}')
        for r in range(4):
            I(f'v_cndmask_b32 v{D(3)+r}, v{SR+2}, v{D(3)+r}, s[{sVM}:{sVM+1}]')
        for t in range(4):
            for r in range(4): I(f'v_exp_f32 v{D(t)+r}, v{D(t)+r}')
            self.cvt(D(t), D(t)); self.cvt(D(t) + 1, D(t) + 2)
            I(f'ds_write_b64 v{SR+1}, {V(D(t),2)} offset:{2048 + t*512}', xwr=[('L', 'STG')])

    def frem_pv(self, bb):
        I = self.I
        DH = [HOLD, HOLD + 4]
        ONE = LS[0]; L = LS[1]
        for k in range(4): I(f'v_mov_b32 v{ONE+k}, 0x3f803f80')
        for u in range(7):
            r = self.slot()
            t, sub = u >> 1, u & 1
            if u < 6:
                I(f'ds_read_b128 {V(r,4)}, v{INV[0]} offset:{2048+u*256}', xrd=[('L', 'STG')])
                I(f'{MF16} {V(L,4)}, {V(ONE,4)}, {V(r,4)}, {"0" if u == 0 else V(L,4)}')
                for h in range(2):
                    I(f'{MF16} {V(DH[h],4)}, {V(VF(h,t,sub),4)}, {V(r,4)}, {"0" if u == 0 else V(DH[h],4)}')
            else:
                I(f'ds_read_b64 {V(r,2)}, v{INV[0]} offset:{2048+u*256}', xrd=[('L', 'STG')])
                I(f'{MF16K16} {V(L,4)}, {V(ONE,2)}, {V(r,2)}, {V(L,4)}')
                for h in range(2):
                    I(f'{MF16K16} {V(DH[h],4)}, {V(VREM(bb,h),2)}, {V(r,2)}, {V(DH[h],4)}')
        I(f'v_rcp_f32 v{L+1}, v{L}')
        I(f'v_max3_u32 v{BAD}, v{BAD}, v{L}, v{L+1}')
        for r in range(4):
            I(f'v_cndmask_b32 v{DH[0]+r}, v{DH[0]+r}, v{DH[1]+r}, s[{sB3}:{sB3+1}]')
            if r & 1: I(f'v_and_b32 v{DH[1]+r}, 0xffff0000, v{RR(bb)+(r>>1)}')
            else: I(f'v_lshlrev_b32 v{DH[1]+r}, 16, v{RR(bb)+(r>>1)}')
            I(f'v_fma_f32 v{DH[0]+r}, v{DH[0]+r}, v{L+1}, v{DH[1]+r}')
        self.cvt(DH[0], DH[0]); self.cvt(DH[0] + 1, DH[0] + 2)
        for k in range(2): I(f'v_pk_max_i16 v{DH[0]+k}, v{DH[0]+k}, 0')
        self.group([(f's_add_u32 s{sT2}, s{sB[bb]}, 12288', {}),
                    (f'buffer_store_dwordx2 {V(DH[0],2)}, v{INV[1]}, s[{sO}:{sO+3}], s{sT2} offen {self.opt.stmod}', {})])

    def qproj(self, k):
        ft, h = k >> 1, k & 1
        X = ACC[2 + (k & 1)]
        for s in range(4):
            w = self.wread(0, h, s); e = self.eread(ft, s)
            self.I(f'{MF32} {V(X,16)}, {V(w,4)}, {V(e,4)}, {"0" if s == 0 else V(X,16)}')
        for i in range(8): self.cvt(QF[k & 1] + i, X + 2 * i)

    def block(self, bb, k):
        I = self.I
        ft, h = k >> 1, k & 1
        O = ACC[0]; SA = ACC[1]; X = ACC[2 + (k & 1)]
        Q = QF[k & 1]; L = LS[k & 1]; inv = INV[k & 1]
        def smm(t, dst):
            I(f'{MF32} {V(dst,16)}, {V(KF(h,t,0),4)}, {V(Q,4)}, 0')
            I(f'{MF32} {V(dst,16)}, {V(KF(h,t,1),4)}, {V(Q+4,4)}, {V(dst,16)}')
        def soft(buf):
            for i in range(8):
                I(f'v_exp_f32 v{buf+2*i}, v{buf+2*i}')
                I(f'v_exp_f32 v{buf+2*i+1}, v{buf+2*i+1}')
                self.cvt(buf + i, buf + 2 * i)
        def pv(t, buf):
            for sub in range(2):
                first = (t == 0 and sub == 0)
                I(f'{MF32} {V(O,16)}, {V(VF(h,t,sub),4)}, {V(buf+4*sub,4)}, {"0" if first else V(O,16)}')
                I(f'{MF16} {V(L,4)}, {V(SEL,4)}, {V(buf+4*sub,4)}, {"0" if first else V(L,4)}')
        smm(0, SA); smm(1, X)
        for ks in range(2):
            ka = self.krem_read(bb, h, ks)
            I(f'{MF16} {V(SR,4)}, {V(ka,4)}, {V(Q+4*ks,4)}, {"0" if ks == 0 else V(SR,4)}')
        soft(SA); pv(0, SA)
        if k < 5: self.qproj(k + 1)
        soft(X)
        smm(2, SA)
        pv(1, X)
        for r in range(4): I(f'v_exp_f32 v{SR+r}, v{SR+r}')
        self.cvt(SR, SR); self.cvt(SR + 1, SR + 2)
        I(f'{MF32K8} {V(O,16)}, {V(VREM(bb,h),2)}, {V(SR,2)}, {V(O,16)}')
        I(f'{MF16K16} {V(L,4)}, {V(SEL16,2)}, {V(SR,2)}, {V(L,4)}')
        for s in range(4):
            w = self.wread(3, h, s); e = self.eread(ft, s)
            I(f'{MF32} {V(X,16)}, {V(w,4)}, {V(e,4)}, {"0" if s == 0 else V(X,16)}')
        if h == 1 and bb == 0: self.dma(1, ft)
        soft(SA); pv(2, SA)
        I(f'v_rcp_f32 v{inv}, v{L}')
        I(f'v_max3_u32 v{BAD}, v{BAD}, v{L}, v{inv}')
        for r in range(16): I(f'v_fma_f32 v{X+r}, v{O+r}, v{inv}, v{X+r}')
        dst = HOLD if h == 0 else X
        for i in range(8):
            self.cvt(dst + i, X + 2 * i)
            I(f'v_pk_max_i16 v{dst+i}, v{dst+i}, 0')
        if h == 1:
            for rr in range(2):
                lst = [(f's_mov_b64 exec, s[{(sLO, sHI)[rr]}:{(sLO, sHI)[rr]+1}]', {})]
                for hd in range(2):
                    for a1 in range(2):
                        src = (HOLD if hd == 0 else X) + 4 * a1
                        lst.append((f'ds_write_b128 v{aOW}, {V(src,4)} offset:{2048 + hd*512 + a1*256}', dict(xwr=[('L', 'STG')])))
                lst.append(('s_mov_b64 exec, -1', {}))
                self.group(lst)
                for kk in range(2):
                    r = self.slot()
                    I(f'ds_read_b128 {V(r,4)}, v{aSR} offset:{2048 + kk*1024}', xrd=[('L', 'STG')])
                    self.group([(f's_add_u32 s{sT2}, s{sB[bb]}, {ft*4096}', {}),
                                (f'buffer_store_dwordx4 {V(r,4)}, v{vA}, s[{sO}:{sO+3}], s{sT2} offen offset:{rr*2048+kk*1024} {self.opt.stmod}', {})])

    def slow_path(self):
        I = self.I; p = self.p
        p.label('L_slow')
        I('s_waitcnt vmcnt(0) lgkmcnt(0)')
        I('s_mov_b64 exec, -1')
        I('v_mbcnt_lo_u32_b32 v1, -1, 0'); I('v_mbcnt_hi_u32_b32 v1, -1, v1')
        I('v_and_b32 v6, 31, v1'); I('v_lshrrev_b32 v7, 5, v1')
        I('v_lshlrev_b32 v2, 7, v6'); I('v_lshl_add_u32 v2, v7, 4, v2')
        I(f'v_mov_b32 v3, 0x{OOB_G:x}'); I('v_cmp_gt_u32 vcc, 4, v6'); I('v_cndmask_b32 v3, v3, v2, vcc')
        I('v_lshlrev_b32 v4, 4, v1'); I('v_mov_b32 v5, 0xff800000')
        I('s_mov_b32 s56, 0'); I('s_mov_b32 s57, -1')
        I(f's_mov_b32 s58, s{sB[0]}'); I('s_mov_b32 s59, 0')
        p.label('L_sbatch')
        E = lambda t, s: 16 + 16 * t + 4 * s
        KFs = lambda t, ks: 80 + 8 * t + 4 * ks
        VFs = lambda u: 112 + 4 * u
        W1 = lambda s: 140 + 4 * s
        W2 = lambda s: 156 + 4 * s
        QA = 172
        SS = lambda t: 188 + 16 * t
        for t in range(4): I(f's_add_u32 s{60+t}, s58, {4096*t}')
        for t in range(4):
            for s in range(4):
                I(f'buffer_load_dwordx4 {V(E(t,s),4)}, v{3 if t==3 else 2}, s[{sE}:{sE+3}], s{60+t} offen offset:{32*s}')
        def wread(dst, m, h):
            for s in range(4): I(f'ds_read_b128 {V(dst(s),4)}, v4 offset:{((m*2+h)*4+s)*1024}')
        for h in range(2):
            wread(W1, 1, h); wread(W2, 2, h)
            for t in range(4):
                acc = SS(t)
                for s in range(4): I(f'{MF32} {V(acc,16)}, {V(W1(s),4)}, {V(E(t,s),4)}, {"0" if s==0 else V(acc,16)}')
            for t in range(4):
                for i in range(8): self.cvt(KFs(t, 0) + i, SS(t) + 2 * i)
            for t in range(4):
                acc = SS(t)
                for s in range(4): I(f'{MF32} {V(acc,16)}, {V(E(t,s),4)}, {V(W2(s),4)}, {"0" if s==0 else V(acc,16)}')
            for t in range(4):
                for i in range(8 if t < 3 else 4): self.cvt(VFs(2 * t) + i, SS(t) + 2 * i)
            wread(W1, 0, h); wread(W2, 3, h)
            for ft in range(4):
                for s in range(4): I(f'{MF32} {V(QA,16)}, {V(W1(s),4)}, {V(E(ft,s),4)}, {"0" if s==0 else V(QA,16)}')
                for i in range(8): self.cvt(QA + i, QA + 2 * i)
                for t in range(4):
                    I(f'{MF32} {V(SS(t),16)}, {V(KFs(t,0),4)}, {V(QA,4)}, 0')
                    I(f'{MF32} {V(SS(t),16)}, {V(KFs(t,1),4)}, {V(QA+4,4)}, {V(SS(t),16)}')
                for r in range(4): I(f'v_cndmask_b32 v{SS(3)+r}, v{SS(3)+r}, v5, s[56:57]')
                vals = [SS(0) + i for i in range(52)]
                I(f'v_max3_f32 v8, v{vals[0]}, v{vals[1]}, v{vals[2]}')
                k = 3
                while k < 52:
                    if k + 1 < 52: I(f'v_max3_f32 v8, v8, v{vals[k]}, v{vals[k+1]}'); k += 2
                    else: I(f'v_max_f32 v8, v8, v{vals[k]}'); k += 1
                I('v_mov_b32 v9, v8'); I('v_permlane32_swap_b32 v9, v8'); I('v_max_f32 v8, v8, v9', 'true row max')
                for k in range(0, 52, 2):
                    I(f'v_pk_add_f32 {V(vals[k],2)}, {V(vals[k],2)}, v[8:9] op_sel_hi:[1,0] neg_lo:[0,1] neg_hi:[0,1]')
                for k in range(52): I(f'v_exp_f32 v{vals[k]}, v{vals[k]}')
                I(f'v_pk_add_f32 v[10:11], {V(vals[0],2)}, {V(vals[2],2)}')
                for k in range(4, 52, 2): I(f'v_pk_add_f32 v[10:11], v[10:11], {V(vals[k],2)}')
                I('v_add_f32 v10, v10, v11'); I('v_mov_b32 v11, v10'); I('v_permlane32_swap_b32 v11, v10')
                I('v_add_f32 v10, v10, v11'); I('v_rcp_f32 v10, v10')
                PF = {0: SS(0), 1: SS(0) + 4, 2: SS(0) + 8, 3: SS(0) + 12, 4: SS(2), 5: SS(2) + 4, 6: SS(2) + 8}
                for t in range(3):
                    for i in range(8): self.cvt(PF[2 * t] + i, SS(t) + 2 * i)
                self.cvt(PF[6], SS(3)); self.cvt(PF[6] + 1, SS(3) + 2)
                I(f'v_mov_b32 v{PF[6]+2}, 0'); I(f'v_mov_b32 v{PF[6]+3}, 0')
                RA = SS(1)
                for s in range(4): I(f'{MF32} {V(RA,16)}, {V(W2(s),4)}, {V(E(ft,s),4)}, {"0" if s==0 else V(RA,16)}')
                OA = QA
                for u in range(7): I(f'{MF32} {V(OA,16)}, {V(VFs(u),4)}, {V(PF[u],4)}, {"0" if u==0 else V(OA,16)}')
                for k in range(0, 16, 2):
                    I(f'v_pk_fma_f32 {V(OA+k,2)}, {V(OA+k,2)}, v[10:11], {V(RA+k,2)} op_sel_hi:[1,0,1]')
                for i in range(8): self.cvt(OA + i, OA + 2 * i)
                for i in range(8): I(f'v_pk_max_i16 v{OA+i}, v{OA+i}, 0')
                for k in range(2):
                    I(f'buffer_store_dwordx4 {V(OA+4*k,4)}, v{3 if ft==3 else 2}, s[{sO}:{sO+3}], s{60+ft} offen offset:{64*h+32*k}')
        I('s_add_u32 s58, s58, 102400'); I('s_add_u32 s59, s59, 1'); I('s_cmp_lt_u32 s59, 2')
        I('s_nop 15')
        I('s_cbranch_scc1 L_sbatch')
        I('s_endpgm')

    def build(self):
        p = self.p; I = self.I; o = self.opt
        p.raw(HEADER.rstrip())
        p.raw('; @launch grid=(256,1,1) block=(512,1,1) lds=163840')
        p.raw('.amdgcn_target "amdgcn-amd-amdhsa--gfx950"')
        p.raw('.text')
        p.raw(f'.globl {NAME}_kernel')
        p.raw('.p2align 8')
        p.raw(f'.type {NAME}_kernel,@function')
        p.raw(f'{NAME}_kernel:')
        self.prologue()
        self.begin()
        self.rem_proj()
        for bb in range(2):
            self.kv_proj(bb)
            self.qproj(0)
            self.frem_pv(bb)
            for k in range(6):
                self.block(bb, k)
                if o.prio and k in (2, 5) and not (bb == 1 and k == 5):
                    pr = 3 - (2 * bb + (1 if k == 2 else 2))
                    I(f's_setprio {pr}', xrd=[('v', INV[k & 1])])
        self.end()
        I(f'v_cmp_lt_u32 vcc, s{sLIM}, v{BAD}')
        I('s_cmp_lg_u64 vcc, 0')
        I('s_cbranch_scc1 L_slow')
        p.raw('L_end:')
        I('s_endpgm')
        self.slow_path()
        p.raw('.section .rodata,"a"')
        p.raw('.p2align 6')
        p.raw(f'.amdhsa_kernel {NAME}_kernel')
        p.raw('  .amdhsa_next_free_vgpr 256')
        p.raw('  .amdhsa_next_free_sgpr 72')
        p.raw('  .amdhsa_accum_offset 256')
        p.raw('  .amdhsa_group_segment_fixed_size 0')
        p.raw('  .amdhsa_kernarg_size 64')
        p.raw('  .amdhsa_user_sgpr_count 2')
        p.raw('  .amdhsa_user_sgpr_kernarg_segment_ptr 1')
        p.raw('  .amdhsa_system_sgpr_workgroup_id_x 1')
        p.raw('.end_amdhsa_kernel')
        p.finalize()
        return p.text()

if __name__ == '__main__':
    ap = argparse.ArgumentParser()
    ap.add_argument('-o', default=f'cdna_kernels/{NAME}.s')
    ap.add_argument('--nosched', action='store_true')
    ap.add_argument('--window', type=int, default=600)
    ap.add_argument('--ldmod', default='nt')
    ap.add_argument('--stmod', default='nt')
    ap.add_argument('--prio', type=int, default=1)
    ap.add_argument('--codepf', type=int, default=3)
    o = ap.parse_args()
    txt = Gen(o).build()
    open(o.o, 'w').write(txt)
    import collections
    c = collections.Counter(l.split()[0] for l in txt.split('L_slow:')[0].split('\n') if l.startswith('    ') and not l.strip().startswith(';'))
    print('fast path instr counts:', sum(c.values()), {k: v for k, v in c.most_common(14)})
```

```python
import re

REG_RE = re.compile(r'^(-|abs\()?([vas])(\d+)\)?$')
RNG_RE = re.compile(r'^(-|abs\()?([vas])\[(\d+):(\d+)\]\)?$')

def regs_of(tok):
    tok = tok.strip()
    m = REG_RE.match(tok)
    if m:
        return [(m.group(2), int(m.group(3)))]
    m = RNG_RE.match(tok)
    if m:
        return [(m.group(2), i) for i in range(int(m.group(3)), int(m.group(4)) + 1)]
    if tok == 'vcc':
        return [('s', 106), ('s', 107)]
    if tok == 'exec':
        return [('s', 126), ('s', 127)]
    if tok == 'm0':
        return [('s', 124)]
    if tok == 'scc':
        return [('s', 200)]
    return []

TRANS = ('v_exp_f32', 'v_log_f32', 'v_rcp_f32', 'v_rsq_f32', 'v_sqrt_f32', 'v_sin_f32', 'v_cos_f32')

class Ins:
    __slots__ = ('text', 'op', 'cls', 'rd', 'wr', 'srcc', 'ab', 'passes', 'comment', 'lds_dma', 'wide_store', 'extra', 'xrd', 'xwr', 'pw', 'pt')
    def __init__(self, text, comment=None):
        self.text = text
        self.comment = comment
        self.xrd = set(); self.xwr = set()
        self.pw = set(); self.pt = set()
        parts = text.split(None, 1)
        self.op = parts[0]
        rest = parts[1] if len(parts) > 1 else ''
        ops = []
        cur = ''
        depth = 0
        for ch in rest:
            if ch == '[': depth += 1
            if ch == ']': depth -= 1
            if ch == ',' and depth == 0:
                ops.append(cur.strip()); cur = ''
            else:
                cur += ch
        if cur.strip(): ops.append(cur.strip())
        mods = []
        if ops:
            toks = ops[-1].split()
            ops[-1] = toks[0]
            mods = toks[1:]
        op = self.op
        self.rd = set(); self.wr = set(); self.srcc = set(); self.ab = set()
        self.passes = 0; self.lds_dma = False; self.wide_store = False
        self.extra = None
        R = lambda i: regs_of(ops[i]) if i < len(ops) else []
        if op.startswith('v_mfma'):
            self.cls = 'mfma'
            self.passes = 8 if '32x32' in op else 4
            self.wr |= set(R(0)); self.ab |= set(R(1)) | set(R(2)); self.srcc |= set(R(3))
            self.rd |= self.ab | self.srcc
        elif op.startswith('v_cmp'):
            self.cls = 'valu'
            self.wr |= set(R(0))
            for i in range(1, len(ops)): self.rd |= set(R(i))
        elif op.startswith('v_permlane') and 'swap' in op:
            self.cls = 'valu'
            self.wr |= set(R(0)) | set(R(1)); self.rd |= set(R(0)) | set(R(1))
        elif op.startswith('v_'):
            self.cls = 'trans' if op.replace('_e32', '').replace('_e64', '') in TRANS else 'valu'
            self.wr |= set(R(0))
            start = 1
            if op.startswith(('v_add_co', 'v_sub_co', 'v_addc_co', 'v_subb_co')):
                self.wr |= set(R(1)); start = 2
            for i in range(start, len(ops)): self.rd |= set(R(i))
            if op.startswith(('v_fmac', 'v_pk_fmac', 'v_dot2c')): self.rd |= set(R(0))
            if op.startswith('v_cndmask') and len(ops) == 3: self.rd |= set(regs_of('vcc'))
        elif op.startswith('ds_read') or op.startswith('ds_bpermute') or op.startswith('ds_permute') or op.startswith('ds_swizzle'):
            self.cls = 'lds'
            self.wr |= set(R(0))
            for i in range(1, len(ops)): self.rd |= set(R(i))
        elif op.startswith('ds_write'):
            self.cls = 'lds'
            for i in range(len(ops)): self.rd |= set(R(i))
        elif op.startswith('buffer_load') or op.startswith('global_load'):
            self.cls = 'vmem'
            if 'lds' in mods or '_lds_' in op:
                self.lds_dma = True
                for i in range(len(ops)): self.rd |= set(R(i))
                self.rd |= set(regs_of('m0'))
            else:
                self.wr |= set(R(0))
                for i in range(1, len(ops)): self.rd |= set(R(i))
        elif op.startswith('buffer_store') or op.startswith('global_store') or op.startswith('buffer_atomic'):
            self.cls = 'vmem'
            for i in range(len(ops)): self.rd |= set(R(i))
            if 'x4' in op or 'x3' in op:
                self.wide_store = True
                self.extra = set(R(0)) if op.startswith('buffer') else set(R(1))
        elif op.startswith('s_load') or op.startswith('s_memtime') or op.startswith('s_memrealtime') or op.startswith('s_buffer_load'):
            self.cls = 'smem'
            self.wr |= set(R(0))
            for i in range(1, len(ops)): self.rd |= set(R(i))
        elif op in ('s_nop', 's_waitcnt', 's_barrier', 's_endpgm', 's_setprio', 's_sleep') or op.startswith(('s_branch', 's_cbranch')):
            self.cls = 'ctl'
        elif op.startswith('s_cmp') or op.startswith('s_bitcmp'):
            self.cls = 'salu'
            for i in range(len(ops)): self.rd |= set(R(i))
            self.wr |= set(regs_of('scc'))
        elif op.startswith('s_'):
            self.cls = 'salu'
            self.wr |= set(R(0))
            for i in range(1, len(ops)): self.rd |= set(R(i))
            if 'saveexec' in op:
                self.wr |= set(regs_of('exec')); self.rd |= set(regs_of('exec'))
            if op.startswith(('s_cselect', 's_addc', 's_subb')): self.rd |= set(regs_of('scc'))
            if not op.startswith(('s_mov', 's_cselect', 's_getpc', 's_mul')): self.wr |= set(regs_of('scc'))
        else:
            raise ValueError('unknown op ' + text)

    def states(self):
        if self.op == 's_nop':
            return int(self.text.split()[1]) + 1
        return 1

def is_valu(i): return i.cls in ('valu', 'trans')
def vg(s): return set(r for r in s if r[0] in 'va')
def sg(s): return set(r for r in s if r[0] == 's')

def need_states(p, c):
    n = 0
    if p.cls == 'mfma':
        big = p.passes == 8
        if c.cls == 'mfma':
            if p.wr & c.ab: n = max(n, 12 if big else 8)
            if p.wr & c.srcc:
                if p.wr == c.srcc and p.passes == c.passes: pass
                else: n = max(n, 10 if big else 6)
            elif p.wr & c.wr:
                n = max(n, 10 if big else 6)
        elif is_valu(c) or c.cls in ('lds', 'vmem'):
            if p.wr & (c.rd | c.wr): n = max(n, 12 if big else 8)
            if is_valu(c) and (p.srcc & c.wr): n = max(n, 7 if big else 3)
    elif is_valu(p):
        pw_v = vg(p.wr); pw_s = sg(p.wr)
        if c.cls == 'mfma' and (pw_v & c.rd): n = max(n, 2)
        if p.cls == 'trans' and c.cls == 'valu' and (pw_v & c.rd): n = max(n, 1)
        if p.cls == 'trans' and c.cls in ('lds', 'vmem') and (pw_v & c.rd): n = max(n, 1)
        if is_valu(c):
            if c.op.startswith('v_permlane') and (pw_v & c.rd): n = max(n, 2)
            if ('dpp' in c.text or 'row_' in c.text or 'quad_perm' in c.text) and (pw_v & c.rd): n = max(n, 2)
            if c.op.startswith(('v_readlane', 'v_readfirstlane')) and (pw_v & c.rd): n = max(n, 1)
            if pw_s & c.rd: n = max(n, 4 if c.op.startswith(('v_readlane', 'v_writelane')) else 2)
            if ('op_sel' in p.text and not p.op.startswith('v_pk_')) or 'sdwa' in p.text:
                if pw_v & (c.rd | c.wr): n = max(n, 1)
        if c.cls == 'vmem' and (pw_s & c.rd): n = max(n, 5)
        if c.cls in ('salu', 'ctl') and (pw_s & c.rd): n = max(n, 1)
    elif p.cls == 'salu':
        if c.lds_dma and (('s', 124) in p.wr): n = max(n, 1)
    elif p.cls == 'vmem' and p.wide_store:
        if (is_valu(c) or c.cls == 'mfma') and (p.extra & c.wr): n = max(n, 2)
        elif p.extra & c.wr: n = max(n, 1)
    return n

MAXLOOK = 14

class Prog:
    def __init__(self):
        self.items = []
    def I(self, text, comment=None):
        self.items.append(Ins(text, comment))
    def raw(self, text):
        self.items.append(text)
    def label(self, name):
        self.items.append(name + ':')
    def c(self, text):
        self.items.append('    ; ' + text)

    def finalize(self, auto_wait=True):
        out = []
        vm = []
        lg = []
        smem_out = False
        def flush_all():
            pass
        for it in self.items:
            if isinstance(it, tuple) and it[0] == 'PH':
                vm = [set(x) for x in it[1]]
                continue
            if isinstance(it, str):
                if it.endswith(':') and auto_wait:
                    if any(w for w in vm) or any(w for w in lg) or smem_out:
                        out.append(Ins('s_waitcnt vmcnt(0) lgkmcnt(0)', 'auto: label'))
                    vm = []; lg = []; smem_out = False
                out.append(it)
                continue
            ins = it
            if auto_wait:
                touched = ins.rd | ins.wr | ins.pt
                nv = None; nl = None
                for k in range(len(vm) - 1, -1, -1):
                    if vm[k] & touched:
                        nv = len(vm) - 1 - k; break
                for k in range(len(lg) - 1, -1, -1):
                    if lg[k] & touched:
                        nl = len(lg) - 1 - k; break
                if nl is not None and smem_out: nl = 0
                if ins.op.startswith(('s_branch', 's_cbranch')) and ins.comment != 'nowait':
                    if any(w for w in vm): nv = 0
                    if any(w for w in lg): nl = 0
                if nv is not None or nl is not None:
                    t = 's_waitcnt'
                    if nv is not None:
                        nv = min(nv, 63)
                        t += f' vmcnt({nv})'; vm = vm[len(vm) - nv:] if nv else []
                    if nl is not None:
                        nl = min(nl, 15)
                        t += f' lgkmcnt({nl})'; lg = lg[len(lg) - nl:] if nl else []
                        if nl == 0: smem_out = False
                    out.append(Ins(t, 'auto'))
                if ins.op == 's_waitcnt':
                    m = re.search(r'vmcnt\((\d+)\)', ins.text)
                    if m:
                        n = int(m.group(1)); vm = vm[len(vm) - n:] if n and n < len(vm) else ([] if n == 0 else vm)
                    m = re.search(r'lgkmcnt\((\d+)\)', ins.text)
                    if m:
                        n = int(m.group(1)); lg = lg[len(lg) - n:] if n and n < len(lg) else ([] if n == 0 else lg)
                        if n == 0: smem_out = False
                if ins.cls == 'vmem' and ins.comment != 'nocount': vm.append(set(ins.wr) | ins.pw)
                if ins.cls == 'lds': lg.append(set(ins.wr) | ins.pw)
                if ins.cls == 'smem':
                    lg.append(set(ins.wr)); smem_out = True
            out.append(ins)
        res = []
        hist = []
        for it in out:
            if isinstance(it, str):
                if it.endswith(':'):
                    res.append(it)
                    hist.append('LABEL')
                else:
                    res.append(it)
                continue
            dist = 0
            need = 0
            for p in reversed(hist[-MAXLOOK:]):
                if p == 'LABEL':
                    continue
                n = need_states(p, it)
                if n > dist: need = max(need, n - dist)
                dist += p.states()
                if dist >= 13: break
            while need > 0:
                k = min(need, 16)
                nop = Ins(f's_nop {k-1}', 'hazard')
                res.append(nop); hist.append(nop)
                need -= k
            res.append(it); hist.append(it)
        self.final = res
        return res

    def text(self):
        lines = []
        for it in self.final:
            if isinstance(it, str): lines.append(it)
            else:
                lines.append('    ' + it.text + (('    ; ' + it.comment) if it.comment else ''))
        return '\n'.join(lines) + '\n'

def V(a, n=1):
    return f'v{a}' if n == 1 else f'v[{a}:{a+n-1}]'
def S(a, n=1):
    return f's{a}' if n == 1 else f's[{a}:{a+n-1}]'
```

```python
import heapq
from asmlib import Ins, need_states, is_valu

class Node:
    __slots__ = ('ins', 'idx', 'rd', 'wr', 'preds', 'succs', 'npred', 'prio', 'ready', 'pos_end', 't_issue', 'kind', 'wave', 'port', 'pipe')
    def __init__(self, ins_list, idx):
        self.ins = ins_list
        self.idx = idx
        self.rd = set(); self.wr = set()
        for i in ins_list:
            self.rd |= i.rd | getattr(i, 'xrd', set())
            self.wr |= i.wr | getattr(i, 'xwr', set())
        self.preds = []; self.succs = []
        self.prio = 0; self.ready = 0
        wave = 0; port = 0; pipe = 0
        for i in ins_list:
            w, p, m = cost(i)
            wave += w; port += p; pipe += m
        self.wave = wave; self.port = port; self.pipe = pipe
        self.kind = ins_list[0].cls if len(ins_list) == 1 else 'group'

def cost(i):
    if i.cls == 'mfma':
        return (4, 8, int((32 if i.passes == 8 else 16) * PIPE_SCALE))
    if i.cls == 'trans' or i.op.startswith('v_permlane'):
        return (8, 8, 0)
    if i.cls == 'valu':
        return (4, 4, 0)
    if i.cls == 'lds':
        return (12 if i.op.startswith('ds_write') else 6, 0, 0)
    if i.cls == 'vmem':
        return (16, 0, 0)
    return (4, 0, 0)

LDS_LAT = 128
PIPE_SCALE = 1.0
DMA_LAT = 2500

def latency(p, c, regs):
    pi = p.ins[-1]
    if pi.lds_dma and c.ins[0].cls == 'lds':
        return DMA_LAT
    if p.kind == 'mfma':
        ci = c.ins[0]
        if ci.cls == 'mfma' and (regs <= ci.srcc) and not (regs & ci.ab):
            return 4
        return 56 if pi.passes == 8 else 40
    if p.kind == 'lds' and pi.wr:
        if any(r[0] in 'va' for r in regs): return LDS_LAT
        return 4
    if p.kind == 'vmem' and pi.wr:
        if any(r[0] in 'va' for r in regs): return 600
        return 4
    return p.wave

def schedule(items, window=600, verbose=False, mfma_bias=True):
    nodes = [Node(it if isinstance(it, list) else [it], k) for k, it in enumerate(items)]
    lastw = {}; readers = {}
    for n in nodes:
        deps = {}
        for r in n.rd:
            w = lastw.get(r)
            if w is not None: deps.setdefault(w, [set(), False])[0].add(r)
        for r in n.wr:
            w = lastw.get(r)
            if w is not None:
                d = deps.setdefault(w, [set(), False])
                d[0].add(r)
            for q in readers.get(r, ()):
                if q is not n: deps.setdefault(q, [set(), False])
        for pnode, (regs, _) in deps.items():
            lat = latency(pnode, n, regs) if regs else pnode.wave
            n.preds.append((pnode, lat)); pnode.succs.append((n, lat))
        for r in n.rd: readers.setdefault(r, []).append(n)
        for r in n.wr:
            lastw[r] = n; readers[r] = []
    for n in reversed(nodes):
        best = 0
        for s, lat in n.succs:
            best = max(best, lat + s.prio)
        n.prio = best + max(n.wave, n.port, n.pipe // 2)
    for n in nodes:
        n.npred = len(n.preds)
        for i in n.ins:
            for x in i.xrd:
                if x[0] == 'RDY': n.ready = max(n.ready, x[1])
    ready = [n for n in nodes if n.npred == 0]
    now = 0; port_free = 0; pipe_free = 0; pos = 0
    out = []
    done = [False] * len(nodes)
    oldest = 0
    busy_port = 0; busy_pipe = 0
    while ready:
        while oldest < len(nodes) and done[oldest]: oldest += 1
        best = None; bestkey = None
        for n in ready:
            if n.idx > oldest + window: continue
            est = max(now, n.ready)
            if n.port: est = max(est, port_free)
            if n.pipe: est = max(est, pipe_free)
            miss = 0
            for p, _ in n.preds:
                d = pos - p.pos_end
                if d < 13:
                    ns = need_states(p.ins[-1], n.ins[0])
                    if ns > d: miss = max(miss, ns - d)
            if miss: est = max(est, now + 4 * miss)
            key = (est - (2 if (mfma_bias and n.pipe) else 0), -n.prio, n.idx)
            if bestkey is None or key < bestkey:
                best = n; bestkey = key; best_est = est
        n = best
        ready.remove(n)
        done[n.idx] = True
        t = best_est
        n.t_issue = t
        if t > now: pos += (t - now) // 4 if False else 0
        now = t + n.wave
        if n.port: port_free = t + n.port; busy_port += n.port
        if n.pipe: pipe_free = t + n.pipe; busy_pipe += n.pipe
        pos += len(n.ins)
        n.pos_end = pos
        out.extend(n.ins)
        for s, lat in n.succs:
            s.ready = max(s.ready, t + lat)
            s.npred -= 1
            if s.npred == 0: ready.append(s)
    assert len(out) == sum(len(n.ins) for n in nodes)
    if verbose:
        print(f'schedule: {len(out)} instrs, est {now} cycles, port busy {busy_port}, pipe busy {busy_pipe}')
    return out, now
```

```python
import sys, struct, argparse
sys.path.insert(0, 'gen')
from asmlib import *
from sched import schedule

NAME = 'standalone__attention_interact_autoint__recsys'
HEADER = open('cdna_kernels/%s.s.ref' % NAME).read().split('; Override launch')[0]
def f32bits(x): return struct.unpack('<I', struct.pack('<f', x))[0]
CSCALE = f32bits((32.0 ** -0.5) * 1.4426950408889634)
MF32 = 'v_mfma_f32_32x32x16_bf16'
MF32K8 = 'v_mfma_f32_32x32x8_bf16'
MF16 = 'v_mfma_f32_16x16x32_bf16'
MF16K16 = 'v_mfma_f32_16x16x16_bf16'
OOB_G = 0x40000000
OOB_L = 0x40000

ACC = [0, 16, 32, 48]
STR0 = 64; NSTR = 8
QF = [96, 104]
LS = [112, 116]
SR = 120
HOLD = 124
INV = [132, 133]
aKR = 134; BAD = 135
SEL = 136; SEL16 = 140
VREM = lambda bb, h: 142 + 4 * bb + 2 * h
RR = lambda bb: 150 + 2 * bb
aW = 154; aE = 155; vA = 156; vB = 157; aOW = 158; aSR = 159
KF = lambda h, t, ks: 160 + 24 * h + 8 * t + 4 * ks
VF = lambda h, t, sub: 208 + 24 * h + 8 * t + 4 * sub
sE = 24; sO = 28; sWd = 32
sB = [40, 41]
sEL = 42
sT = 43; sT2 = 44
sLO = 46; sHI = 48
sB3 = 50
sVM = 52
sLIM = 54
sLOW = 56
LDS_E = 32768; LDS_SCR = 131072

class Gen:
    def __init__(self, opt):
        self.opt = opt
        self.p = Prog()
        self.reg = None
        self.strn = 0
        self.nstamp = 0
        self.inblk = False
        self.rawdma = False
    def I(self, text, comment=None, xrd=(), xwr=(), pw=(), pt=()):
        ins = Ins(text, comment)
        ins.xrd = set(xrd); ins.xwr = set(xwr); ins.pw = set(pw); ins.pt = set(pt)
        if ins.cls == 'vmem': ins.xwr.add(('X', 'vmem'))
        if self.reg is None: self.p.items.append(ins)
        else: self.reg.append(ins)
        return ins
    def group(self, lst):
        g = []
        for text, kw in lst:
            ins = Ins(text, kw.get('comment'))
            ins.xrd = set(kw.get('xrd', ())); ins.xwr = set(kw.get('xwr', ())); ins.pw = set(kw.get('pw', ())); ins.pt = set(kw.get('pt', ()))
            if ins.cls == 'vmem': ins.xwr.add(('X', 'vmem'))
            g.append(ins)
        if self.reg is None: self.p.items.extend(g)
        else: self.reg.append(g)
    def begin(self): self.reg = []
    def end(self):
        r = self.reg; self.reg = None
        if self.opt.nosched:
            flat = []
            for it in r: flat.extend(it if isinstance(it, list) else [it])
        else:
            flat, est = schedule(r, window=self.opt.window, verbose=True)
        self.p.items.extend(flat)
    def stamp(self, anchor=None, final=False):
        if not self.opt.stamps: return
        if self.opt.stamps == 4 and not (self.nstamp == 0 or final): return
        if self.opt.stamps == 4 and final: self.nstamp = 19
        if self.opt.stamps == 3 and self.reg is not None and self.nstamp >= 18: return
        k = self.nstamp; self.nstamp += 1
        assert k < 20
        if self.opt.stamps == 2:
            if k % 2 == 0:
                self.group([(f's_memtime s[{60+2*k}:{61+2*k}]', dict(xrd=([('v', anchor)] if anchor is not None else []), xwr=[('X', 'stamp')])),
                            (f's_memrealtime s[{62+2*k}:{63+2*k}]', {})])
            return
        self.I(f's_memtime s[{60+2*k}:{61+2*k}]', xrd=([('v', anchor)] if anchor is not None else []), xwr=[('X', 'stamp')])
    def pstamp(self):
        if self.opt.stamps == 3: self.stamp()
    def slot(self):
        r = STR0 + 4 * (self.strn % NSTR); self.strn += 1
        return r
    def wread(self, m, h, s):
        r = self.slot()
        if self.opt.x_nolds and self.inblk: return r
        self.I(f'ds_read_b128 {V(r,4)}, v{aW} offset:{((m*2+h)*4+s)*1024}')
        return r
    def eread(self, t, s, dst=None):
        r = self.slot() if dst is None else dst
        if self.opt.x_nolds and self.inblk: return r
        self.I(f'ds_read_b128 {V(r,4)}, v{aE} offset:{t*4096+s*256}', xrd=[('L', f'E{t}'), ('RDY', 1000 + 500 * t)], pt=[('L', f'E{t}')], pw=[('LR', f'E{t}')])
        return r
    def dma(self, bb, t):
        ld = self.opt.ldmod
        lst = [(f's_add_u32 m0, s{sEL}, {t*4096}', {}), (f's_add_u32 s{sT}, s{sB[bb]}, {t*4096}', {})]
        for g in range(4):
            lst.append((f'buffer_load_dwordx4 v{vA if g < 2 else vB}, s[{sE}:{sE+3}], s{sT} offen offset:{g*1024} {ld} lds',
                        dict(xwr=[('L', f'E{t}')], pw=[('L', f'E{t}')], pt=[('LR', f'E{t}')], comment=('nocount' if self.rawdma else None))))
        self.group(lst)
    def cvt(self, dst, a, b=None):
        self.I(f'v_cvt_pk_bf16_f32 v{dst}, v{a}, v{a+1 if b is None else b}')

    def wprep_loads(self, pair, base):
        I = self.I
        I(f's_lshr_b32 s21, s{pair}, 1', 'm'); I(f's_and_b32 s22, s{pair}, 1', 'h')
        I('s_mov_b32 s32, s6'); I('s_mov_b32 s33, s7')
        I('s_cmp_eq_u32 s21, 1'); I('s_cselect_b32 s32, s8, s32'); I('s_cselect_b32 s33, s9, s33')
        I('s_cmp_eq_u32 s21, 2'); I('s_cselect_b32 s32, s10, s32'); I('s_cselect_b32 s33, s11, s33')
        I('s_cmp_eq_u32 s21, 3'); I('s_cselect_b32 s32, s12, s32'); I('s_cselect_b32 s33, s13, s33')
        I('s_cselect_b32 s36, 128, 64', 'row stride'); I('s_cselect_b32 s37, 64, 4096', 'head offset unit')
        I('s_mov_b32 s34, 8192'); I('s_mov_b32 s35, 0x00020000')
        I('s_mul_i32 s37, s37, s22')
        I('s_lshl_b32 s38, s36, 3')
        I('v_mul_lo_u32 v4, v7, s38')
        I('v_lshl_add_u32 v4, v6, 3, v4')
        for j in range(8):
            I(f'buffer_load_dwordx2 v[{base+2*j}:{base+1+2*j}], v4, s[32:35], s37 offen', 'nocount')
            if j < 7: I('s_add_u32 s37, s37, s36')

    def wprep_xform(self, base, scale, ldsoff, younger):
        I = self.I
        for j in range(8):
            I(f's_waitcnt vmcnt({younger + 7 - j})')
            for b in range(4):
                src = base + 2 * j + (b >> 1); t = 48 + 4 * j + b
                if b & 1: I(f'v_and_b32 v{t}, 0xffff0000, v{src}')
                else: I(f'v_lshlrev_b32 v{t}, 16, v{src}')
                I(f'v_mul_f32 v{t}, s{scale}, v{t}')
        for b in range(4):
            for i in range(4):
                I(f'v_cvt_pk_bf16_f32 v{80+4*b+i}, v{48+4*(2*i)+b}, v{48+4*(2*i+1)+b}')
            I(f'ds_write_b128 v5, v[{80+4*b}:{83+4*b}] offset:{ldsoff+16*b}')

    def prologue(self):
        I = self.I; p = self.p; o = self.opt
        I('s_cmp_ge_u32 s2, 256')
        I('s_cbranch_scc1 L_end')
        self.stamp()
        if o.stamps: I('s_memrealtime s[100:101]'); I('s_load_dwordx2 s[18:19], s[0:1], 56')
        I('s_load_dwordx4 s[4:7], s[0:1], 0')
        I('s_load_dwordx4 s[8:11], s[0:1], 16')
        I('s_load_dwordx4 s[12:15], s[0:1], 32')
        if o.prio: I('s_setprio 3')
        I('v_lshrrev_b32 v2, 6, v0')
        I('v_and_b32 v1, 63, v0', 'lane')
        I('v_readfirstlane_b32 s20, v2', 'wave id')
        I('s_getpc_b64 s[16:17]')
        I(f'v_lshlrev_b32 v{aW}, 4, v1', 'lane*16')
        I('v_and_b32 v6, 7, v1'); I('v_lshrrev_b32 v7, 3, v1')
        I(f'v_lshlrev_b32 v{vA}, 7, v6')
        I(f'v_xor_b32 v8, 1, v7')
        I(f'v_lshl_add_u32 v{vB}, v8, 4, v{vA}')
        I(f'v_lshl_add_u32 v{vA}, v7, 4, v{vA}')
        I('v_and_b32 v8, 3, v1', 'fq'); I('v_bfe_u32 v9, v1, 2, 1', 'ih/gh'); I('v_bfe_u32 v10, v1, 3, 1', 'bit3')
        I('v_bfe_u32 v11, v1, 4, 1', 'q&1'); I('v_lshrrev_b32 v12, 5, v1', 'q>>1')
        I('v_mul_u32_u24 v13, 102400, v10')
        I('v_lshl_add_u32 v13, v8, 7, v13')
        I('v_lshl_add_u32 v13, v12, 4, v13')
        I('v_add_u32 v13, 12288, v13')
        I(f'v_mov_b32 v14, 0x{OOB_G:x}')
        I('v_cmp_eq_u32 vcc, v9, v11')
        I('v_cndmask_b32 v13, v14, v13, vcc', 'remainder-row voffset')
        I(f's_lshl_b32 s{sB[0]}, s2, 4'); I(f's_add_u32 s{sB[0]}, s{sB[0]}, s20'); I(f's_mul_i32 s{sB[0]}, s{sB[0]}, 12800')
        I(f's_add_u32 s{sB[1]}, s{sB[0]}, 102400')
        I(f's_mul_i32 s{sEL}, s20, 12288'); I(f's_add_u32 s{sEL}, s{sEL}, {LDS_E}')
        I('s_cmp_ge_u32 s20, 4')
        I('s_cbranch_scc1 L_wld', 'nowait')
        I('v_lshlrev_b32 v100, 4, v0', 'tid*16 : 4 KB per pass')
        I('v_mov_b32 v101, s17')
        I('v_add_co_u32 v100, vcc, s16, v100')
        I('v_addc_co_u32 v101, vcc, 0, v101, vcc')
        for k in range(o.codepf):
            if k:
                I('v_add_co_u32 v100, vcc, 0x1000, v100')
                I('v_addc_co_u32 v101, vcc, 0, v101, vcc')
            I(f'global_load_dwordx4 v[104:107], v[100:101], off', 'nocount')
        I('s_waitcnt lgkmcnt(0)')
        I('s_branch L_wlddone', 'nowait')
        p.raw('L_wld:   ; waves 4-7: weight loads, two fragment groups each')
        I('s_waitcnt lgkmcnt(0)')
        I('s_sub_u32 s23, s20, 4'); I('s_lshl_b32 s23, s23, 1', 'pair index 0')
        self.wprep_loads(23, 16)
        I('s_add_u32 s23, s23, 1')
        self.wprep_loads(23, 32)
        p.raw('L_wlddone:   ;')
        self.stamp()
        for (d, src, n) in ((sE, 4, 52428800), (sO, 14, 52428800)):
            I(f's_mov_b32 s{d}, s{src}'); I(f's_mov_b32 s{d+1}, s{src+1}'); I(f's_mov_b32 s{d+2}, {n}'); I(f's_mov_b32 s{d+3}, 0x00020000')
        for s in range(4):
            I(f'buffer_load_dwordx4 {V(208+4*s,4)}, v13, s[{sE}:{sE+3}], s{sB[0]} offen offset:{32*s}', 'nocount')
        self.pstamp()
        if o.bar1: I('s_barrier')
        self.pstamp()
        I('s_cmp_ge_u32 s20, 4')
        I('s_cbranch_scc1 L_nodma0', 'nowait')
        self.rawdma = True
        for t in range(3): self.dma(0, t)
        p.raw('L_nodma0:   ;')
        self.pstamp()
        I('s_lshl_b32 s45, s20, 12'); I(f's_add_u32 s45, s45, {LDS_SCR}', 'scratch base')
        I('v_bfe_u32 v14, v1, 3, 2', 'g')
        I('v_xor_b32 v15, v12, v11', 'hf ^ (g>>1)   (g>>1 = lane bit4)')
        I(f'v_lshlrev_b32 v{aE}, 10, v14')
        I(f'v_lshl_add_u32 v{aE}, v15, 7, v{aE}')
        I(f'v_lshl_add_u32 v{aE}, v6, 4, v{aE}')
        I(f'v_add_u32 v{aE}, s{sEL}, v{aE}')
        I(f'v_lshlrev_b32 v{aOW}, 10, v10')
        I(f'v_lshl_add_u32 v{aOW}, v12, 7, v{aOW}')
        I(f'v_lshl_add_u32 v{aOW}, v6, 4, v{aOW}')
        I(f'v_add_u32 v{aOW}, s45, v{aOW}')
        I(f'v_add_u32 v{aSR}, s45, v{aW}')
        I(f'v_lshlrev_b32 v{aKR}, 5, v8')
        I(f'v_lshl_add_u32 v{aKR}, v12, 4, v{aKR}')
        I(f'v_add_u32 v{aKR}, s45, v{aKR}')
        I('v_xor_b32 v14, v9, v11')
        I('v_or_b32 v14, v14, v10')
        I(f'v_mov_b32 v15, 0x{OOB_L:x}')
        I('v_cmp_eq_u32 vcc, 0, v14')
        I(f'v_cndmask_b32 v{aKR}, v15, v{aKR}, vcc')
        I('v_mov_b32 v15, 0x3f803f80')
        I('v_cmp_eq_u32 vcc, v9, v11')
        for k in range(4): I(f'v_cndmask_b32 v{SEL+k}, 0, v15, vcc')
        I('v_cmp_eq_u32 vcc, 0, v12')
        for k in range(2): I(f'v_cndmask_b32 v{SEL16+k}, 0, v{SEL}, vcc')
        I(f'v_mov_b32 v{BAD}, 0')
        I(f's_mov_b32 s{sLO}, 0x0000ffff'); I(f's_mov_b32 s{sLO+1}, 0x0000ffff')
        I(f's_mov_b32 s{sHI}, 0xffff0000'); I(f's_mov_b32 s{sHI+1}, 0xffff0000')
        I(f's_mov_b32 s{sB3}, 0xff00ff00'); I(f's_mov_b32 s{sB3+1}, 0xff00ff00')
        I(f's_mov_b32 s{sVM}, 0x00000f0f'); I(f's_mov_b32 s{sVM+1}, 0')
        I(f's_mov_b32 s{sLIM}, 0x5f800000', '2^64')
        I(f's_mov_b32 s{sLOW}, -1'); I(f's_mov_b32 s{sLOW+1}, 0')
        I('v_lshlrev_b32 v3, 9, v10')
        I('v_lshl_add_u32 v3, v9, 7, v3')
        I('v_lshl_add_u32 v3, v8, 5, v3')
        I('v_lshl_add_u32 v3, v11, 4, v3')
        I('v_lshl_add_u32 v3, v12, 3, v3')
        I(f'v_add_u32 v{INV[0]}, s45, v3', 'remainder chunk write address')
        I('s_cmp_lt_u32 s20, 4')
        I('s_cbranch_scc1 L_noxf', 'nowait')
        I('v_and_b32 v5, 4, v6'); I('v_and_b32 v14, 1, v6'); I('v_lshl_or_b32 v5, v14, 1, v5')
        I('v_bfe_u32 v14, v6, 1, 1'); I('v_or_b32 v5, v5, v14')
        I('v_lshlrev_b32 v5, 6, v5'); I('v_lshl_add_u32 v5, v7, 9, v5')
        I('s_sub_u32 s38, s20, 4'); I('s_lshl_b32 s38, s38, 13'); I('v_add_u32 v5, s38, v5')
        I('s_cmp_eq_u32 s20, 4'); I(f's_cselect_b32 s39, 0x{CSCALE:08x}, 1.0', 'scale*log2e folded into Wq')
        self.wprep_xform(16, 39, 0, 12)
        self.wprep_xform(32, 39, 4096, 4)
        I('s_waitcnt lgkmcnt(0)')
        p.raw('L_noxf:   ;')
        self.pstamp()
        I('s_barrier')
        self.stamp()
        I('s_cmp_lt_u32 s20, 4')
        I('s_cbranch_scc1 L_nodma1', 'nowait')
        if o.x_half: I('s_endpgm')
        for t in range(3): self.dma(0, t)
        self.rawdma = False
        p.raw('L_nodma1:   ;')
        self.pstamp()
        ph = [[('v', 104 + i) for i in range(4)]]
        ph += [[('v', 208 + 4 * s + i) for i in range(4)] for s in range(4)]
        ph += [[('L', f'E{t}')] for t in range(3) for g in range(4)]
        p.items.append(('PH', ph))

    def rem_proj(self):
        I = self.I
        ER = lambda s: 208 + 4 * s
        D = lambda m, h: 160 + 4 * (2 * m + h)
        for m in (1, 0, 2, 3):
            for h in range(2):
                d = D(m, h)
                for s in range(4):
                    w = self.wread(m, h, s)
                    c = '0' if s == 0 else V(d, 4)
                    if m == 2: I(f'{MF16} {V(d,4)}, {V(ER(s),4)}, {V(w,4)}, {c}')
                    else: I(f'{MF16} {V(d,4)}, {V(w,4)}, {V(ER(s),4)}, {c}')
        for m in (1, 0):
            for h in range(2):
                d = D(m, h)
                self.cvt(d, d); self.cvt(d + 1, d + 2)
                I(f'ds_write_b64 v{INV[0]}, {V(d,2)} offset:{h*256 + (1024 if m == 0 else 0)}', xwr=[('L', 'REM')])
        for h in range(2):
            d = D(2, h)
            self.cvt(VREM(0, h), d); self.cvt(VREM(0, h) + 1, d + 2)
            for k in range(2):
                I(f'v_mov_b32 v{VREM(1,h)+k}, 0')
                I(f'v_permlane32_swap_b32 v{VREM(0,h)+k}, v{VREM(1,h)+k}')
        for h in range(2):
            d = D(3, h)
            self.cvt(RR(h), d); self.cvt(RR(h) + 1, d + 2)
        for k in range(2):
            t = D(3, 0) + k
            I(f'v_mov_b32 v{t}, v{RR(0)+k}')
            I(f'v_mov_b32_dpp v{RR(0)+k}, v{RR(1)+k} row_ror:8 row_mask:0xf bank_mask:0xc', xrd=[('v', RR(0)+k)])
            I(f'v_mov_b32_dpp v{RR(1)+k}, v{t} row_ror:8 row_mask:0xf bank_mask:0x3', xrd=[('v', RR(1)+k)])

    def kv_proj(self, bb):
        I = self.I
        EB = lambda t, s: (ACC[2] + 16 * t + 4 * s) if t < 2 else (QF[0] + 4 * s)
        self.frem_addr()
        for t in range(3):
            for s in range(4): self.eread(t, s, EB(t, s))
        n = 0
        for (m, h) in ((1, 0), (1, 1), (2, 0), (2, 1)):
            w = [self.wread(m, h, s) for s in range(4)]
            for t in range(3):
                acc = ACC[n & 1]; n += 1
                for s in range(4):
                    c = '0' if s == 0 else V(acc, 16)
                    if m == 1: I(f'{MF32} {V(acc,16)}, {V(w[s],4)}, {V(EB(t,s),4)}, {c}')
                    else: I(f'{MF32} {V(acc,16)}, {V(EB(t,s),4)}, {V(w[s],4)}, {c}')
                dst = KF(h, t, 0) if m == 1 else VF(h, t, 0)
                for i in range(8): self.cvt(dst + i, acc + 2 * i)
                if (m, h, t) in ((1, 0, 0), (2, 1, 2)): self.stamp(dst + 7)
            if (m, h) == (1, 1): self.frem_s(bb)

    def krem_read(self, bb, h, ks, isq=False, addr=None):
        r = self.slot()
        off = bb * 512 + h * 256 + ks * 128 + (1024 if isq else 0)
        if self.opt.x_nolds and self.inblk: return r
        self.I(f'ds_read_b128 {V(r,4)}, v{aKR if addr is None else addr} offset:{off}', xrd=[('L', 'REM')])
        return r

    def frem_addr(self):
        I = self.I
        T = 248
        I(f'v_bfe_u32 v{T}, v{aW}, 4, 2', 'fq'); I(f'v_bfe_u32 v{T+1}, v{aW}, 6, 1', 'bit2'); I(f'v_bfe_u32 v{T+2}, v{aW}, 7, 1', 'bit3')
        I(f'v_bfe_u32 v{T+3}, v{aW}, 8, 1', 'q&1'); I(f'v_lshrrev_b32 v{T+4}, 9, v{aW}', 'q>>1')
        I(f'v_sub_u32 v{T+5}, v{aSR}, v{aW}', 'scratch base')
        I(f'v_lshl_add_u32 v{T+5}, v{T}, 5, v{T+5}', '+fq*32')
        I(f'v_lshl_add_u32 v{T+6}, v{T+4}, 4, v{T+5}', '+(q>>1)*16')
        I(f'v_mov_b32 v{T+7}, 0x{OOB_L:x}')
        I(f'v_cmp_eq_u32 vcc, v{T+1}, v{T+3}')
        I(f'v_cndmask_b32 v{T+6}, v{T+7}, v{T+6}, vcc', 'valid iff (q&1)==bit2')
        I(f'v_cndmask_b32 v{SR}, v{T+7}, v{T+6}, s[{sB3}:{sB3+1}]', 'Q rem head1 read addr')
        I(f'v_lshl_add_u32 v{INV[0]}, v{T+2}, 7, v{T+6}', 'P read addr (+hd*128)')
        I(f'v_lshlrev_b32 v{T+7}, 4, v{T+3}')
        I(f'v_lshl_add_u32 v{T+7}, v{T+4}, 3, v{T+7}', '(q&1)*16 + (q>>1)*8')
        I(f'v_lshl_add_u32 v{SR+1}, v{T+1}, 8, v{T+5}')
        I(f'v_lshl_add_u32 v{SR+1}, v{T+2}, 7, v{SR+1}')
        I(f'v_add_u32 v{SR+1}, v{SR+1}, v{T+7}', 'P write addr')
        I(f'v_lshl_add_u32 v{T+7}, v{T}, 7, v{T+7}')
        I(f'v_lshl_add_u32 v{T+7}, v{T+2}, 6, v{T+7}')
        I(f'v_lshl_add_u32 v{INV[1]}, v{T+1}, 5, v{T+7}', 'out offset')
        I(f'v_mov_b32 v{SR+2}, 0xff800000')

    def frem_s(self, bb):
        I = self.I
        D = lambda t: (HOLD, HOLD + 4, LS[0], LS[1])[t]
        first = [True] * 4
        for h in range(2):
            for ks in range(2):
                qb = self.krem_read(bb, h, ks, isq=True, addr=(aKR if h == 0 else SR))
                ka = self.krem_read(bb, h, ks)
                for t in range(4):
                    a = KF(h, t, ks) if t < 3 else ka
                    c = '0' if first[t] else V(D(t), 4); first[t] = False
                    I(f'{MF16} {V(D(t),4)}, {V(a,4)}, {V(qb,4)}, {c}')
        for r in range(4):
            I(f'v_cndmask_b32 v{D(3)+r}, v{SR+2}, v{D(3)+r}, s[{sVM}:{sVM+1}]')
        for t in range(4):
            for r in range(4): I(f'v_exp_f32 v{D(t)+r}, v{D(t)+r}')
            self.cvt(D(t), D(t)); self.cvt(D(t) + 1, D(t) + 2)
            I(f'ds_write_b64 v{SR+1}, {V(D(t),2)} offset:{2048 + t*512}', xwr=[('L', 'STG')])

    def frem_pv(self, bb):
        I = self.I
        DH = [HOLD, HOLD + 4]
        ONE = LS[0]; L = LS[1]
        for k in range(4): I(f'v_mov_b32 v{ONE+k}, 0x3f803f80')
        for u in range(7):
            r = self.slot()
            t, sub = u >> 1, u & 1
            if u < 6:
                I(f'ds_read_b128 {V(r,4)}, v{INV[0]} offset:{2048+u*256}', xrd=[('L', 'STG')])
                I(f'{MF16} {V(L,4)}, {V(ONE,4)}, {V(r,4)}, {"0" if u == 0 else V(L,4)}')
                for h in range(2):
                    I(f'{MF16} {V(DH[h],4)}, {V(VF(h,t,sub),4)}, {V(r,4)}, {"0" if u == 0 else V(DH[h],4)}')
            else:
                I(f'ds_read_b64 {V(r,2)}, v{INV[0]} offset:{2048+u*256}', xrd=[('L', 'STG')])
                I(f'{MF16K16} {V(L,4)}, {V(ONE,2)}, {V(r,2)}, {V(L,4)}')
                for h in range(2):
                    I(f'{MF16K16} {V(DH[h],4)}, {V(VREM(bb,h),2)}, {V(r,2)}, {V(DH[h],4)}')
        I(f'v_rcp_f32 v{L+1}, v{L}')
        I(f'v_max3_u32 v{BAD}, v{BAD}, v{L}, v{L+1}')
        for r in range(4):
            I(f'v_cndmask_b32 v{DH[0]+r}, v{DH[0]+r}, v{DH[1]+r}, s[{sB3}:{sB3+1}]')
            if r & 1: I(f'v_and_b32 v{DH[1]+r}, 0xffff0000, v{RR(bb)+(r>>1)}')
            else: I(f'v_lshlrev_b32 v{DH[1]+r}, 16, v{RR(bb)+(r>>1)}')
            I(f'v_fma_f32 v{DH[0]+r}, v{DH[0]+r}, v{L+1}, v{DH[1]+r}')
        self.cvt(DH[0], DH[0]); self.cvt(DH[0] + 1, DH[0] + 2)
        for k in range(2): I(f'v_pk_max_i16 v{DH[0]+k}, v{DH[0]+k}, 0')
        self.group([(f's_add_u32 s{sT2}, s{sB[bb]}, 12288', {}),
                    (f'buffer_store_dwordx2 {V(DH[0],2)}, v{INV[1]}, s[{sO}:{sO+3}], s{sT2} offen {self.opt.stmod}', {})])

    def qproj(self, k):
        ft, h = k >> 1, k & 1
        X = ACC[2 + (k & 1)]
        for s in range(4):
            w = self.wread(0, h, s); e = self.eread(ft, s)
            self.I(f'{MF32} {V(X,16)}, {V(w,4)}, {V(e,4)}, {"0" if s == 0 else V(X,16)}')
        for i in range(8): self.cvt(QF[k & 1] + i, X + 2 * i)

    def block(self, bb, k):
        I = self.I
        ft, h = k >> 1, k & 1
        O = ACC[0]; SA = ACC[1]; X = ACC[2 + (k & 1)]
        Q = QF[k & 1]; L = LS[k & 1]; inv = INV[k & 1]
        def smm(t, dst):
            I(f'{MF32} {V(dst,16)}, {V(KF(h,t,0),4)}, {V(Q,4)}, 0')
            I(f'{MF32} {V(dst,16)}, {V(KF(h,t,1),4)}, {V(Q+4,4)}, {V(dst,16)}')
        vs = k in self.opt.vsum
        self.firstadd = True
        def vadd(regs):
            for n, r in enumerate(regs):
                if self.firstadd and n < 2: I(f'v_mov_b32 v{L+n}, v{r}') if False else None
            return
        def soft(buf):
            for i in range(8):
                if not self.opt.x_noexp:
                    I(f'v_exp_f32 v{buf+2*i}, v{buf+2*i}')
                    I(f'v_exp_f32 v{buf+2*i+1}, v{buf+2*i+1}')
                if vs:
                    if self.firstadd:
                        I(f'v_add_f32 v{L}, v{buf+2*i}, v{buf+2*i+1}'); self.firstadd = False
                    else:
                        I(f'v_add_f32 v{L+1}, v{buf+2*i}, v{buf+2*i+1}')
                        I(f'v_add_f32 v{L}, v{L}, v{L+1}')
                self.cvt(buf + i, buf + 2 * i)
        def pv(t, buf):
            for sub in range(2):
                first = (t == 0 and sub == 0)
                I(f'{MF32} {V(O,16)}, {V(VF(h,t,sub),4)}, {V(buf+4*sub,4)}, {"0" if first else V(O,16)}')
                if not vs and (not self.opt.x_nosum or first): I(f'{MF16} {V(L,4)}, {V(SEL,4)}, {V(buf+4*sub,4)}, {"0" if first else V(L,4)}')
        smm(0, SA); smm(1, X)
        for ks in range(2):
            ka = self.krem_read(bb, h, ks)
            I(f'{MF16} {V(SR,4)}, {V(ka,4)}, {V(Q+4*ks,4)}, {"0" if ks == 0 else V(SR,4)}')
        def rproj(dst):
            for s in range(4):
                w = self.wread(3, h, s); e = self.eread(ft, s)
                I(f'{MF32} {V(dst,16)}, {V(w,4)}, {V(e,4)}, {"0" if s == 0 else V(dst,16)}')
            if h == 1 and bb == 0: self.dma(1, ft)
        R = X
        if k == 5:
            R = ACC[2 + ((k + 1) & 1)]
            rproj(R)
        soft(SA); pv(0, SA)
        if k < 5: self.qproj(k + 1)
        soft(X)
        smm(2, SA)
        pv(1, X)
        for r in range(4): I(f'v_exp_f32 v{SR+r}, v{SR+r}')
        if vs:
            I(f'v_add_f32 v{L+1}, v{SR}, v{SR+1}'); I(f'v_add_f32 v{L+2}, v{SR+2}, v{SR+3}'); I(f'v_add_f32 v{L+1}, v{L+1}, v{L+2}')
            I(f'v_cndmask_b32 v{L+1}, v{L+1}, 0, s[56:57]') if False else I(f'v_cndmask_b32 v{L+1}, 0, v{L+1}, s[{sLOW}:{sLOW+1}]')
            I(f'v_add_f32 v{L}, v{L}, v{L+1}')
        self.cvt(SR, SR); self.cvt(SR + 1, SR + 2)
        I(f'{MF32K8} {V(O,16)}, {V(VREM(bb,h),2)}, {V(SR,2)}, {V(O,16)}')
        if not vs: I(f'{MF16K16} {V(L,4)}, {V(SEL16,2)}, {V(SR,2)}, {V(L,4)}')
        if k < 5: rproj(X)
        soft(SA); pv(2, SA)
        if vs:
            I(f'v_mov_b32 v{L+1}, v{L}'); I(f'v_permlane32_swap_b32 v{L+1}, v{L}'); I(f'v_add_f32 v{L}, v{L}, v{L+1}')
        I(f'v_rcp_f32 v{inv}, v{L}')
        I(f'v_max3_u32 v{BAD}, v{BAD}, v{L}, v{inv}')
        X = R
        for r in range(16): I(f'v_fma_f32 v{X+r}, v{O+r}, v{inv}, v{X+r}')
        dst = HOLD if h == 0 else X
        for i in range(8):
            self.cvt(dst + i, X + 2 * i)
            I(f'v_pk_max_i16 v{dst+i}, v{dst+i}, 0')
        if h == 1 and not self.opt.x_nostore:
            for rr in range(2):
                lst = [(f's_mov_b64 exec, s[{(sLO, sHI)[rr]}:{(sLO, sHI)[rr]+1}]', {})]
                for hd in range(2):
                    for a1 in range(2):
                        src = (HOLD if hd == 0 else X) + 4 * a1
                        lst.append((f'ds_write_b128 v{aOW}, {V(src,4)} offset:{2048 + hd*512 + a1*256}', dict(xwr=[('L', 'STG')])))
                lst.append(('s_mov_b64 exec, -1', {}))
                self.group(lst)
                for kk in range(2):
                    r = self.slot()
                    I(f'ds_read_b128 {V(r,4)}, v{aSR} offset:{2048 + kk*1024}', xrd=[('L', 'STG')])
                    self.group([(f's_add_u32 s{sT2}, s{sB[bb]}, {ft*4096}', {}),
                                (f'buffer_store_dwordx4 {V(r,4)}, v{vA}, s[{sO}:{sO+3}], s{sT2} offen offset:{rr*2048+kk*1024} {self.opt.stmod}', {})])

    def slow_path(self):
        I = self.I; p = self.p
        p.label('L_slow')
        I('s_waitcnt vmcnt(0) lgkmcnt(0)')
        I('s_mov_b64 exec, -1')
        I('v_mbcnt_lo_u32_b32 v1, -1, 0'); I('v_mbcnt_hi_u32_b32 v1, -1, v1')
        I('v_and_b32 v6, 31, v1'); I('v_lshrrev_b32 v7, 5, v1')
        I('v_lshlrev_b32 v2, 7, v6'); I('v_lshl_add_u32 v2, v7, 4, v2')
        I(f'v_mov_b32 v3, 0x{OOB_G:x}'); I('v_cmp_gt_u32 vcc, 4, v6'); I('v_cndmask_b32 v3, v3, v2, vcc')
        I('v_lshlrev_b32 v4, 4, v1'); I('v_mov_b32 v5, 0xff800000')
        I('s_mov_b32 s56, 0'); I('s_mov_b32 s57, -1')
        I(f's_mov_b32 s58, s{sB[0]}'); I('s_mov_b32 s59, 0')
        p.label('L_sbatch')
        E = lambda t, s: 16 + 16 * t + 4 * s
        KFs = lambda t, ks: 80 + 8 * t + 4 * ks
        VFs = lambda u: 112 + 4 * u
        W1 = lambda s: 140 + 4 * s
        W2 = lambda s: 156 + 4 * s
        QA = 172
        SS = lambda t: 188 + 16 * t
        for t in range(4): I(f's_add_u32 s{60+t}, s58, {4096*t}')
        for t in range(4):
            for s in range(4):
                I(f'buffer_load_dwordx4 {V(E(t,s),4)}, v{3 if t==3 else 2}, s[{sE}:{sE+3}], s{60+t} offen offset:{32*s}')
        def wread(dst, m, h):
            for s in range(4): I(f'ds_read_b128 {V(dst(s),4)}, v4 offset:{((m*2+h)*4+s)*1024}')
        for h in range(2):
            wread(W1, 1, h); wread(W2, 2, h)
            for t in range(4):
                acc = SS(t)
                for s in range(4): I(f'{MF32} {V(acc,16)}, {V(W1(s),4)}, {V(E(t,s),4)}, {"0" if s==0 else V(acc,16)}')
            for t in range(4):
                for i in range(8): self.cvt(KFs(t, 0) + i, SS(t) + 2 * i)
            for t in range(4):
                acc = SS(t)
                for s in range(4): I(f'{MF32} {V(acc,16)}, {V(E(t,s),4)}, {V(W2(s),4)}, {"0" if s==0 else V(acc,16)}')
            for t in range(4):
                for i in range(8 if t < 3 else 4): self.cvt(VFs(2 * t) + i, SS(t) + 2 * i)
            wread(W1, 0, h); wread(W2, 3, h)
            for ft in range(4):
                for s in range(4): I(f'{MF32} {V(QA,16)}, {V(W1(s),4)}, {V(E(ft,s),4)}, {"0" if s==0 else V(QA,16)}')
                for i in range(8): self.cvt(QA + i, QA + 2 * i)
                for t in range(4):
                    I(f'{MF32} {V(SS(t),16)}, {V(KFs(t,0),4)}, {V(QA,4)}, 0')
                    I(f'{MF32} {V(SS(t),16)}, {V(KFs(t,1),4)}, {V(QA+4,4)}, {V(SS(t),16)}')
                for r in range(4): I(f'v_cndmask_b32 v{SS(3)+r}, v{SS(3)+r}, v5, s[56:57]')
                vals = [SS(0) + i for i in range(52)]
                I(f'v_max3_f32 v8, v{vals[0]}, v{vals[1]}, v{vals[2]}')
                k = 3
                while k < 52:
                    if k + 1 < 52: I(f'v_max3_f32 v8, v8, v{vals[k]}, v{vals[k+1]}'); k += 2
                    else: I(f'v_max_f32 v8, v8, v{vals[k]}'); k += 1
                I('v_mov_b32 v9, v8'); I('v_permlane32_swap_b32 v9, v8'); I('v_max_f32 v8, v8, v9', 'true row max')
                for k in range(0, 52, 2):
                    I(f'v_pk_add_f32 {V(vals[k],2)}, {V(vals[k],2)}, v[8:9] op_sel_hi:[1,0] neg_lo:[0,1] neg_hi:[0,1]')
                for k in range(52): I(f'v_exp_f32 v{vals[k]}, v{vals[k]}')
                I(f'v_pk_add_f32 v[10:11], {V(vals[0],2)}, {V(vals[2],2)}')
                for k in range(4, 52, 2): I(f'v_pk_add_f32 v[10:11], v[10:11], {V(vals[k],2)}')
                I('v_add_f32 v10, v10, v11'); I('v_mov_b32 v11, v10'); I('v_permlane32_swap_b32 v11, v10')
                I('v_add_f32 v10, v10, v11'); I('v_rcp_f32 v10, v10')
                PF = {0: SS(0), 1: SS(0) + 4, 2: SS(0) + 8, 3: SS(0) + 12, 4: SS(2), 5: SS(2) + 4, 6: SS(2) + 8}
                for t in range(3):
                    for i in range(8): self.cvt(PF[2 * t] + i, SS(t) + 2 * i)
                self.cvt(PF[6], SS(3)); self.cvt(PF[6] + 1, SS(3) + 2)
                I(f'v_mov_b32 v{PF[6]+2}, 0'); I(f'v_mov_b32 v{PF[6]+3}, 0')
                RA = SS(1)
                for s in range(4): I(f'{MF32} {V(RA,16)}, {V(W2(s),4)}, {V(E(ft,s),4)}, {"0" if s==0 else V(RA,16)}')
                OA = QA
                for u in range(7): I(f'{MF32} {V(OA,16)}, {V(VFs(u),4)}, {V(PF[u],4)}, {"0" if u==0 else V(OA,16)}')
                for k in range(0, 16, 2):
                    I(f'v_pk_fma_f32 {V(OA+k,2)}, {V(OA+k,2)}, v[10:11], {V(RA+k,2)} op_sel_hi:[1,0,1]')
                for i in range(8): self.cvt(OA + i, OA + 2 * i)
                for i in range(8): I(f'v_pk_max_i16 v{OA+i}, v{OA+i}, 0')
                for k in range(2):
                    I(f'buffer_store_dwordx4 {V(OA+4*k,4)}, v{3 if ft==3 else 2}, s[{sO}:{sO+3}], s{60+ft} offen offset:{64*h+32*k}')
        I('s_add_u32 s58, s58, 102400'); I('s_add_u32 s59, s59, 1'); I('s_cmp_lt_u32 s59, 2')
        I('s_nop 15')
        I('s_cbranch_scc1 L_sbatch')
        I('s_endpgm')

    def build(self):
        p = self.p; I = self.I; o = self.opt
        p.raw(HEADER.rstrip())
        p.raw('; @launch grid=(256,1,1) block=(512,1,1) lds=163840')
        p.raw('.amdgcn_target "amdgcn-amd-amdhsa--gfx950"')
        p.raw('.text')
        p.raw(f'.globl {NAME}_kernel')
        p.raw('.p2align 8')
        p.raw(f'.type {NAME}_kernel,@function')
        p.raw(f'{NAME}_kernel:')
        self.prologue()
        self.begin()
        self.rem_proj()
        for bb in range(2):
            self.kv_proj(bb)
            self.qproj(0)
            self.frem_pv(bb)
            for k in range(6):
                self.inblk = True
                self.block(bb, k)
                self.inblk = False
                self.stamp(INV[k & 1])
                if o.prio and k in (2, 5) and not (bb == 1 and k == 5):
                    pr = 3 - (2 * bb + (1 if k == 2 else 2))
                    I(f's_setprio {pr}', xrd=[('v', INV[k & 1])])
        self.end()
        if o.stamps:
            self.stamp(final=True)
            I('s_memrealtime s[58:59]')
            I('s_waitcnt lgkmcnt(0)')
            I('s_mov_b32 s16, s18'); I('s_mov_b32 s17, s19'); I('s_mov_b32 s18, 0x1000000'); I('s_mov_b32 s19, 0x00020000')
            I('s_lshl_b32 s21, s2, 3'); I('s_add_u32 s21, s21, s20'); I('s_lshl_b32 s21, s21, 7')
            I('v_mov_b32 v1, 0')
            for k in range(22):
                I(f'v_mov_b32 v0, s{60+2*k if k < 21 else 58}')
                I(f'buffer_store_dword v0, v1, s[16:19], s21 offen offset:{4*k}')
        I(f'v_cmp_lt_u32 vcc, s{sLIM}, v{BAD}')
        I('s_cmp_lg_u64 vcc, 0')
        if not (o.x_nolds or o.x_nosum or o.x_noexp): I('s_cbranch_scc1 L_slow')
        p.raw('L_end:')
        I('s_endpgm')
        self.slow_path()
        p.raw('.section .rodata,"a"')
        p.raw('.p2align 6')
        p.raw(f'.amdhsa_kernel {NAME}_kernel')
        p.raw('  .amdhsa_next_free_vgpr 256')
        p.raw(f'  .amdhsa_next_free_sgpr {102 if o.stamps else 72}')
        p.raw('  .amdhsa_accum_offset 256')
        p.raw('  .amdhsa_group_segment_fixed_size 0')
        p.raw('  .amdhsa_kernarg_size 64')
        p.raw('  .amdhsa_user_sgpr_count 2')
        p.raw('  .amdhsa_user_sgpr_kernarg_segment_ptr 1')
        p.raw('  .amdhsa_system_sgpr_workgroup_id_x 1')
        p.raw('.end_amdhsa_kernel')
        p.finalize()
        return p.text()

if __name__ == '__main__':
    ap = argparse.ArgumentParser()
    ap.add_argument('-o', default=f'cdna_kernels/{NAME}.s')
    ap.add_argument('--nosched', action='store_true')
    ap.add_argument('--window', type=int, default=600)
    ap.add_argument('--ldmod', default='nt')
    ap.add_argument('--stmod', default='nt')
    ap.add_argument('--prio', type=int, default=1)
    ap.add_argument('--codepf', type=int, default=6)
    ap.add_argument('--stagger', type=int, default=1)
    ap.add_argument('--bar1', type=int, default=1)
    ap.add_argument('--stamps', type=int, default=0)
    ap.add_argument('--pscale', type=float, default=1.0)
    ap.add_argument('--ldslat', type=int, default=128)
    for x in ('x_nolds', 'x_nostore', 'x_half', 'x_nosum', 'x_noexp'): ap.add_argument('--' + x, action='store_true')
    ap.add_argument('--vsum', default='')
    o = ap.parse_args()
    o.vsum = [int(c) for c in o.vsum]
    import sched
    sched.PIPE_SCALE = o.pscale
    sched.LDS_LAT = o.ldslat
    txt = Gen(o).build()
    open(o.o, 'w').write(txt)
    import collections
    c = collections.Counter(l.split()[0] for l in txt.split('L_slow:')[0].split('\n') if l.startswith('    ') and not l.strip().startswith(';'))
    print('fast path instr counts:', sum(c.values()), {k: v for k, v in c.most_common(14)})
```

```python
import sys, struct, argparse
sys.path.insert(0, 'gen')
from asmlib import *
from sched import schedule

NAME = 'standalone__attention_interact_autoint__recsys'
HEADER = open('cdna_kernels/%s.s.ref' % NAME).read().split('; Override launch')[0]
def f32bits(x): return struct.unpack('<I', struct.pack('<f', x))[0]
CSCALE = f32bits((32.0 ** -0.5) * 1.4426950408889634)
MF32 = 'v_mfma_f32_32x32x16_bf16'
MF32K8 = 'v_mfma_f32_32x32x8_bf16'
MF16 = 'v_mfma_f32_16x16x32_bf16'
MF16K16 = 'v_mfma_f32_16x16x16_bf16'
OOB_G = 0x40000000
OOB_L = 0x40000

ACC = [0, 16, 32, 48]
STR0 = 64; NSTR = 8
QF = [96, 104]
LS = [112, 116]
SR = 120
HOLD = 124
INV = [132, 133]
aKR = 134; BAD = 135
SEL = 136; SEL16 = 140
VREM = lambda bb, h: 142 + 4 * bb + 2 * h
RR = lambda bb: 150 + 2 * bb
aW = 154; aE = 155; vA = 156; vB = 157; aOW = 158; aSR = 159
KF = lambda h, t, ks: 160 + 24 * h + 8 * t + 4 * ks
VF = lambda h, t, sub: 208 + 24 * h + 8 * t + 4 * sub
sE = 24; sO = 28; sWd = 32
sB = [40, 41]
sEL = 42
sT = 43; sT2 = 44
sLO = 46; sHI = 48
sB3 = 50
sVM = 52
sLIM = 54
sLOW = 56
LDS_E = 32768; LDS_SCR = 131072

class Gen:
    def __init__(self, opt):
        self.opt = opt
        self.p = Prog()
        self.reg = None
        self.strn = 0
        self.nstamp = 0
        self.inblk = False
        self.rawdma = False
    def I(self, text, comment=None, xrd=(), xwr=(), pw=(), pt=()):
        ins = Ins(text, comment)
        ins.xrd = set(xrd); ins.xwr = set(xwr); ins.pw = set(pw); ins.pt = set(pt)
        if ins.cls == 'vmem': ins.xwr.add(('X', 'vmem'))
        if self.reg is None: self.p.items.append(ins)
        else: self.reg.append(ins)
        return ins
    def group(self, lst):
        g = []
        for text, kw in lst:
            ins = Ins(text, kw.get('comment'))
            ins.xrd = set(kw.get('xrd', ())); ins.xwr = set(kw.get('xwr', ())); ins.pw = set(kw.get('pw', ())); ins.pt = set(kw.get('pt', ()))
            if ins.cls == 'vmem': ins.xwr.add(('X', 'vmem'))
            g.append(ins)
        if self.reg is None: self.p.items.extend(g)
        else: self.reg.append(g)
    def begin(self): self.reg = []
    def end(self):
        r = self.reg; self.reg = None
        if self.opt.nosched:
            flat = []
            for it in r: flat.extend(it if isinstance(it, list) else [it])
        else:
            flat, est = schedule(r, window=self.opt.window, verbose=True)
        self.p.items.extend(flat)
    def stamp(self, anchor=None, final=False):
        if not self.opt.stamps: return
        if self.opt.stamps == 4 and not (self.nstamp == 0 or final): return
        if self.opt.stamps == 4 and final: self.nstamp = 19
        if self.opt.stamps == 3 and self.reg is not None and self.nstamp >= 18: return
        k = self.nstamp; self.nstamp += 1
        assert k < 20
        if self.opt.stamps == 2:
            if k % 2 == 0:
                self.group([(f's_memtime s[{60+2*k}:{61+2*k}]', dict(xrd=([('v', anchor)] if anchor is not None else []), xwr=[('X', 'stamp')])),
                            (f's_memrealtime s[{62+2*k}:{63+2*k}]', {})])
            return
        self.I(f's_memtime s[{60+2*k}:{61+2*k}]', xrd=([('v', anchor)] if anchor is not None else []), xwr=[('X', 'stamp')])
    def pstamp(self):
        if self.opt.stamps == 3: self.stamp()
    def slot(self):
        r = STR0 + 4 * (self.strn % NSTR); self.strn += 1
        return r
    def wread(self, m, h, s):
        r = self.slot()
        if self.opt.x_nolds and self.inblk: return r
        self.I(f'ds_read_b128 {V(r,4)}, v{aW} offset:{((m*2+h)*4+s)*1024}')
        return r
    def eread(self, t, s, dst=None):
        r = self.slot() if dst is None else dst
        if self.opt.x_nolds and self.inblk: return r
        self.I(f'ds_read_b128 {V(r,4)}, v{aE} offset:{t*4096+s*256}', xrd=[('L', f'E{t}'), ('RDY', 1000 + 500 * t)], pt=[('L', f'E{t}')], pw=[('LR', f'E{t}')])
        return r
    def dma(self, bb, t):
        ld = self.opt.ldmod
        lst = [(f's_add_u32 m0, s{sEL}, {t*4096}', {}), (f's_add_u32 s{sT}, s{sB[bb]}, {t*4096}', {})]
        for g in range(4):
            lst.append((f'buffer_load_dwordx4 v{vA if g < 2 else vB}, s[{sE}:{sE+3}], s{sT} offen offset:{g*1024} {ld} lds',
                        dict(xwr=[('L', f'E{t}')], pw=[('L', f'E{t}')], pt=[('LR', f'E{t}')], comment=('nocount' if self.rawdma else None))))
        self.group(lst)
    def cvt(self, dst, a, b=None):
        self.I(f'v_cvt_pk_bf16_f32 v{dst}, v{a}, v{a+1 if b is None else b}')

    def wprep_loads(self, pair, base):
        I = self.I
        I(f's_lshr_b32 s21, s{pair}, 1', 'm'); I(f's_and_b32 s22, s{pair}, 1', 'h')
        I('s_mov_b32 s32, s6'); I('s_mov_b32 s33, s7')
        I('s_cmp_eq_u32 s21, 1'); I('s_cselect_b32 s32, s8, s32'); I('s_cselect_b32 s33, s9, s33')
        I('s_cmp_eq_u32 s21, 2'); I('s_cselect_b32 s32, s10, s32'); I('s_cselect_b32 s33, s11, s33')
        I('s_cmp_eq_u32 s21, 3'); I('s_cselect_b32 s32, s12, s32'); I('s_cselect_b32 s33, s13, s33')
        I('s_cselect_b32 s36, 128, 64', 'row stride'); I('s_cselect_b32 s37, 64, 4096', 'head offset unit')
        I('s_mov_b32 s34, 8192'); I('s_mov_b32 s35, 0x00020000')
        I('s_mul_i32 s37, s37, s22')
        I('s_lshl_b32 s38, s36, 3')
        I('v_mul_lo_u32 v4, v7, s38')
        I('v_lshl_add_u32 v4, v6, 3, v4')
        for j in range(8):
            I(f'buffer_load_dwordx2 v[{base+2*j}:{base+1+2*j}], v4, s[32:35], s37 offen', 'nocount')
            if j < 7: I('s_add_u32 s37, s37, s36')

    def wprep_xform(self, base, scale, ldsoff, younger):
        I = self.I
        for j in range(8):
            I(f's_waitcnt vmcnt({younger + 7 - j})')
            for b in range(4):
                src = base + 2 * j + (b >> 1); t = 48 + 4 * j + b
                if b & 1: I(f'v_and_b32 v{t}, 0xffff0000, v{src}')
                else: I(f'v_lshlrev_b32 v{t}, 16, v{src}')
                I(f'v_mul_f32 v{t}, s{scale}, v{t}')
        for b in range(4):
            for i in range(4):
                I(f'v_cvt_pk_bf16_f32 v{80+4*b+i}, v{48+4*(2*i)+b}, v{48+4*(2*i+1)+b}')
            I(f'ds_write_b128 v5, v[{80+4*b}:{83+4*b}] offset:{ldsoff+16*b}')

    def prologue(self):
        I = self.I; p = self.p; o = self.opt
        I('s_cmp_ge_u32 s2, 256')
        I('s_cbranch_scc1 L_end')
        self.stamp()
        if o.stamps: I('s_memrealtime s[100:101]'); I(f's_load_dwordx2 s[18:19], s[0:1], {48 if o.dbg else 56}')
        I('s_load_dwordx4 s[4:7], s[0:1], 0')
        I('s_load_dwordx4 s[8:11], s[0:1], 16')
        I('s_load_dwordx4 s[12:15], s[0:1], 32')
        if o.prio: I('s_setprio 3')
        I('v_lshrrev_b32 v2, 6, v0')
        I('v_and_b32 v1, 63, v0', 'lane')
        I('v_readfirstlane_b32 s20, v2', 'wave id')
        I('s_getpc_b64 s[16:17]')
        I(f'v_lshlrev_b32 v{aW}, 4, v1', 'lane*16')
        I('v_and_b32 v6, 7, v1'); I('v_lshrrev_b32 v7, 3, v1')
        I(f'v_lshlrev_b32 v{vA}, 7, v6')
        I(f'v_xor_b32 v8, 1, v7')
        I(f'v_lshl_add_u32 v{vB}, v8, 4, v{vA}')
        I(f'v_lshl_add_u32 v{vA}, v7, 4, v{vA}')
        I('v_and_b32 v8, 3, v1', 'fq'); I('v_bfe_u32 v9, v1, 2, 1', 'ih/gh'); I('v_bfe_u32 v10, v1, 3, 1', 'bit3')
        I('v_bfe_u32 v11, v1, 4, 1', 'q&1'); I('v_lshrrev_b32 v12, 5, v1', 'q>>1')
        I('v_mul_u32_u24 v13, 102400, v10')
        I('v_lshl_add_u32 v13, v8, 7, v13')
        I('v_lshl_add_u32 v13, v12, 4, v13')
        I('v_add_u32 v13, 12288, v13')
        I(f'v_mov_b32 v14, 0x{OOB_G:x}')
        I('v_cmp_eq_u32 vcc, v9, v11')
        I('v_cndmask_b32 v13, v14, v13, vcc', 'remainder-row voffset')
        I(f's_lshl_b32 s{sB[0]}, s2, 4'); I(f's_add_u32 s{sB[0]}, s{sB[0]}, s20'); I(f's_mul_i32 s{sB[0]}, s{sB[0]}, 12800')
        I(f's_add_u32 s{sB[1]}, s{sB[0]}, 102400')
        I(f's_mul_i32 s{sEL}, s20, 12288'); I(f's_add_u32 s{sEL}, s{sEL}, {LDS_E}')
        I('s_cmp_ge_u32 s20, 4')
        I('s_cbranch_scc1 L_wld', 'nowait')
        I('v_lshlrev_b32 v100, 4, v0', 'tid*16 : 4 KB per pass')
        I('v_mov_b32 v101, s17')
        I('v_add_co_u32 v100, vcc, s16, v100')
        I('v_addc_co_u32 v101, vcc, 0, v101, vcc')
        for k in range(o.codepf):
            if k:
                I('v_add_co_u32 v100, vcc, 0x1000, v100')
                I('v_addc_co_u32 v101, vcc, 0, v101, vcc')
            I(f'global_load_dwordx4 v[104:107], v[100:101], off', 'nocount')
        I('s_waitcnt lgkmcnt(0)')
        I('s_branch L_wlddone', 'nowait')
        p.raw('L_wld:   ; waves 4-7: weight loads, two fragment groups each')
        I('s_waitcnt lgkmcnt(0)')
        I('s_sub_u32 s23, s20, 4'); I('s_lshl_b32 s23, s23, 1', 'pair index 0')
        self.wprep_loads(23, 16)
        I('s_add_u32 s23, s23, 1')
        self.wprep_loads(23, 32)
        p.raw('L_wlddone:   ;')
        self.stamp()
        for (d, src, n) in ((sE, 4, 52428800), (sO, 14, 52428800)):
            I(f's_mov_b32 s{d}, s{src}'); I(f's_mov_b32 s{d+1}, s{src+1}'); I(f's_mov_b32 s{d+2}, {n}'); I(f's_mov_b32 s{d+3}, 0x00020000')
        for s in range(4):
            I(f'buffer_load_dwordx4 {V(208+4*s,4)}, v13, s[{sE}:{sE+3}], s{sB[0]} offen offset:{32*s}', 'nocount')
        self.pstamp()
        if o.bar1: I('s_barrier')
        self.pstamp()
        I('s_cmp_ge_u32 s20, 4')
        I('s_cbranch_scc1 L_nodma0', 'nowait')
        self.rawdma = True
        for t in range(3): self.dma(0, t)
        p.raw('L_nodma0:   ;')
        self.pstamp()
        I('s_lshl_b32 s45, s20, 12'); I(f's_add_u32 s45, s45, {LDS_SCR}', 'scratch base')
        I('v_bfe_u32 v14, v1, 3, 2', 'g')
        I('v_xor_b32 v15, v12, v11', 'hf ^ (g>>1)   (g>>1 = lane bit4)')
        I(f'v_lshlrev_b32 v{aE}, 10, v14')
        I(f'v_lshl_add_u32 v{aE}, v15, 7, v{aE}')
        I(f'v_lshl_add_u32 v{aE}, v6, 4, v{aE}')
        I(f'v_add_u32 v{aE}, s{sEL}, v{aE}')
        I(f'v_lshlrev_b32 v{aOW}, 10, v10')
        I(f'v_lshl_add_u32 v{aOW}, v12, 7, v{aOW}')
        I(f'v_lshl_add_u32 v{aOW}, v6, 4, v{aOW}')
        I(f'v_add_u32 v{aOW}, s45, v{aOW}')
        I(f'v_add_u32 v{aSR}, s45, v{aW}')
        I(f'v_lshlrev_b32 v{aKR}, 5, v8')
        I(f'v_lshl_add_u32 v{aKR}, v12, 4, v{aKR}')
        I(f'v_add_u32 v{aKR}, s45, v{aKR}')
        I('v_xor_b32 v14, v9, v11')
        I('v_or_b32 v14, v14, v10')
        I(f'v_mov_b32 v15, 0x{OOB_L:x}')
        I('v_cmp_eq_u32 vcc, 0, v14')
        I(f'v_cndmask_b32 v{aKR}, v15, v{aKR}, vcc')
        I('v_mov_b32 v15, 0x3f803f80')
        I('v_cmp_eq_u32 vcc, v9, v11')
        for k in range(4): I(f'v_cndmask_b32 v{SEL+k}, 0, v15, vcc')
        I('v_cmp_eq_u32 vcc, 0, v12')
        for k in range(2): I(f'v_cndmask_b32 v{SEL16+k}, 0, v{SEL}, vcc')
        I(f'v_mov_b32 v{BAD}, 0')
        I(f's_mov_b32 s{sLO}, 0x0000ffff'); I(f's_mov_b32 s{sLO+1}, 0x0000ffff')
        I(f's_mov_b32 s{sHI}, 0xffff0000'); I(f's_mov_b32 s{sHI+1}, 0xffff0000')
        I(f's_mov_b32 s{sB3}, 0xff00ff00'); I(f's_mov_b32 s{sB3+1}, 0xff00ff00')
        I(f's_mov_b32 s{sVM}, 0x00000f0f'); I(f's_mov_b32 s{sVM+1}, 0')
        I(f's_mov_b32 s{sLIM}, 0x5f800000', '2^64')
        I(f's_mov_b32 s{sLOW}, -1'); I(f's_mov_b32 s{sLOW+1}, 0')
        I('v_lshlrev_b32 v3, 9, v10')
        I('v_lshl_add_u32 v3, v9, 7, v3')
        I('v_lshl_add_u32 v3, v8, 5, v3')
        I('v_lshl_add_u32 v3, v11, 4, v3')
        I('v_lshl_add_u32 v3, v12, 3, v3')
        I(f'v_add_u32 v{INV[0]}, s45, v3', 'remainder chunk write address')
        I('s_cmp_lt_u32 s20, 4')
        I('s_cbranch_scc1 L_noxf', 'nowait')
        I('v_and_b32 v5, 4, v6'); I('v_and_b32 v14, 1, v6'); I('v_lshl_or_b32 v5, v14, 1, v5')
        I('v_bfe_u32 v14, v6, 1, 1'); I('v_or_b32 v5, v5, v14')
        I('v_lshlrev_b32 v5, 6, v5'); I('v_lshl_add_u32 v5, v7, 9, v5')
        I('s_sub_u32 s38, s20, 4'); I('s_lshl_b32 s38, s38, 13'); I('v_add_u32 v5, s38, v5')
        I('s_cmp_eq_u32 s20, 4'); I(f's_cselect_b32 s39, 0x{CSCALE:08x}, 1.0', 'scale*log2e folded into Wq')
        self.wprep_xform(16, 39, 0, 12)
        self.wprep_xform(32, 39, 4096, 4)
        I('s_waitcnt lgkmcnt(0)')
        p.raw('L_noxf:   ;')
        self.pstamp()
        I('s_barrier')
        self.stamp()
        I('s_cmp_lt_u32 s20, 4')
        I('s_cbranch_scc1 L_nodma1', 'nowait')
        if o.x_half: I('s_endpgm')
        for t in range(3): self.dma(0, t)
        self.rawdma = False
        p.raw('L_nodma1:   ;')
        self.pstamp()
        ph = [[('v', 104 + i) for i in range(4)]]
        ph += [[('v', 208 + 4 * s + i) for i in range(4)] for s in range(4)]
        ph += [[('L', f'E{t}')] for t in range(3) for g in range(4)]
        p.items.append(('PH', ph))

    def rem_proj(self):
        I = self.I
        ER = lambda s: 208 + 4 * s
        D = lambda m, h: 160 + 4 * (2 * m + h)
        for m in (1, 0, 2, 3):
            for h in range(2):
                d = D(m, h)
                for s in range(4):
                    w = self.wread(m, h, s)
                    c = '0' if s == 0 else V(d, 4)
                    if m == 2: I(f'{MF16} {V(d,4)}, {V(ER(s),4)}, {V(w,4)}, {c}')
                    else: I(f'{MF16} {V(d,4)}, {V(w,4)}, {V(ER(s),4)}, {c}')
        for m in (1, 0):
            for h in range(2):
                d = D(m, h)
                self.cvt(d, d); self.cvt(d + 1, d + 2)
                I(f'ds_write_b64 v{INV[0]}, {V(d,2)} offset:{h*256 + (1024 if m == 0 else 0)}', xwr=[('L', 'REM')])
        for h in range(2):
            d = D(2, h)
            self.cvt(VREM(0, h), d); self.cvt(VREM(0, h) + 1, d + 2)
            for k in range(2):
                I(f'v_mov_b32 v{VREM(1,h)+k}, 0')
                I(f'v_permlane32_swap_b32 v{VREM(0,h)+k}, v{VREM(1,h)+k}')
        for h in range(2):
            d = D(3, h)
            self.cvt(RR(h), d); self.cvt(RR(h) + 1, d + 2)
        for k in range(2):
            t = D(3, 0) + k
            I(f'v_mov_b32 v{t}, v{RR(0)+k}')
            I(f'v_mov_b32_dpp v{RR(0)+k}, v{RR(1)+k} row_ror:8 row_mask:0xf bank_mask:0xc', xrd=[('v', RR(0)+k)])
            I(f'v_mov_b32_dpp v{RR(1)+k}, v{t} row_ror:8 row_mask:0xf bank_mask:0x3', xrd=[('v', RR(1)+k)])

    def kv_proj(self, bb):
        I = self.I
        EB = lambda t, s: (ACC[2] + 16 * t + 4 * s) if t < 2 else (QF[0] + 4 * s)
        self.frem_addr()
        for t in range(3):
            for s in range(4): self.eread(t, s, EB(t, s))
        n = 0
        for (m, h) in ((1, 0), (1, 1), (2, 0), (2, 1)):
            w = [self.wread(m, h, s) for s in range(4)]
            for t in range(3):
                acc = ACC[n & 1]; n += 1
                for s in range(4):
                    c = '0' if s == 0 else V(acc, 16)
                    if m == 1: I(f'{MF32} {V(acc,16)}, {V(w[s],4)}, {V(EB(t,s),4)}, {c}')
                    else: I(f'{MF32} {V(acc,16)}, {V(EB(t,s),4)}, {V(w[s],4)}, {c}')
                dst = KF(h, t, 0) if m == 1 else VF(h, t, 0)
                for i in range(8): self.cvt(dst + i, acc + 2 * i)
                if (m, h, t) in ((1, 0, 0), (2, 1, 2)): self.stamp(dst + 7)
            if (m, h) == (1, 1): self.frem_s(bb)

    def krem_read(self, bb, h, ks, isq=False, addr=None):
        r = self.slot()
        off = bb * 512 + h * 256 + ks * 128 + (1024 if isq else 0)
        if self.opt.x_nolds and self.inblk: return r
        self.I(f'ds_read_b128 {V(r,4)}, v{aKR if addr is None else addr} offset:{off}', xrd=[('L', 'REM')])
        return r

    def frem_addr(self):
        I = self.I
        T = 248
        I(f'v_bfe_u32 v{T}, v{aW}, 4, 2', 'fq'); I(f'v_bfe_u32 v{T+1}, v{aW}, 6, 1', 'bit2'); I(f'v_bfe_u32 v{T+2}, v{aW}, 7, 1', 'bit3')
        I(f'v_bfe_u32 v{T+3}, v{aW}, 8, 1', 'q&1'); I(f'v_lshrrev_b32 v{T+4}, 9, v{aW}', 'q>>1')
        I(f'v_sub_u32 v{T+5}, v{aSR}, v{aW}', 'scratch base')
        I(f'v_lshl_add_u32 v{T+5}, v{T}, 5, v{T+5}', '+fq*32')
        I(f'v_lshl_add_u32 v{T+6}, v{T+4}, 4, v{T+5}', '+(q>>1)*16')
        I(f'v_mov_b32 v{T+7}, 0x{OOB_L:x}')
        I(f'v_cmp_eq_u32 vcc, v{T+1}, v{T+3}')
        I(f'v_cndmask_b32 v{T+6}, v{T+7}, v{T+6}, vcc', 'valid iff (q&1)==bit2')
        I(f'v_cndmask_b32 v{SR}, v{T+7}, v{T+6}, s[{sB3}:{sB3+1}]', 'Q rem head1 read addr')
        I(f'v_lshl_add_u32 v{INV[0]}, v{T+2}, 7, v{T+6}', 'P read addr (+hd*128)')
        I(f'v_lshlrev_b32 v{T+7}, 4, v{T+3}')
        I(f'v_lshl_add_u32 v{T+7}, v{T+4}, 3, v{T+7}', '(q&1)*16 + (q>>1)*8')
        I(f'v_lshl_add_u32 v{SR+1}, v{T+1}, 8, v{T+5}')
        I(f'v_lshl_add_u32 v{SR+1}, v{T+2}, 7, v{SR+1}')
        I(f'v_add_u32 v{SR+1}, v{SR+1}, v{T+7}', 'P write addr')
        I(f'v_lshl_add_u32 v{T+7}, v{T}, 7, v{T+7}')
        I(f'v_lshl_add_u32 v{T+7}, v{T+2}, 6, v{T+7}')
        I(f'v_lshl_add_u32 v{INV[1]}, v{T+1}, 5, v{T+7}', 'out offset')
        I(f'v_mov_b32 v{SR+2}, 0xff800000')

    def frem_s(self, bb):
        I = self.I
        D = lambda t: (HOLD, HOLD + 4, LS[0], LS[1])[t]
        first = [True] * 4
        for h in range(2):
            for ks in range(2):
                qb = self.krem_read(bb, h, ks, isq=True, addr=(aKR if h == 0 else SR))
                ka = self.krem_read(bb, h, ks)
                for t in range(4):
                    a = KF(h, t, ks) if t < 3 else ka
                    c = '0' if first[t] else V(D(t), 4); first[t] = False
                    I(f'{MF16} {V(D(t),4)}, {V(a,4)}, {V(qb,4)}, {c}')
        for r in range(4):
            I(f'v_cndmask_b32 v{D(3)+r}, v{SR+2}, v{D(3)+r}, s[{sVM}:{sVM+1}]')
        for t in range(4):
            for r in range(4): I(f'v_exp_f32 v{D(t)+r}, v{D(t)+r}')
            self.cvt(D(t), D(t)); self.cvt(D(t) + 1, D(t) + 2)
            I(f'ds_write_b64 v{SR+1}, {V(D(t),2)} offset:{2048 + t*512}', xwr=[('L', 'STG')])

    def frem_pv(self, bb):
        I = self.I
        DH = [HOLD, HOLD + 4]
        ONE = LS[0]; L = LS[1]
        for k in range(4): I(f'v_mov_b32 v{ONE+k}, 0x3f803f80')
        for u in range(7):
            r = self.slot()
            t, sub = u >> 1, u & 1
            if u < 6:
                I(f'ds_read_b128 {V(r,4)}, v{INV[0]} offset:{2048+u*256}', xrd=[('L', 'STG')])
                I(f'{MF16} {V(L,4)}, {V(ONE,4)}, {V(r,4)}, {"0" if u == 0 else V(L,4)}')
                for h in range(2):
                    I(f'{MF16} {V(DH[h],4)}, {V(VF(h,t,sub),4)}, {V(r,4)}, {"0" if u == 0 else V(DH[h],4)}')
            else:
                I(f'ds_read_b64 {V(r,2)}, v{INV[0]} offset:{2048+u*256}', xrd=[('L', 'STG')])
                I(f'{MF16K16} {V(L,4)}, {V(ONE,2)}, {V(r,2)}, {V(L,4)}')
                for h in range(2):
                    I(f'{MF16K16} {V(DH[h],4)}, {V(VREM(bb,h),2)}, {V(r,2)}, {V(DH[h],4)}')
        I(f'v_rcp_f32 v{L+1}, v{L}')
        I(f'v_max3_u32 v{BAD}, v{BAD}, v{L}, v{L+1}')
        for r in range(4):
            I(f'v_cndmask_b32 v{DH[0]+r}, v{DH[0]+r}, v{DH[1]+r}, s[{sB3}:{sB3+1}]')
            if r & 1: I(f'v_and_b32 v{DH[1]+r}, 0xffff0000, v{RR(bb)+(r>>1)}')
            else: I(f'v_lshlrev_b32 v{DH[1]+r}, 16, v{RR(bb)+(r>>1)}')
            I(f'v_fma_f32 v{DH[0]+r}, v{DH[0]+r}, v{L+1}, v{DH[1]+r}')
        self.cvt(DH[0], DH[0]); self.cvt(DH[0] + 1, DH[0] + 2)
        for k in range(2): I(f'v_pk_max_i16 v{DH[0]+k}, v{DH[0]+k}, 0')
        self.group([(f's_add_u32 s{sT2}, s{sB[bb]}, 12288', {}),
                    (f'buffer_store_dwordx2 {V(DH[0],2)}, v{INV[1]}, s[{sO}:{sO+3}], s{sT2} offen {self.opt.stmod}', {})])

    def qproj(self, k):
        ft, h = k >> 1, k & 1
        X = ACC[2 + (k & 1)]
        for s in range(4):
            w = self.wread(0, h, s); e = self.eread(ft, s)
            self.I(f'{MF32} {V(X,16)}, {V(w,4)}, {V(e,4)}, {"0" if s == 0 else V(X,16)}')
        for i in range(8): self.cvt(QF[k & 1] + i, X + 2 * i)

    def block(self, bb, k):
        I = self.I
        ft, h = k >> 1, k & 1
        O = ACC[0]; SA = ACC[1]; X = ACC[2 + (k & 1)]
        Q = QF[k & 1]; L = LS[k & 1]; inv = INV[k & 1]
        def smm(t, dst):
            I(f'{MF32} {V(dst,16)}, {V(KF(h,t,0),4)}, {V(Q,4)}, 0')
            I(f'{MF32} {V(dst,16)}, {V(KF(h,t,1),4)}, {V(Q+4,4)}, {V(dst,16)}')
        vs = k in self.opt.vsum
        self.firstadd = True
        def vadd(regs):
            for n, r in enumerate(regs):
                if self.firstadd and n < 2: I(f'v_mov_b32 v{L+n}, v{r}') if False else None
            return
        def soft(buf):
            for i in range(8):
                if not self.opt.x_noexp:
                    I(f'v_exp_f32 v{buf+2*i}, v{buf+2*i}')
                    I(f'v_exp_f32 v{buf+2*i+1}, v{buf+2*i+1}')
                if vs:
                    if self.firstadd:
                        I(f'v_add_f32 v{L}, v{buf+2*i}, v{buf+2*i+1}'); self.firstadd = False
                    else:
                        I(f'v_add_f32 v{L+1}, v{buf+2*i}, v{buf+2*i+1}')
                        I(f'v_add_f32 v{L}, v{L}, v{L+1}')
                self.cvt(buf + i, buf + 2 * i)
        def pv(t, buf):
            for sub in range(2):
                first = (t == 0 and sub == 0)
                I(f'{MF32} {V(O,16)}, {V(VF(h,t,sub),4)}, {V(buf+4*sub,4)}, {"0" if first else V(O,16)}')
                if not vs and (not self.opt.x_nosum or first): I(f'{MF16} {V(L,4)}, {V(SEL,4)}, {V(buf+4*sub,4)}, {"0" if first else V(L,4)}')
        smm(0, SA); smm(1, X)
        for ks in range(2):
            ka = self.krem_read(bb, h, ks)
            I(f'{MF16} {V(SR,4)}, {V(ka,4)}, {V(Q+4*ks,4)}, {"0" if ks == 0 else V(SR,4)}')
        def rproj(dst):
            for s in range(4):
                w = self.wread(3, h, s); e = self.eread(ft, s)
                I(f'{MF32} {V(dst,16)}, {V(w,4)}, {V(e,4)}, {"0" if s == 0 else V(dst,16)}')
            if h == 1 and bb == 0: self.dma(1, ft)
        R = X
        if k == 5:
            R = ACC[2 + ((k + 1) & 1)]
            rproj(R)
        soft(SA); pv(0, SA)
        if k < 5: self.qproj(k + 1)
        soft(X)
        smm(2, SA)
        pv(1, X)
        for r in range(4): I(f'v_exp_f32 v{SR+r}, v{SR+r}')
        if vs:
            I(f'v_add_f32 v{L+1}, v{SR}, v{SR+1}'); I(f'v_add_f32 v{L+2}, v{SR+2}, v{SR+3}'); I(f'v_add_f32 v{L+1}, v{L+1}, v{L+2}')
            I(f'v_cndmask_b32 v{L+1}, v{L+1}, 0, s[56:57]') if False else I(f'v_cndmask_b32 v{L+1}, 0, v{L+1}, s[{sLOW}:{sLOW+1}]')
            I(f'v_add_f32 v{L}, v{L}, v{L+1}')
        self.cvt(SR, SR); self.cvt(SR + 1, SR + 2)
        I(f'{MF32K8} {V(O,16)}, {V(VREM(bb,h),2)}, {V(SR,2)}, {V(O,16)}')
        if not vs: I(f'{MF16K16} {V(L,4)}, {V(SEL16,2)}, {V(SR,2)}, {V(L,4)}')
        if k < 5: rproj(X)
        soft(SA); pv(2, SA)
        if vs:
            I(f'v_mov_b32 v{L+1}, v{L}'); I(f'v_permlane32_swap_b32 v{L+1}, v{L}'); I(f'v_add_f32 v{L}, v{L}, v{L+1}')
        I(f'v_rcp_f32 v{inv}, v{L}')
        I(f'v_max3_u32 v{BAD}, v{BAD}, v{L}, v{inv}')
        X = R
        for r in range(16): I(f'v_fma_f32 v{X+r}, v{O+r}, v{inv}, v{X+r}')
        dst = HOLD if h == 0 else X
        for i in range(8):
            self.cvt(dst + i, X + 2 * i)
            I(f'v_pk_max_i16 v{dst+i}, v{dst+i}, 0')
        if h == 1 and not self.opt.x_nostore:
            for rr in range(2):
                lst = [(f's_mov_b64 exec, s[{(sLO, sHI)[rr]}:{(sLO, sHI)[rr]+1}]', {})]
                for hd in range(2):
                    for a1 in range(2):
                        src = (HOLD if hd == 0 else X) + 4 * a1
                        lst.append((f'ds_write_b128 v{aOW}, {V(src,4)} offset:{2048 + hd*512 + a1*256}', dict(xwr=[('L', 'STG')])))
                lst.append(('s_mov_b64 exec, -1', {}))
                self.group(lst)
                for kk in range(2):
                    r = self.slot()
                    I(f'ds_read_b128 {V(r,4)}, v{aSR} offset:{2048 + kk*1024}', xrd=[('L', 'STG')])
                    self.group([(f's_add_u32 s{sT2}, s{sB[bb]}, {ft*4096}', {}),
                                (f'buffer_store_dwordx4 {V(r,4)}, v{vA}, s[{sO}:{sO+3}], s{sT2} offen offset:{rr*2048+kk*1024} {self.opt.stmod}', {})])

    def slow_path(self):
        I = self.I; p = self.p
        p.label('L_slow')
        I('s_waitcnt vmcnt(0) lgkmcnt(0)')
        I('s_mov_b64 exec, -1')
        I('v_mbcnt_lo_u32_b32 v1, -1, 0'); I('v_mbcnt_hi_u32_b32 v1, -1, v1')
        I('v_and_b32 v6, 31, v1'); I('v_lshrrev_b32 v7, 5, v1')
        I('v_lshlrev_b32 v2, 7, v6'); I('v_lshl_add_u32 v2, v7, 4, v2')
        I(f'v_mov_b32 v3, 0x{OOB_G:x}'); I('v_cmp_gt_u32 vcc, 4, v6'); I('v_cndmask_b32 v3, v3, v2, vcc')
        I('v_lshlrev_b32 v4, 4, v1'); I('v_mov_b32 v5, 0xff800000')
        I('s_mov_b32 s56, 0'); I('s_mov_b32 s57, -1')
        I(f's_mov_b32 s58, s{sB[0]}'); I('s_mov_b32 s59, 0')
        p.label('L_sbatch')
        E = lambda t, s: 16 + 16 * t + 4 * s
        KFs = lambda t, ks: 80 + 8 * t + 4 * ks
        VFs = lambda u: 112 + 4 * u
        W1 = lambda s: 140 + 4 * s
        W2 = lambda s: 156 + 4 * s
        QA = 172
        SS = lambda t: 188 + 16 * t
        for t in range(4): I(f's_add_u32 s{60+t}, s58, {4096*t}')
        for t in range(4):
            for s in range(4):
                I(f'buffer_load_dwordx4 {V(E(t,s),4)}, v{3 if t==3 else 2}, s[{sE}:{sE+3}], s{60+t} offen offset:{32*s}')
        def wread(dst, m, h):
            for s in range(4): I(f'ds_read_b128 {V(dst(s),4)}, v4 offset:{((m*2+h)*4+s)*1024}')
        for h in range(2):
            wread(W1, 1, h); wread(W2, 2, h)
            for t in range(4):
                acc = SS(t)
                for s in range(4): I(f'{MF32} {V(acc,16)}, {V(W1(s),4)}, {V(E(t,s),4)}, {"0" if s==0 else V(acc,16)}')
            for t in range(4):
                for i in range(8): self.cvt(KFs(t, 0) + i, SS(t) + 2 * i)
            for t in range(4):
                acc = SS(t)
                for s in range(4): I(f'{MF32} {V(acc,16)}, {V(E(t,s),4)}, {V(W2(s),4)}, {"0" if s==0 else V(acc,16)}')
            for t in range(4):
                for i in range(8 if t < 3 else 4): self.cvt(VFs(2 * t) + i, SS(t) + 2 * i)
            wread(W1, 0, h); wread(W2, 3, h)
            for ft in range(4):
                for s in range(4): I(f'{MF32} {V(QA,16)}, {V(W1(s),4)}, {V(E(ft,s),4)}, {"0" if s==0 else V(QA,16)}')
                for i in range(8): self.cvt(QA + i, QA + 2 * i)
                for t in range(4):
                    I(f'{MF32} {V(SS(t),16)}, {V(KFs(t,0),4)}, {V(QA,4)}, 0')
                    I(f'{MF32} {V(SS(t),16)}, {V(KFs(t,1),4)}, {V(QA+4,4)}, {V(SS(t),16)}')
                for r in range(4): I(f'v_cndmask_b32 v{SS(3)+r}, v{SS(3)+r}, v5, s[56:57]')
                vals = [SS(0) + i for i in range(52)]
                I(f'v_max3_f32 v8, v{vals[0]}, v{vals[1]}, v{vals[2]}')
                k = 3
                while k < 52:
                    if k + 1 < 52: I(f'v_max3_f32 v8, v8, v{vals[k]}, v{vals[k+1]}'); k += 2
                    else: I(f'v_max_f32 v8, v8, v{vals[k]}'); k += 1
                I('v_mov_b32 v9, v8'); I('v_permlane32_swap_b32 v9, v8'); I('v_max_f32 v8, v8, v9', 'true row max')
                for k in range(0, 52, 2):
                    I(f'v_pk_add_f32 {V(vals[k],2)}, {V(vals[k],2)}, v[8:9] op_sel_hi:[1,0] neg_lo:[0,1] neg_hi:[0,1]')
                for k in range(52): I(f'v_exp_f32 v{vals[k]}, v{vals[k]}')
                I(f'v_pk_add_f32 v[10:11], {V(vals[0],2)}, {V(vals[2],2)}')
                for k in range(4, 52, 2): I(f'v_pk_add_f32 v[10:11], v[10:11], {V(vals[k],2)}')
                I('v_add_f32 v10, v10, v11'); I('v_mov_b32 v11, v10'); I('v_permlane32_swap_b32 v11, v10')
                I('v_add_f32 v10, v10, v11'); I('v_rcp_f32 v10, v10')
                PF = {0: SS(0), 1: SS(0) + 4, 2: SS(0) + 8, 3: SS(0) + 12, 4: SS(2), 5: SS(2) + 4, 6: SS(2) + 8}
                for t in range(3):
                    for i in range(8): self.cvt(PF[2 * t] + i, SS(t) + 2 * i)
                self.cvt(PF[6], SS(3)); self.cvt(PF[6] + 1, SS(3) + 2)
                I(f'v_mov_b32 v{PF[6]+2}, 0'); I(f'v_mov_b32 v{PF[6]+3}, 0')
                RA = SS(1)
                for s in range(4): I(f'{MF32} {V(RA,16)}, {V(W2(s),4)}, {V(E(ft,s),4)}, {"0" if s==0 else V(RA,16)}')
                OA = QA
                for u in range(7): I(f'{MF32} {V(OA,16)}, {V(VFs(u),4)}, {V(PF[u],4)}, {"0" if u==0 else V(OA,16)}')
                for k in range(0, 16, 2):
                    I(f'v_pk_fma_f32 {V(OA+k,2)}, {V(OA+k,2)}, v[10:11], {V(RA+k,2)} op_sel_hi:[1,0,1]')
                for i in range(8): self.cvt(OA + i, OA + 2 * i)
                for i in range(8): I(f'v_pk_max_i16 v{OA+i}, v{OA+i}, 0')
                for k in range(2):
                    I(f'buffer_store_dwordx4 {V(OA+4*k,4)}, v{3 if ft==3 else 2}, s[{sO}:{sO+3}], s{60+ft} offen offset:{64*h+32*k}')
        I('s_add_u32 s58, s58, 102400'); I('s_add_u32 s59, s59, 1'); I('s_cmp_lt_u32 s59, 2')
        I('s_nop 15')
        I('s_cbranch_scc1 L_sbatch')
        I('s_endpgm')

    def build(self):
        p = self.p; I = self.I; o = self.opt
        p.raw(HEADER.rstrip())
        p.raw('; @launch grid=(256,1,1) block=(512,1,1) lds=163840')
        p.raw('.amdgcn_target "amdgcn-amd-amdhsa--gfx950"')
        p.raw('.text')
        p.raw(f'.globl {NAME}_kernel')
        p.raw('.p2align 8')
        p.raw(f'.type {NAME}_kernel,@function')
        p.raw(f'{NAME}_kernel:')
        self.prologue()
        self.begin()
        self.rem_proj()
        for bb in range(2):
            self.kv_proj(bb)
            self.qproj(0)
            self.frem_pv(bb)
            for k in range(6):
                self.inblk = True
                self.block(bb, k)
                self.inblk = False
                self.stamp(INV[k & 1])
                if o.prio and k in (2, 5) and not (bb == 1 and k == 5):
                    pr = 3 - (2 * bb + (1 if k == 2 else 2))
                    I(f's_setprio {pr}', xrd=[('v', INV[k & 1])])
        self.end()
        if o.stamps:
            self.stamp(final=True)
            I('s_memrealtime s[58:59]')
            I('s_waitcnt lgkmcnt(0)')
            I('s_mov_b32 s16, s18'); I('s_mov_b32 s17, s19'); I('s_mov_b32 s18, 0x1000000'); I('s_mov_b32 s19, 0x00020000')
            I('s_lshl_b32 s21, s2, 3'); I('s_add_u32 s21, s21, s20'); I('s_lshl_b32 s21, s21, 7')
            I('v_mov_b32 v1, 0')
            if o.dbg:
                I('s_mov_b32 s18, 256')
                I('s_sub_u32 s98, s98, s60')
                I('s_and_b32 s21, s2, 63'); I('s_lshl_b32 s21, s21, 3'); I('s_add_u32 s21, s21, s20')
                I('s_cmp_eq_u32 s21, 7')
                I('s_cbranch_scc0 L_nodbg')
                I('s_lshr_b32 s21, s2, 6'); I('s_lshl_b32 s21, s21, 4')
                I('s_mov_b64 exec, 1')
                for k, sr in enumerate((100, 58, 98)):
                    I(f'v_mov_b32 v0, s{sr}')
                    I(f'buffer_store_dword v0, v1, s[16:19], s21 offen offset:{4*k}')
                I('s_mov_b64 exec, -1')
                p.raw('L_nodbg:  ;')
            for k in range(0 if o.dbg else 22):
                I(f'v_mov_b32 v0, s{60+2*k if k < 21 else 58}')
                I(f'buffer_store_dword v0, v1, s[16:19], s21 offen offset:{4*k}')
        I(f'v_cmp_lt_u32 vcc, s{sLIM}, v{BAD}')
        I('s_cmp_lg_u64 vcc, 0')
        if not (o.x_nolds or o.x_nosum or o.x_noexp): I('s_cbranch_scc1 L_slow')
        p.raw('L_end:')
        I('s_endpgm')
        self.slow_path()
        p.raw('.section .rodata,"a"')
        p.raw('.p2align 6')
        p.raw(f'.amdhsa_kernel {NAME}_kernel')
        p.raw('  .amdhsa_next_free_vgpr 256')
        p.raw(f'  .amdhsa_next_free_sgpr {102 if o.stamps else 72}')
        p.raw('  .amdhsa_accum_offset 256')
        p.raw('  .amdhsa_group_segment_fixed_size 0')
        p.raw('  .amdhsa_kernarg_size 64')
        p.raw('  .amdhsa_user_sgpr_count 2')
        p.raw('  .amdhsa_user_sgpr_kernarg_segment_ptr 1')
        p.raw('  .amdhsa_system_sgpr_workgroup_id_x 1')
        p.raw('.end_amdhsa_kernel')
        p.finalize()
        return p.text()

if __name__ == '__main__':
    ap = argparse.ArgumentParser()
    ap.add_argument('-o', default=f'cdna_kernels/{NAME}.s')
    ap.add_argument('--nosched', action='store_true')
    ap.add_argument('--window', type=int, default=600)
    ap.add_argument('--ldmod', default='nt')
    ap.add_argument('--stmod', default='nt')
    ap.add_argument('--prio', type=int, default=1)
    ap.add_argument('--codepf', type=int, default=6)
    ap.add_argument('--stagger', type=int, default=1)
    ap.add_argument('--bar1', type=int, default=1)
    ap.add_argument('--stamps', type=int, default=0)
    ap.add_argument('--pscale', type=float, default=1.0)
    ap.add_argument('--ldslat', type=int, default=128)
    for x in ('x_nolds', 'x_nostore', 'x_half', 'x_nosum', 'x_noexp'): ap.add_argument('--' + x, action='store_true')
    ap.add_argument('--vsum', default='')
    ap.add_argument('--dbg', action='store_true')
    o = ap.parse_args()
    o.vsum = [int(c) for c in o.vsum]
    import sched
    sched.PIPE_SCALE = o.pscale
    sched.LDS_LAT = o.ldslat
    txt = Gen(o).build()
    open(o.o, 'w').write(txt)
    import collections
    c = collections.Counter(l.split()[0] for l in txt.split('L_slow:')[0].split('\n') if l.startswith('    ') and not l.strip().startswith(';'))
    print('fast path instr counts:', sum(c.values()), {k: v for k, v in c.most_common(14)})
```

```python
import re

REG_RE = re.compile(r'^(-|abs\()?([vas])(\d+)\)?$')
RNG_RE = re.compile(r'^(-|abs\()?([vas])\[(\d+):(\d+)\]\)?$')

def regs_of(tok):
    tok = tok.strip()
    m = REG_RE.match(tok)
    if m:
        return [(m.group(2), int(m.group(3)))]
    m = RNG_RE.match(tok)
    if m:
        return [(m.group(2), i) for i in range(int(m.group(3)), int(m.group(4)) + 1)]
    if tok == 'vcc':
        return [('s', 106), ('s', 107)]
    if tok == 'exec':
        return [('s', 126), ('s', 127)]
    if tok == 'm0':
        return [('s', 124)]
    if tok == 'scc':
        return [('s', 200)]
    return []

TRANS = ('v_exp_f32', 'v_log_f32', 'v_rcp_f32', 'v_rsq_f32', 'v_sqrt_f32', 'v_sin_f32', 'v_cos_f32')

class Ins:
    __slots__ = ('text', 'op', 'cls', 'rd', 'wr', 'srcc', 'ab', 'passes', 'comment', 'lds_dma', 'wide_store', 'extra', 'xrd', 'xwr', 'pw', 'pt')
    def __init__(self, text, comment=None):
        self.text = text
        self.comment = comment
        self.xrd = set(); self.xwr = set()
        self.pw = set(); self.pt = set()
        parts = text.split(None, 1)
        self.op = parts[0]
        rest = parts[1] if len(parts) > 1 else ''
        ops = []
        cur = ''
        depth = 0
        for ch in rest:
            if ch == '[': depth += 1
            if ch == ']': depth -= 1
            if ch == ',' and depth == 0:
                ops.append(cur.strip()); cur = ''
            else:
                cur += ch
        if cur.strip(): ops.append(cur.strip())
        mods = []
        if ops:
            toks = ops[-1].split()
            ops[-1] = toks[0]
            mods = toks[1:]
        op = self.op
        self.rd = set(); self.wr = set(); self.srcc = set(); self.ab = set()
        self.passes = 0; self.lds_dma = False; self.wide_store = False
        self.extra = None
        R = lambda i: regs_of(ops[i]) if i < len(ops) else []
        if op.startswith('v_mfma'):
            self.cls = 'mfma'
            self.passes = 8 if '32x32' in op else 4
            self.wr |= set(R(0)); self.ab |= set(R(1)) | set(R(2)); self.srcc |= set(R(3))
            self.rd |= self.ab | self.srcc
        elif op.startswith('v_cmp'):
            self.cls = 'valu'
            self.wr |= set(R(0))
            for i in range(1, len(ops)): self.rd |= set(R(i))
        elif op.startswith('v_permlane') and 'swap' in op:
            self.cls = 'valu'
            self.wr |= set(R(0)) | set(R(1)); self.rd |= set(R(0)) | set(R(1))
        elif op.startswith('v_'):
            self.cls = 'trans' if op.replace('_e32', '').replace('_e64', '') in TRANS else 'valu'
            self.wr |= set(R(0))
            start = 1
            if op.startswith(('v_add_co', 'v_sub_co', 'v_addc_co', 'v_subb_co')):
                self.wr |= set(R(1)); start = 2
            for i in range(start, len(ops)): self.rd |= set(R(i))
            if op.startswith(('v_fmac', 'v_pk_fmac', 'v_dot2c')): self.rd |= set(R(0))
            if op.startswith('v_cndmask') and len(ops) == 3: self.rd |= set(regs_of('vcc'))
        elif op.startswith('ds_read') or op.startswith('ds_bpermute') or op.startswith('ds_permute') or op.startswith('ds_swizzle'):
            self.cls = 'lds'
            self.wr |= set(R(0))
            for i in range(1, len(ops)): self.rd |= set(R(i))
        elif op.startswith('ds_write'):
            self.cls = 'lds'
            for i in range(len(ops)): self.rd |= set(R(i))
        elif op.startswith('buffer_load') or op.startswith('global_load'):
            self.cls = 'vmem'
            if 'lds' in mods or '_lds_' in op:
                self.lds_dma = True
                for i in range(len(ops)): self.rd |= set(R(i))
                self.rd |= set(regs_of('m0'))
            else:
                self.wr |= set(R(0))
                for i in range(1, len(ops)): self.rd |= set(R(i))
        elif op.startswith('buffer_store') or op.startswith('global_store') or op.startswith('buffer_atomic'):
            self.cls = 'vmem'
            for i in range(len(ops)): self.rd |= set(R(i))
            if 'x4' in op or 'x3' in op:
                self.wide_store = True
                self.extra = set(R(0)) if op.startswith('buffer') else set(R(1))
        elif op.startswith('s_load') or op.startswith('s_memtime') or op.startswith('s_memrealtime') or op.startswith('s_buffer_load'):
            self.cls = 'smem'
            self.wr |= set(R(0))
            for i in range(1, len(ops)): self.rd |= set(R(i))
        elif op in ('s_nop', 's_waitcnt', 's_barrier', 's_endpgm', 's_setprio', 's_sleep') or op.startswith(('s_branch', 's_cbranch')):
            self.cls = 'ctl'
        elif op.startswith('s_cmp') or op.startswith('s_bitcmp'):
            self.cls = 'salu'
            for i in range(len(ops)): self.rd |= set(R(i))
            self.wr |= set(regs_of('scc'))
        elif op.startswith('s_'):
            self.cls = 'salu'
            self.wr |= set(R(0))
            for i in range(1, len(ops)): self.rd |= set(R(i))
            if 'saveexec' in op:
                self.wr |= set(regs_of('exec')); self.rd |= set(regs_of('exec'))
            if op.startswith(('s_cselect', 's_addc', 's_subb')): self.rd |= set(regs_of('scc'))
            if not op.startswith(('s_mov', 's_cselect', 's_getpc', 's_mul')): self.wr |= set(regs_of('scc'))
        else:
            raise ValueError('unknown op ' + text)

    def states(self):
        if self.op == 's_nop':
            return int(self.text.split()[1]) + 1
        return 1

def is_valu(i): return i.cls in ('valu', 'trans')
def vg(s): return set(r for r in s if r[0] in 'va')
def sg(s): return set(r for r in s if r[0] == 's')

HX = 0
def need_states(p, c):
    n = 0
    if p.cls == 'mfma':
        big = p.passes == 8
        if c.cls == 'mfma':
            if p.wr & c.ab: n = max(n, 12 if big else 8)
            if p.wr & c.srcc:
                if p.wr == c.srcc and p.op == c.op and not (HX & 8): pass
                else: n = max(n, 10 if big else 6)
            elif p.wr & c.wr:
                n = max(n, 10 if big else 6)
        elif is_valu(c) or c.cls in ('lds', 'vmem'):
            if p.wr & (c.rd | c.wr): n = max(n, (12 if big else 8) + (6 if HX & 4 else 0))
            if is_valu(c) and (p.srcc & c.wr): n = max(n, 7 if big else 3)
            if HX & 1 and is_valu(c) and (p.ab & c.wr): n = max(n, 8 if big else 4)
            if HX & 2 and not is_valu(c) and (p.ab & c.wr): n = max(n, 8)
    elif is_valu(p):
        pw_v = vg(p.wr); pw_s = sg(p.wr)
        if c.cls == 'mfma' and (pw_v & c.rd): n = max(n, 4 if HX & 16 else 2)
        if p.cls == 'trans' and c.cls == 'valu' and (pw_v & c.rd): n = max(n, 1)
        if p.cls == 'trans' and c.cls in ('lds', 'vmem') and (pw_v & c.rd): n = max(n, 1)
        if is_valu(c):
            if c.op.startswith('v_permlane') and (pw_v & c.rd): n = max(n, 2)
            if ('dpp' in c.text or 'row_' in c.text or 'quad_perm' in c.text) and (pw_v & c.rd): n = max(n, 2)
            if c.op.startswith(('v_readlane', 'v_readfirstlane')) and (pw_v & c.rd): n = max(n, 1)
            if pw_s & c.rd: n = max(n, 4 if c.op.startswith(('v_readlane', 'v_writelane')) else 2)
            if ('op_sel' in p.text and not p.op.startswith('v_pk_')) or 'sdwa' in p.text:
                if pw_v & (c.rd | c.wr): n = max(n, 1)
        if c.cls == 'vmem' and (pw_s & c.rd): n = max(n, 5)
        if c.cls in ('salu', 'ctl') and (pw_s & c.rd): n = max(n, 1)
    elif p.cls == 'salu':
        if c.lds_dma and (('s', 124) in p.wr): n = max(n, 1)
    elif p.cls == 'vmem' and p.wide_store:
        if (is_valu(c) or c.cls == 'mfma') and (p.extra & c.wr): n = max(n, 2)
        elif p.extra & c.wr: n = max(n, 1)
    return n

MAXLOOK = 20
SAFE_WAR = 0

class Prog:
    def __init__(self):
        self.items = []
    def I(self, text, comment=None):
        self.items.append(Ins(text, comment))
    def raw(self, text):
        self.items.append(text)
    def label(self, name):
        self.items.append(name + ':')
    def c(self, text):
        self.items.append('    ; ' + text)

    def finalize(self, auto_wait=True):
        out = []
        vm = []
        lg = []
        smem_out = False
        def flush_all():
            pass
        for it in self.items:
            if isinstance(it, tuple) and it[0] == 'PH':
                vm = [set(x) for x in it[1]]
                continue
            if isinstance(it, str):
                if it.endswith(':') and auto_wait:
                    if any(w for w in vm) or any(w for w in lg) or smem_out:
                        out.append(Ins('s_waitcnt vmcnt(0) lgkmcnt(0)', 'auto: label'))
                    vm = []; lg = []; smem_out = False
                out.append(it)
                continue
            ins = it
            if auto_wait:
                touched = ins.rd | ins.wr | ins.pt | set(('SRC',) + r for r in ins.wr)
                nv = None; nl = None
                for k in range(len(vm) - 1, -1, -1):
                    if vm[k] & touched:
                        nv = len(vm) - 1 - k; break
                for k in range(len(lg) - 1, -1, -1):
                    if lg[k] & touched:
                        nl = len(lg) - 1 - k; break
                if nl is not None and smem_out: nl = 0
                if ins.op.startswith(('s_branch', 's_cbranch')) and ins.comment != 'nowait':
                    if any(w for w in vm): nv = 0
                    if any(w for w in lg): nl = 0
                if nv is not None or nl is not None:
                    t = 's_waitcnt'
                    if nv is not None:
                        nv = min(nv, 63)
                        t += f' vmcnt({nv})'; vm = vm[len(vm) - nv:] if nv else []
                    if nl is not None:
                        nl = min(nl, 15)
                        t += f' lgkmcnt({nl})'; lg = lg[len(lg) - nl:] if nl else []
                        if nl == 0: smem_out = False
                    out.append(Ins(t, 'auto'))
                if ins.op == 's_waitcnt':
                    m = re.search(r'vmcnt\((\d+)\)', ins.text)
                    if m:
                        n = int(m.group(1)); vm = vm[len(vm) - n:] if n and n < len(vm) else ([] if n == 0 else vm)
                    m = re.search(r'lgkmcnt\((\d+)\)', ins.text)
                    if m:
                        n = int(m.group(1)); lg = lg[len(lg) - n:] if n and n < len(lg) else ([] if n == 0 else lg)
                        if n == 0: smem_out = False
                if ins.cls == 'vmem' and ins.comment != 'nocount': vm.append(set(ins.wr) | ins.pw | (set(('SRC',) + r for r in vg(ins.rd)) if SAFE_WAR & 2 else set()))
                if ins.cls == 'lds': lg.append(set(ins.wr) | ins.pw | (set(('SRC',) + r for r in vg(ins.rd)) if SAFE_WAR & 1 else set()))
                if ins.cls == 'smem':
                    lg.append(set(ins.wr)); smem_out = True
            out.append(ins)
        res = []
        hist = []
        for it in out:
            if isinstance(it, str):
                if it.endswith(':'):
                    res.append(it)
                    hist.append('LABEL')
                else:
                    res.append(it)
                continue
            dist = 0
            need = 0
            for p in reversed(hist[-MAXLOOK:]):
                if p == 'LABEL':
                    continue
                n = need_states(p, it)
                if n > dist: need = max(need, n - dist)
                dist += p.states()
                if dist >= 19: break
            while need > 0:
                k = min(need, 16)
                nop = Ins(f's_nop {k-1}', 'hazard')
                res.append(nop); hist.append(nop)
                need -= k
            res.append(it); hist.append(it)
        self.final = res
        return res

    def text(self):
        lines = []
        for it in self.final:
            if isinstance(it, str): lines.append(it)
            else:
                lines.append('    ' + it.text + (('    ; ' + it.comment) if it.comment else ''))
        return '\n'.join(lines) + '\n'

def V(a, n=1):
    return f'v{a}' if n == 1 else f'v[{a}:{a+n-1}]'
def S(a, n=1):
    return f's{a}' if n == 1 else f's[{a}:{a+n-1}]'
```

```python
import heapq
from asmlib import Ins, need_states, is_valu

class Node:
    __slots__ = ('ins', 'idx', 'rd', 'wr', 'preds', 'succs', 'npred', 'prio', 'ready', 'pos_end', 't_issue', 'kind', 'wave', 'port', 'pipe', 'isvm')
    def __init__(self, ins_list, idx):
        self.ins = ins_list
        self.idx = idx
        self.rd = set(); self.wr = set()
        for i in ins_list:
            self.rd |= i.rd | getattr(i, 'xrd', set())
            self.wr |= i.wr | getattr(i, 'xwr', set())
        self.preds = []; self.succs = []
        self.prio = 0; self.ready = 0
        wave = 0; port = 0; pipe = 0
        for i in ins_list:
            w, p, m = cost(i)
            wave += w; port += p; pipe += m
        self.wave = wave; self.port = port; self.pipe = pipe
        self.kind = ins_list[0].cls if len(ins_list) == 1 else 'group'
        self.isvm = any(i.cls == 'vmem' for i in ins_list)

def cost(i):
    if i.cls == 'mfma':
        return (4, 8, int((32 if i.passes == 8 else 16) * PIPE_SCALE))
    if i.cls == 'trans' or i.op.startswith('v_permlane'):
        return (8, 8, 0)
    if i.cls == 'valu':
        return (4, 4, 0)
    if i.cls == 'lds':
        return (12 if i.op.startswith('ds_write') else 6, 0, 0)
    if i.cls == 'vmem':
        return (16, 0, 0)
    return (4, 0, 0)

LDS_LAT = 128
VM_GAP = 0
PIPE_SCALE = 1.0
DMA_LAT = 2500

def latency(p, c, regs):
    pi = p.ins[-1]
    if pi.lds_dma and c.ins[0].cls == 'lds':
        return DMA_LAT
    if p.kind == 'mfma':
        ci = c.ins[0]
        if ci.cls == 'mfma' and (regs <= ci.srcc) and not (regs & ci.ab):
            if ci.op == pi.op: return 4
            return 48 if pi.passes == 8 else 32
        return 56 if pi.passes == 8 else 40
    if p.kind == 'lds' and pi.wr:
        if any(r[0] in 'va' for r in regs): return LDS_LAT
        return 4
    if p.kind == 'vmem' and pi.wr:
        if any(r[0] in 'va' for r in regs): return 600
        return 4
    return p.wave

def schedule(items, window=600, verbose=False, mfma_bias=True):
    nodes = [Node(it if isinstance(it, list) else [it], k) for k, it in enumerate(items)]
    lastw = {}; readers = {}
    for n in nodes:
        deps = {}
        for r in n.rd:
            w = lastw.get(r)
            if w is not None: deps.setdefault(w, [set(), False])[0].add(r)
        for r in n.wr:
            w = lastw.get(r)
            if w is not None:
                d = deps.setdefault(w, [set(), False])
                d[0].add(r)
            for q in readers.get(r, ()):
                if q is not n: deps.setdefault(q, [set(), False])
        for pnode, (regs, _) in deps.items():
            lat = latency(pnode, n, regs) if regs else pnode.wave
            n.preds.append((pnode, lat)); pnode.succs.append((n, lat))
        for r in n.rd: readers.setdefault(r, []).append(n)
        for r in n.wr:
            lastw[r] = n; readers[r] = []
    for n in reversed(nodes):
        best = 0
        for s, lat in n.succs:
            best = max(best, lat + s.prio)
        n.prio = best + max(n.wave, n.port, n.pipe // 2)
    for n in nodes:
        n.npred = len(n.preds)
        for i in n.ins:
            for x in i.xrd:
                if x[0] == 'RDY': n.ready = max(n.ready, x[1])
    ready = [n for n in nodes if n.npred == 0]
    now = 0; port_free = 0; pipe_free = 0; pos = 0; vm_free = 0
    out = []
    done = [False] * len(nodes)
    oldest = 0
    busy_port = 0; busy_pipe = 0
    while ready:
        while oldest < len(nodes) and done[oldest]: oldest += 1
        best = None; bestkey = None
        for n in ready:
            if n.idx > oldest + window: continue
            est = max(now, n.ready)
            if n.port: est = max(est, port_free)
            if n.pipe: est = max(est, pipe_free)
            if n.isvm: est = max(est, vm_free)
            miss = 0
            for p, _ in n.preds:
                d = pos - p.pos_end
                if d < 13:
                    ns = need_states(p.ins[-1], n.ins[0])
                    if ns > d: miss = max(miss, ns - d)
            if miss: est = max(est, now + 4 * miss)
            key = (est - (2 if (mfma_bias and n.pipe) else 0), -n.prio, n.idx)
            if bestkey is None or key < bestkey:
                best = n; bestkey = key; best_est = est
        n = best
        ready.remove(n)
        done[n.idx] = True
        t = best_est
        n.t_issue = t
        if t > now: pos += (t - now) // 4 if False else 0
        now = t + n.wave
        if n.port: port_free = t + n.port; busy_port += n.port
        if n.pipe: pipe_free = t + n.pipe; busy_pipe += n.pipe
        if n.isvm: vm_free = t + VM_GAP
        pos += len(n.ins)
        n.pos_end = pos
        out.extend(n.ins)
        for s, lat in n.succs:
            s.ready = max(s.ready, t + lat)
            s.npred -= 1
            if s.npred == 0: ready.append(s)
    assert len(out) == sum(len(n.ins) for n in nodes)
    if verbose:
        print(f'schedule: {len(out)} instrs, est {now} cycles, port busy {busy_port}, pipe busy {busy_pipe}')
    return out, now
```

```python
import sys, struct, argparse
sys.path.insert(0, 'gen')
from asmlib import *
import sched
from sched import schedule

NAME = 'standalone__attention_interact_autoint__recsys'
HEADER = open('cdna_kernels/%s.s.ref' % NAME).read().split('; Override launch')[0]
def f32bits(x): return struct.unpack('<I', struct.pack('<f', x))[0]
CSCALE = f32bits((32.0 ** -0.5) * 1.4426950408889634)
MF32 = 'v_mfma_f32_32x32x16_bf16'
MF32K8 = 'v_mfma_f32_32x32x8_bf16'
MF16 = 'v_mfma_f32_16x16x32_bf16'
MF16K16 = 'v_mfma_f32_16x16x16_bf16'
OOB_G = 0x40000000
OOB_L = 0x40000
def A(a, n=1): return f'a{a}' if n == 1 else f'a[{a}:{a+n-1}]'

WF = lambda m, h, s: ((m * 2 + h) * 4 + s) * 4
EC = lambda t, s: 128 + 16 * t + 4 * s
KRA = lambda h, ks: 176 + 8 * h + 4 * ks
STR0 = 192; NSTR = 8; OUTB = 224
SEL = 240; ONE = 244; SEL16 = 248
VREM = lambda h: 250 + 2 * h
ACC = [0, 16, 32, 48]
PA = [64, 80]
QF = [96, 104]
LS = [112, 116]
SR = 120
INV = [124, 125]; BAD = 126
aE = 127; vA = 128; vB = 129; aOW = 130; aLIN = 131; aKR = 132; aQ1 = 133; aVR = 134; aRR = 135
aPW = 136; aPR = 137; vOR = 138; NEG = 139
FD = 140
RR = 156
KF = lambda h, t, ks: 160 + 24 * h + 8 * t + 4 * ks
VF = lambda h, t, sub: 208 + 24 * h + 8 * t + 4 * sub
sE = 24; sO = 28
sB = 40
sWB = 42
sT = 43; sT2 = 44; sIT = 45; sNX = 46
sB3 = 50; sVM = 52; sLIM = 54
WSTRIDE = 34816; L_OUT = 12288; L_REM = 24576; L_PSH = 32768
BSTRIDE = 4 * 12800

class Gen:
    def __init__(self, opt):
        self.opt = opt; self.p = Prog(); self.reg = None
        self.strn = 0; self.nstamp = 0; self.nocount = False
    def mk(self, text, comment=None, xrd=(), xwr=(), pw=(), pt=()):
        ins = Ins(text, comment)
        ins.xrd = set(xrd); ins.xwr = set(xwr); ins.pw = set(pw); ins.pt = set(pt)
        if ins.cls == 'vmem':
            if self.nocount: ins.comment = 'nocount'
        return ins
    def I(self, text, comment=None, **kw):
        ins = self.mk(text, comment, **kw)
        (self.p.items if self.reg is None else self.reg).append(ins)
    def group(self, lst):
        g = [self.mk(t, **kw) for t, kw in lst]
        if self.reg is None: self.p.items.extend(g)
        else: self.reg.append(g)
    def begin(self): self.reg = []
    def end(self):
        r = self.reg; self.reg = None
        if self.opt.nosched:
            flat = []
            for it in r: flat.extend(it if isinstance(it, list) else [it])
        else:
            flat, est = schedule(r, window=self.opt.window, verbose=True)
        self.p.items.extend(flat)
    def stamp(self, anchor=None, final=False):
        o = self.opt
        if not o.stamps: return
        if o.stamps == 4 and not (self.nstamp == 0 or final): return
        if final: self.nstamp = 19
        if self.nstamp >= 19 and not final: return
        k = self.nstamp; self.nstamp += 1
        self.I(f's_memtime s[{60+2*k}:{61+2*k}]', xrd=([('v', anchor)] if anchor is not None else []), xwr=[('X', 'stamp')])
    def slot(self):
        r = STR0 + 4 * (self.strn % NSTR); self.strn += 1
        return r
    def cvt(self, dst, a): self.I(f'v_cvt_pk_bf16_f32 v{dst}, v{a}, v{a+1}')

    def eload(self, t, rdy=0):
        for s in range(4):
            self.I(f'ds_read_b128 {A(EC(t,s),4)}, v{aE} offset:{t*4096+s*256}', xrd=[('L', f'E{t}'), ('RDY', rdy)], pt=[('L', f'E{t}')], pw=[('LR', f'E{t}')])
    def dma(self, base, boff, t):
        ld = self.opt.ldmod
        self.I(f's_add_u32 m0, s{sWB}, {t*4096}')
        self.I(f's_add_u32 s{sT}, s{base}, {boff + t*4096}')
        for g in range(4):
            self.I(f'buffer_load_dwordx4 v{vA if g < 2 else vB}, s[{sE}:{sE+3}], s{sT} offen offset:{g*1024} {ld} lds',
                   xwr=[('L', f'E{t}')], pw=[('L', f'E{t}')], pt=[('LR', f'E{t}')])

    def prologue(self):
        I = self.I; p = self.p; o = self.opt
        I('s_cmp_ge_u32 s2, 256')
        I('s_cbranch_scc1 L_end')
        self.stamp()
        if o.stamps: I('s_memrealtime s[100:101]'); I('s_load_dwordx2 s[18:19], s[0:1], 56')
        I('s_load_dwordx4 s[4:7], s[0:1], 0')
        I('s_load_dwordx4 s[8:11], s[0:1], 16')
        I('s_load_dwordx4 s[12:15], s[0:1], 32')
        I('v_lshrrev_b32 v2, 6, v0')
        I('v_and_b32 v1, 63, v0', 'lane')
        I('v_readfirstlane_b32 s20, v2', 'wave id = weight matrix handled in the prologue')
        if o.codepf:
            I('s_getpc_b64 s[16:17]')
            I('s_lshr_b32 s21, s2, 3'); I('s_and_b32 s21, s21, 3'); I(f's_mul_i32 s21, s21, {o.codepf*4096}')
            I('s_add_u32 s16, s16, s21'); I('s_addc_u32 s17, s17, 0')
            I('v_lshlrev_b32 v100, 4, v0', 'tid*16 : 4 KB per pass')
            I('v_mov_b32 v101, s17')
            I('v_add_co_u32 v100, vcc, s16, v100')
            I('v_addc_co_u32 v101, vcc, 0, v101, vcc')
            for k in range(o.codepf):
                if k:
                    I('v_add_co_u32 v100, vcc, 0x1000, v100')
                    I('v_addc_co_u32 v101, vcc, 0, v101, vcc')
                I(f'global_load_dwordx4 {A(STR0+4*k,4)}, v[100:101], off')
        I('v_and_b32 v6, 7, v1'); I('v_lshrrev_b32 v7, 3, v1')
        I(f'v_lshlrev_b32 v{vA}, 7, v6')
        I(f'v_xor_b32 v8, 1, v7')
        I(f'v_lshl_add_u32 v{vB}, v8, 4, v{vA}')
        I(f'v_lshl_add_u32 v{vA}, v7, 4, v{vA}')
        I('v_and_b32 v8, 3, v1', 'fq'); I('v_bfe_u32 v9, v1, 2, 1', 'bit2'); I('v_bfe_u32 v10, v1, 3, 1', 'bit3')
        I('v_bfe_u32 v11, v1, 4, 1', 'q&1'); I('v_lshrrev_b32 v12, 5, v1', 'q>>1')
        I(f'v_mul_u32_u24 v13, {BSTRIDE}, v10')
        I('v_lshl_add_u32 v13, v8, 7, v13')
        I('v_lshl_add_u32 v13, v12, 4, v13')
        I('v_add_u32 v13, 12288, v13')
        I(f'v_mov_b32 v14, 0x{OOB_G:x}')
        I('v_cmp_eq_u32 vcc, v9, v11')
        I('v_cndmask_b32 v13, v14, v13, vcc', 'remainder-row voffset')
        I(f's_lshl_b32 s{sB}, s2, 4'); I(f's_add_u32 s{sB}, s{sB}, s20'); I(f's_mul_i32 s{sB}, s{sB}, 12800')
        I(f's_mul_i32 s{sWB}, s20, {WSTRIDE}')
        I('v_bfe_u32 v15, v1, 2, 3', 'dg')
        I('s_cmp_eq_u32 s20, 3')
        I('s_cselect_b32 s36, 128, 64', 'row stride'); I('s_cselect_b32 s37, 64, 4096', 'head offset')
        I('s_lshl_b32 s38, s36, 3')
        I('v_mul_lo_u32 v4, v15, s38')
        I('v_lshl_add_u32 v4, v8, 4, v4')
        I('v_mul_lo_u32 v5, v12, s37')
        I('v_add_u32 v4, v4, v5')
        I('s_waitcnt lgkmcnt(0)')
        self.stamp()
        I('s_mov_b32 s32, s6'); I('s_mov_b32 s33, s7')
        I('s_cmp_eq_u32 s20, 1'); I('s_cselect_b32 s32, s8, s32'); I('s_cselect_b32 s33, s9, s33')
        I('s_cmp_eq_u32 s20, 2'); I('s_cselect_b32 s32, s10, s32'); I('s_cselect_b32 s33, s11, s33')
        I('s_cmp_eq_u32 s20, 3'); I('s_cselect_b32 s32, s12, s32'); I('s_cselect_b32 s33, s13, s33')
        I('s_mov_b32 s34, 8192'); I('s_mov_b32 s35, 0x00020000')
        I('s_mov_b32 s37, 0')
        for j in range(8):
            I(f'buffer_load_dwordx4 v[{160+4*j}:{163+4*j}], v4, s[32:35], s37 offen')
            if j < 7: I('s_add_u32 s37, s37, s36')
        for (d, src, n) in ((sE, 4, 52428800), (sO, 14, 52428800)):
            I(f's_mov_b32 s{d}, s{src}'); I(f's_mov_b32 s{d+1}, s{src+1}'); I(f's_mov_b32 s{d+2}, {n}'); I(f's_mov_b32 s{d+3}, 0x00020000')
        I(f's_add_u32 s{sT2}, s{sB}, {2*BSTRIDE}')
        for pr in range(2):
            for s in range(4):
                I(f'buffer_load_dwordx4 {V(224+16*pr+4*s,4)}, v13, s[{sE}:{sE+3}], s{sB if pr == 0 else sT2} offen offset:{32*s}')
        for t in range(3): self.dma(sB, 0, t)
        self.stamp()
        I('v_bfe_u32 v14, v1, 3, 2', 'g')
        I('v_xor_b32 v3, v12, v11')
        I(f'v_lshlrev_b32 v{aE}, 10, v14')
        I(f'v_lshl_add_u32 v{aOW}, v12, 7, v{aE}')
        I(f'v_lshl_add_u32 v{aE}, v3, 7, v{aE}')
        I(f'v_lshl_add_u32 v{aE}, v6, 4, v{aE}')
        I(f'v_add_u32 v{aE}, s{sWB}, v{aE}')
        I(f'v_lshl_add_u32 v{aOW}, v6, 4, v{aOW}')
        I(f'v_add_u32 v{aOW}, s{sWB}, v{aOW}')
        I(f'v_lshlrev_b32 v2, 4, v1', 'lane*16')
        I(f'v_add_u32 v{aLIN}, s{sWB}, v2')
        I(f's_add_u32 s45, s{sWB}, {L_REM}')
        I(f's_mov_b32 s{sB3}, 0xff00ff00'); I(f's_mov_b32 s{sB3+1}, 0xff00ff00')
        I(f's_mov_b32 s{sVM}, 0x00000f0f'); I(f's_mov_b32 s{sVM+1}, 0')
        I(f's_mov_b32 s{sLIM}, 0x5f800000', '2^64')
        I(f'v_mov_b32 v16, 0x{OOB_L:x}')
        I('v_lshlrev_b32 v17, 5, v8', 'fq*32')
        I('v_lshl_add_u32 v18, v12, 4, v17', '+(q>>1)*16')
        I('v_add_u32 v18, s45, v18')
        I('v_cmp_eq_u32 vcc, v9, v11')
        I('v_cndmask_b32 v18, v16, v18, vcc', 'valid iff (q&1)==bit2')
        I(f'v_cndmask_b32 v{aKR}, v18, v16, s[{sB3}:{sB3+1}]')
        I(f'v_cndmask_b32 v{aQ1}, v16, v18, s[{sB3}:{sB3+1}]')
        I(f'v_lshl_add_u32 v{aPR}, v10, 7, v18')
        I(f'v_add_u32 v{aPR}, {L_PSH - L_REM}, v{aPR}')
        I('v_mov_b32 v19, 0x3f803f80')
        I('v_cndmask_b32 v20, 0, v19, vcc')
        for k in range(4):
            I(f'v_accvgpr_write_b32 a{SEL+k}, v20'); I(f'v_accvgpr_write_b32 a{ONE+k}, v19')
        I('v_cmp_eq_u32 vcc, 0, v12')
        I('v_cndmask_b32 v20, 0, v20, vcc')
        for k in range(2): I(f'v_accvgpr_write_b32 a{SEL16+k}, v20')
        I('v_and_b32 v21, 31, v1')
        I('v_lshlrev_b32 v21, 3, v21', 'i*8')
        I('v_add_u32 v21, s45, v21')
        I(f'v_cndmask_b32 v{aVR}, v16, v21, vcc')
        I('v_lshl_add_u32 v22, v12, 11, v21', 'V rem write addr: + bb*2048')
        I('v_lshlrev_b32 v23, 4, v11')
        I('v_lshl_add_u32 v23, v12, 3, v23', '(q&1)*16+(q>>1)*8')
        I('v_add_u32 v24, v23, v17', '+fq*32')
        I('v_lshl_add_u32 v25, v9, 7, v24', '+bit2*128 : chunk index inside a 256 B block')
        I('v_add_u32 v25, s45, v25')
        I(f'v_lshl_add_u32 v{aRR}, v10, 8, v25', 'res rem read: +hd*256')
        I('v_lshl_add_u32 v26, v10, 11, v25', 'K/Q/res rem write addr: +bb*2048')
        I(f'v_lshl_add_u32 v{aPW}, v9, 8, v24')
        I(f'v_lshl_add_u32 v{aPW}, v10, 7, v{aPW}')
        I(f's_add_u32 s45, s{sWB}, {L_PSH}')
        I(f'v_add_u32 v{aPW}, s45, v{aPW}')
        I(f'v_lshl_add_u32 v{vOR}, v8, 7, v23')
        I(f'v_lshl_add_u32 v{vOR}, v10, 6, v{vOR}')
        I(f'v_lshl_add_u32 v{vOR}, v9, 5, v{vOR}')
        I(f'v_mov_b32 v{NEG}, 0xff800000')
        I(f'v_mov_b32 v{BAD}, 0')
        I(f'v_mov_b32 v{INV[0]}, v22', 'V rem write addr (prologue only)')
        I(f'v_mov_b32 v{INV[1]}, v26', 'K/Q/res rem write addr (prologue only)')
        I('v_lshlrev_b32 v5, 12, v12')
        I('v_lshl_add_u32 v5, v15, 9, v5')
        I('v_bfe_u32 v14, v8, 1, 1'); I('v_lshl_add_u32 v5, v14, 8, v5')
        I('v_and_b32 v14, 1, v8'); I('v_lshl_add_u32 v5, v14, 6, v5')
        I(f'v_add_u32 v5, s{sWB}, v5')
        I('s_cmp_eq_u32 s20, 0'); I(f's_cselect_b32 s39, 0x{CSCALE:08x}, 1.0', 'scale*log2e folded into Wq')
        for jp in range(4):
            for j in (2 * jp, 2 * jp + 1):
                for b in range(8):
                    src = 160 + 4 * j + (b >> 1); t = 32 + 8 * (j & 1) + b
                    if b & 1: I(f'v_and_b32 v{t}, 0xffff0000, v{src}')
                    else: I(f'v_lshlrev_b32 v{t}, 16, v{src}')
                    I(f'v_mul_f32 v{t}, s39, v{t}')
            for b in range(8):
                I(f'v_cvt_pk_bf16_f32 v{64+4*b+jp}, v{32+b}, v{40+b}')
        for b in range(8):
            I(f'ds_write_b128 v5, v[{64+4*b}:{67+4*b}] offset:{L_OUT + (b>>2)*128 + (b&3)*16}')
        I('s_waitcnt lgkmcnt(0)')
        I('s_barrier')
        self.stamp()
        I(f'v_add_u32 v3, {2*WSTRIDE}, v2')
        for m in (1, 2, 0, 3):
            for h in range(2):
                for s in range(4):
                    I(f'ds_read_b128 {A(WF(m,h,s),4)}, v{2 if m < 2 else 3} offset:{(m&1)*WSTRIDE + L_OUT + h*4096 + s*1024}', pw=[('LW', 'W')])

    def rem_proj(self, pr):
        I = self.I
        ER = lambda s: 224 + 16 * pr + 4 * s
        def D(m, h):
            k = 2 * m + h
            if pr == 0: return 160 + 4 * k if k < 6 else FD + 4 * (k - 6)
            return 184 + 4 * k if k < 6 else 232 + 4 * (k - 6)
        for m in (1, 2, 0, 3):
            for h in range(2):
                d = D(m, h)
                for s in range(4):
                    c = '0' if s == 0 else V(d, 4)
                    if m == 2: I(f'{MF16} {V(d,4)}, {V(ER(s),4)}, {A(WF(m,h,s),4)}, {c}')
                    else: I(f'{MF16} {V(d,4)}, {A(WF(m,h,s),4)}, {V(ER(s),4)}, {c}')
                self.cvt(d, d); self.cvt(d + 1, d + 2)
                off = pr * 4096 + h * 256 + {1: 0, 0: 512, 2: 1024, 3: 1536}[m]
                I(f'ds_write_b64 v{INV[0] if m == 2 else INV[1]}, {V(d,2)} offset:{off}', xwr=[('L', 'REM')])

    def tproj(self, h, t):
        I = self.I
        for m in (1, 2):
            acc = PA[m - 1]
            for s in range(4):
                c = '0' if s == 0 else V(acc, 16)
                if m == 1: I(f'{MF32} {V(acc,16)}, {A(WF(1,h,s),4)}, {A(EC(t,s),4)}, {c}')
                else: I(f'{MF32} {V(acc,16)}, {A(EC(t,s),4)}, {A(WF(2,h,s),4)}, {c}')
            dst = KF(h, t, 0) if m == 1 else VF(h, t, 0)
            for i in range(8): self.cvt(dst + i, acc + 2 * i)

    def qproj(self, j):
        h, ft = divmod(j % 6, 3)
        X = ACC[2 + (j & 1)]
        for s in range(4):
            self.I(f'{MF32} {V(X,16)}, {A(WF(0,h,s),4)}, {A(EC(ft,s),4)}, {"0" if s == 0 else V(X,16)}')
        for i in range(8): self.cvt(QF[j & 1] + i, X + 2 * i)

    def rem_loads(self, bi, h):
        ro = bi * 2048
        for ks in range(2):
            self.I(f'ds_read_b128 {A(KRA(h,ks),4)}, v{aKR} offset:{ro + h*256 + ks*128}', xrd=[('L', 'REM')])
        self.I(f'ds_read_b64 {A(VREM(h),2)}, v{aVR} offset:{ro + 1024 + h*256}', xrd=[('L', 'REM')])

    def frem_s(self, bi, h):
        I = self.I
        ro = bi * 2048
        for ks in range(2):
            qb = self.slot()
            I(f'ds_read_b128 {A(qb,4)}, v{aKR if h == 0 else aQ1} offset:{ro + 512 + h*256 + ks*128}', xrd=[('L', 'REM')])
            for t in range(4):
                a = V(KF(h, t, ks), 4) if t < 3 else A(KRA(h, ks), 4)
                c = '0' if (h == 0 and ks == 0) else V(FD + 4 * t, 4)
                I(f'{MF16} {V(FD+4*t,4)}, {a}, {A(qb,4)}, {c}')

    def frem_rest(self, bi):
        I = self.I
        D = lambda t: FD + 4 * t
        for r in range(4):
            I(f'v_cndmask_b32 v{D(3)+r}, v{NEG}, v{D(3)+r}, s[{sVM}:{sVM+1}]')
        for t in range(4):
            for r in range(4): I(f'v_exp_f32 v{D(t)+r}, v{D(t)+r}')
            self.cvt(D(t), D(t)); self.cvt(D(t) + 1, D(t) + 2)
            I(f'ds_write_b64 v{aPW}, {V(D(t),2)} offset:{t*512}', xwr=[('L', 'PSH')])
        DH = [FD, FD + 4]; L = FD + 8
        I(f'ds_read_b64 {V(RR,2)}, v{aRR} offset:{bi*2048 + 1536}', xrd=[('L', 'REM')])
        for u in range(7):
            r = self.slot()
            t, sub = u >> 1, u & 1
            if u < 6:
                I(f'ds_read_b128 {A(r,4)}, v{aPR} offset:{u*256}', xrd=[('L', 'PSH')])
                for h in range(2):
                    I(f'{MF16} {V(DH[h],4)}, {V(VF(h,t,sub),4)}, {A(r,4)}, {"0" if u == 0 else V(DH[h],4)}')
                I(f'{MF16} {V(L,4)}, {A(ONE,4)}, {A(r,4)}, {"0" if u == 0 else V(L,4)}')
            else:
                I(f'ds_read_b64 {A(r,2)}, v{aPR} offset:{u*256}', xrd=[('L', 'PSH')])
                for h in range(2):
                    I(f'{MF16K16} {V(DH[h],4)}, {A(VREM(h),2)}, {A(r,2)}, {V(DH[h],4)}')
                I(f'{MF16K16} {V(L,4)}, {A(ONE,2)}, {A(r,2)}, {V(L,4)}')
        I(f'v_rcp_f32 v{L+1}, v{L}')
        I(f'v_max3_u32 v{BAD}, v{BAD}, v{L}, v{L+1}')
        for r in range(4):
            I(f'v_cndmask_b32 v{DH[0]+r}, v{DH[0]+r}, v{DH[1]+r}, s[{sB3}:{sB3+1}]')
            if r & 1: I(f'v_and_b32 v{DH[1]+r}, 0xffff0000, v{RR+(r>>1)}')
            else: I(f'v_lshlrev_b32 v{DH[1]+r}, 16, v{RR+(r>>1)}')
            I(f'v_fma_f32 v{DH[0]+r}, v{DH[0]+r}, v{L+1}, v{DH[1]+r}')
        self.cvt(DH[0], DH[0]); self.cvt(DH[0] + 1, DH[0] + 2)
        for k in range(2): I(f'v_pk_max_i16 v{DH[0]+k}, v{DH[0]+k}, 0')
        I(f's_add_u32 s{sNX}, s{sB}, {bi*BSTRIDE + 12288}')
        I(f'buffer_store_dwordx2 {V(DH[0],2)}, v{vOR}, s[{sO}:{sO+3}], s{sNX} offen {self.opt.stmod}')

    def block(self, bi, j, has_next, dma_next):
        I = self.I
        h, ft = divmod(j, 3)
        O = ACC[0]; SA = ACC[1]; X = ACC[2 + (j & 1)]
        Q = QF[j & 1]; L = LS[j & 1]; inv = INV[j & 1]
        def smm(t, dst):
            I(f'{MF32} {V(dst,16)}, {V(KF(h,t,0),4)}, {V(Q,4)}, 0')
            I(f'{MF32} {V(dst,16)}, {V(KF(h,t,1),4)}, {V(Q+4,4)}, {V(dst,16)}')
        def soft(buf):
            for i in range(8):
                I(f'v_exp_f32 v{buf+2*i}, v{buf+2*i}')
                I(f'v_exp_f32 v{buf+2*i+1}, v{buf+2*i+1}')
                self.cvt(buf + i, buf + 2 * i)
        def pv(t, buf):
            for sub in range(2):
                first = (t == 0 and sub == 0)
                I(f'{MF32} {V(O,16)}, {V(VF(h,t,sub),4)}, {V(buf+4*sub,4)}, {"0" if first else V(O,16)}')
                I(f'{MF16} {V(L,4)}, {A(SEL,4)}, {V(buf+4*sub,4)}, {"0" if first else V(L,4)}')
        smm(0, SA); smm(1, X)
        if ft == 0: self.tproj(h, 2)
        for ks in range(2):
            I(f'{MF16} {V(SR,4)}, {A(KRA(h,ks),4)}, {V(Q+4*ks,4)}, {"0" if ks == 0 else V(SR,4)}')
        if j == 1: self.rem_loads(bi, 1)
        if j == 1: self.frem_s(bi, 0)
        if j == 3: self.frem_s(bi, 1); self.frem_rest(bi)
        soft(SA); pv(0, SA)
        if j < 5 or has_next: self.qproj(j + 1)
        soft(X)
        smm(2, SA)
        pv(1, X)
        if ft > 0 and (h == 0 or has_next): self.tproj(1 - h, ft - 1)
        for r in range(4): I(f'v_exp_f32 v{SR+r}, v{SR+r}')
        self.cvt(SR, SR); self.cvt(SR + 1, SR + 2)
        I(f'{MF32K8} {V(O,16)}, {A(VREM(h),2)}, {V(SR,2)}, {V(O,16)}')
        I(f'{MF16K16} {V(L,4)}, {A(SEL16,2)}, {V(SR,2)}, {V(L,4)}')
        for s in range(4):
            I(f'{MF32} {V(X,16)}, {A(WF(3,h,s),4)}, {A(EC(ft,s),4)}, {"0" if s == 0 else V(X,16)}')
        if h == 1 and has_next:
            self.eload(ft)
        if h == 0 and dma_next is not None: self.dma(dma_next[0], dma_next[1], ft)
        if j == 5 and has_next: self.rem_loads(bi + 1, 0)
        soft(SA); pv(2, SA)
        I(f'v_rcp_f32 v{inv}, v{L}')
        I(f'v_max3_u32 v{BAD}, v{BAD}, v{L}, v{inv}')
        for r in range(16): I(f'v_fma_f32 v{X+r}, v{O+r}, v{inv}, v{X+r}')
        for i in range(8):
            self.cvt(X + i, X + 2 * i)
            I(f'v_pk_max_i16 v{X+i}, v{X+i}, 0')
        for a1 in range(2):
            I(f'ds_write_b128 v{aOW}, {V(X+4*a1,4)} offset:{L_OUT + ft*4096 + h*512 + a1*256}', xwr=[('L', f'O{ft}')], xrd=[('B', 'W')])
        if h == 1:
            I(f's_add_u32 s{sT2}, s{sB}, {bi*BSTRIDE + ft*4096}')
            for kk in range(4):
                r = OUTB + 4 * kk
                I(f'ds_read_b128 {A(r,4)}, v{aLIN} offset:{L_OUT + ft*4096 + kk*1024}', xrd=[('L', f'O{ft}')])
                I(f'buffer_store_dwordx4 {A(r,4)}, v{vA}, s[{sO}:{sO+3}], s{sT2} offen offset:{kk*1024} {self.opt.stmod}')

    def slow_path(self):
        I = self.I; p = self.p
        p.label('L_slow')
        I('s_waitcnt vmcnt(0) lgkmcnt(0)')
        I('v_mbcnt_lo_u32_b32 v1, -1, 0'); I('v_mbcnt_hi_u32_b32 v1, -1, v1')
        I('v_and_b32 v6, 31, v1'); I('v_lshrrev_b32 v7, 5, v1')
        I('v_lshlrev_b32 v2, 7, v6'); I('v_lshl_add_u32 v2, v7, 4, v2')
        I(f'v_mov_b32 v3, 0x{OOB_G:x}'); I('v_cmp_gt_u32 vcc, 4, v6'); I('v_cndmask_b32 v3, v3, v2, vcc')
        I('v_mov_b32 v5, 0xff800000')
        I('s_mov_b32 s56, 0'); I('s_mov_b32 s57, -1')
        I('s_lshl_b32 s58, s2, 4'); I('s_add_u32 s58, s58, s20'); I('s_mul_i32 s58, s58, 12800'); I('s_mov_b32 s59, 0')
        p.label('L_sbatch')
        E = lambda t, s: 16 + 16 * t + 4 * s
        KFs = lambda t, ks: 80 + 8 * t + 4 * ks
        VFs = lambda u: 112 + 4 * u
        QA = 172
        SS = lambda t: 188 + 16 * t
        for t in range(4): I(f's_add_u32 s{60+t}, s58, {4096*t}')
        for t in range(4):
            for s in range(4):
                I(f'buffer_load_dwordx4 {V(E(t,s),4)}, v{3 if t==3 else 2}, s[{sE}:{sE+3}], s{60+t} offen offset:{32*s}')
        for h in range(2):
            for t in range(4):
                acc = SS(t)
                for s in range(4): I(f'{MF32} {V(acc,16)}, {A(WF(1,h,s),4)}, {V(E(t,s),4)}, {"0" if s==0 else V(acc,16)}')
            for t in range(4):
                for i in range(8): self.cvt(KFs(t, 0) + i, SS(t) + 2 * i)
            for t in range(4):
                acc = SS(t)
                for s in range(4): I(f'{MF32} {V(acc,16)}, {V(E(t,s),4)}, {A(WF(2,h,s),4)}, {"0" if s==0 else V(acc,16)}')
            for t in range(4):
                for i in range(8 if t < 3 else 4): self.cvt(VFs(2 * t) + i, SS(t) + 2 * i)
            for ft in range(4):
                for s in range(4): I(f'{MF32} {V(QA,16)}, {A(WF(0,h,s),4)}, {V(E(ft,s),4)}, {"0" if s==0 else V(QA,16)}')
                for i in range(8): self.cvt(QA + i, QA + 2 * i)
                for t in range(4):
                    I(f'{MF32} {V(SS(t),16)}, {V(KFs(t,0),4)}, {V(QA,4)}, 0')
                    I(f'{MF32} {V(SS(t),16)}, {V(KFs(t,1),4)}, {V(QA+4,4)}, {V(SS(t),16)}')
                for r in range(4): I(f'v_cndmask_b32 v{SS(3)+r}, v{SS(3)+r}, v5, s[56:57]')
                vals = [SS(0) + i for i in range(52)]
                I(f'v_max3_f32 v8, v{vals[0]}, v{vals[1]}, v{vals[2]}')
                k = 3
                while k < 52:
                    if k + 1 < 52: I(f'v_max3_f32 v8, v8, v{vals[k]}, v{vals[k+1]}'); k += 2
                    else: I(f'v_max_f32 v8, v8, v{vals[k]}'); k += 1
                I('v_mov_b32 v9, v8'); I('v_permlane32_swap_b32 v9, v8'); I('v_max_f32 v8, v8, v9', 'true row max')
                for k in range(0, 52, 2):
                    I(f'v_pk_add_f32 {V(vals[k],2)}, {V(vals[k],2)}, v[8:9] op_sel_hi:[1,0] neg_lo:[0,1] neg_hi:[0,1]')
                for k in range(52): I(f'v_exp_f32 v{vals[k]}, v{vals[k]}')
                I(f'v_pk_add_f32 v[10:11], {V(vals[0],2)}, {V(vals[2],2)}')
                for k in range(4, 52, 2): I(f'v_pk_add_f32 v[10:11], v[10:11], {V(vals[k],2)}')
                I('v_add_f32 v10, v10, v11'); I('v_mov_b32 v11, v10'); I('v_permlane32_swap_b32 v11, v10')
                I('v_add_f32 v10, v10, v11'); I('v_rcp_f32 v10, v10')
                PF = {0: SS(0), 1: SS(0) + 4, 2: SS(0) + 8, 3: SS(0) + 12, 4: SS(2), 5: SS(2) + 4, 6: SS(2) + 8}
                for t in range(3):
                    for i in range(8): self.cvt(PF[2 * t] + i, SS(t) + 2 * i)
                self.cvt(PF[6], SS(3)); self.cvt(PF[6] + 1, SS(3) + 2)
                I(f'v_mov_b32 v{PF[6]+2}, 0'); I(f'v_mov_b32 v{PF[6]+3}, 0')
                RA = SS(1)
                for s in range(4): I(f'{MF32} {V(RA,16)}, {A(WF(3,h,s),4)}, {V(E(ft,s),4)}, {"0" if s==0 else V(RA,16)}')
                OA = QA
                for u in range(7): I(f'{MF32} {V(OA,16)}, {V(VFs(u),4)}, {V(PF[u],4)}, {"0" if u==0 else V(OA,16)}')
                for k in range(0, 16, 2):
                    I(f'v_pk_fma_f32 {V(OA+k,2)}, {V(OA+k,2)}, v[10:11], {V(RA+k,2)} op_sel_hi:[1,0,1]')
                for i in range(8): self.cvt(OA + i, OA + 2 * i)
                for i in range(8): I(f'v_pk_max_i16 v{OA+i}, v{OA+i}, 0')
                for k in range(2):
                    I(f'buffer_store_dwordx4 {V(OA+4*k,4)}, v{3 if ft==3 else 2}, s[{sO}:{sO+3}], s{60+ft} offen offset:{64*h+32*k}')
        I(f's_add_u32 s58, s58, {BSTRIDE}'); I('s_add_u32 s59, s59, 1'); I('s_cmp_lt_u32 s59, 4')
        I('s_nop 15')
        I('s_cbranch_scc1 L_sbatch')
        I('s_endpgm')

    def build(self):
        p = self.p; I = self.I; o = self.opt
        p.raw(HEADER.rstrip())
        p.raw(f'; @launch grid=(256,1,1) block=(256,1,1) lds={4*WSTRIDE}')
        p.raw('.amdgcn_target "amdgcn-amd-amdhsa--gfx950"')
        p.raw('.text')
        p.raw(f'.globl {NAME}_kernel')
        p.raw('.p2align 8')
        p.raw(f'.type {NAME}_kernel,@function')
        p.raw(f'{NAME}_kernel:')
        self.prologue()
        p.raw('L_main:   ;')
        self.begin()
        self.rem_proj(0)
        self.group([('s_barrier', dict(pt=[('LW', 'W')], xwr=[('B', 'W')], xrd=[('v', FD + 4)]))])
        for t in range(3):
            self.eload(t, rdy=600 + 400 * t)
        self.rem_loads(0, 0)
        self.tproj(0, 0); self.tproj(0, 1)
        self.qproj(0)
        self.rem_proj(1)
        self.stamp(QF[0] + 7)
        for bi in range(4):
            for j in range(6):
                self.block(bi, j, has_next=(bi < 3), dma_next=((sB, (bi + 1) * BSTRIDE) if bi < 3 else None))
                if j in (2, 5) or bi == 1: self.stamp(INV[j & 1])
        self.end()
        if o.stamps:
            self.stamp(final=True)
            I('s_memrealtime s[58:59]')
            I('s_waitcnt lgkmcnt(0)')
            I('s_mov_b32 s16, s18'); I('s_mov_b32 s17, s19'); I('s_mov_b32 s18, 0x1000000'); I('s_mov_b32 s19, 0x00020000')
            I('s_lshl_b32 s21, s2, 2'); I('s_add_u32 s21, s21, s20'); I('s_lshl_b32 s21, s21, 7')
            I('v_mov_b32 v1, 0')
            for k in range(22):
                I(f'v_mov_b32 v0, s{60+2*k if k < 21 else 58}')
                I(f'buffer_store_dword v0, v1, s[16:19], s21 offen offset:{4*k}')
        I(f'v_cmp_lt_u32 vcc, s{sLIM}, v{BAD}')
        I('s_cmp_lg_u64 vcc, 0')
        I('s_cbranch_scc1 L_slow')
        p.raw('L_end:')
        I('s_endpgm')
        self.slow_path()
        p.raw('.section .rodata,"a"')
        p.raw('.p2align 6')
        p.raw(f'.amdhsa_kernel {NAME}_kernel')
        p.raw('  .amdhsa_next_free_vgpr 512')
        p.raw(f'  .amdhsa_next_free_sgpr {102 if o.stamps else 72}')
        p.raw('  .amdhsa_accum_offset 256')
        p.raw('  .amdhsa_group_segment_fixed_size 0')
        p.raw('  .amdhsa_kernarg_size 64')
        p.raw('  .amdhsa_user_sgpr_count 2')
        p.raw('  .amdhsa_user_sgpr_kernarg_segment_ptr 1')
        p.raw('  .amdhsa_system_sgpr_workgroup_id_x 1')
        p.raw('.end_amdhsa_kernel')
        import asmlib
        asmlib.HX = o.hx
        p.finalize()
        return p.text()

if __name__ == '__main__':
    ap = argparse.ArgumentParser()
    ap.add_argument('-o', default=f'cdna_kernels/{NAME}.s')
    ap.add_argument('--nosched', action='store_true')
    ap.add_argument('--window', type=int, default=700)
    ap.add_argument('--ldmod', default='nt')
    ap.add_argument('--stmod', default='nt')
    ap.add_argument('--codepf', type=int, default=3)
    ap.add_argument('--stamps', type=int, default=0)
    ap.add_argument('--pscale', type=float, default=1.0)
    ap.add_argument('--ldslat', type=int, default=128)
    ap.add_argument('--safewar', type=int, default=0)
    ap.add_argument('--hx', type=int, default=0)
    ap.add_argument('--vmgap', type=int, default=250)
    o = ap.parse_args()
    sched.VM_GAP = o.vmgap
    import asmlib
    asmlib.SAFE_WAR = o.safewar
    HXV = o.hx
    sched.PIPE_SCALE = o.pscale; sched.LDS_LAT = o.ldslat
    txt = Gen(o).build()
    open(o.o, 'w').write(txt)
    import collections
    c = collections.Counter(l.split()[0] for l in txt.split('L_slow:')[0].split('\n') if l.startswith('    ') and not l.strip().startswith(';'))
    print('fast path instr counts:', sum(c.values()), {k: v for k, v in c.most_common(14)})
```

```python
import sys, struct, argparse
sys.path.insert(0, 'gen')
from asmlib import *
import sched
from sched import schedule

NAME = 'standalone__attention_interact_autoint__recsys'
HEADER = open('cdna_kernels/%s.s.ref' % NAME).read().split('; Override launch')[0]
def f32bits(x): return struct.unpack('<I', struct.pack('<f', x))[0]
CSCALE = f32bits((32.0 ** -0.5) * 1.4426950408889634)
MF32 = 'v_mfma_f32_32x32x16_bf16'
MF32K8 = 'v_mfma_f32_32x32x8_bf16'
MF16 = 'v_mfma_f32_16x16x32_bf16'
MF16K16 = 'v_mfma_f32_16x16x16_bf16'
OOB_G = 0x40000000
OOB_L = 0x40000
def A(a, n=1): return f'a{a}' if n == 1 else f'a[{a}:{a+n-1}]'

WF = lambda m, h, s: ((m * 2 + h) * 4 + s) * 4
EC = lambda t, s: 128 + 16 * t + 4 * s
KRA = lambda h, ks: 176 + 8 * h + 4 * ks
STR0 = 192; NSTR = 8; OUTB = 224
SEL = 240; ONE = 244; SEL16 = 248
VREM = lambda h: 250 + 2 * h
ACC = [0, 16, 32, 48]
PA = [64, 80]
QF = [96, 104]
LS = [112, 116]
SR = 120
INV = [124, 125]; BAD = 126
aE = 127; vA = 128; vB = 129; aOW = 130; aLIN = 131; aKR = 132; aQ1 = 133; aVR = 134; aRR = 135
aPW = 136; aPR = 137; vOR = 138; NEG = 139
FD = 140
RR = 156
KF = lambda h, t, ks: 160 + 24 * h + 8 * t + 4 * ks
VF = lambda h, t, sub: 208 + 24 * h + 8 * t + 4 * sub
sE = 24; sO = 28
sB = 40
sWB = 42
sT = 43; sT2 = 44; sIT = 45; sNX = 46; sPV = 47; sDM = 48
sB3 = 50; sVM = 52; sLIM = 54
WSTRIDE = 34816; L_OUT = 12288; L_REM = 24576; L_PSH = 32768
BSTRIDE = 4 * 12800

class Gen:
    def __init__(self, opt):
        self.opt = opt; self.p = Prog(); self.reg = None
        self.strn = 0; self.nstamp = 0; self.nocount = False
    def mk(self, text, comment=None, xrd=(), xwr=(), pw=(), pt=()):
        ins = Ins(text, comment)
        ins.xrd = set(xrd); ins.xwr = set(xwr); ins.pw = set(pw); ins.pt = set(pt)
        if ins.cls == 'vmem':
            if self.nocount: ins.comment = 'nocount'
        return ins
    def I(self, text, comment=None, **kw):
        ins = self.mk(text, comment, **kw)
        (self.p.items if self.reg is None else self.reg).append(ins)
    def group(self, lst):
        g = [self.mk(t, **kw) for t, kw in lst]
        if self.reg is None: self.p.items.extend(g)
        else: self.reg.append(g)
    def begin(self): self.reg = []
    def end(self):
        r = self.reg; self.reg = None
        if self.opt.nosched:
            flat = []
            for it in r: flat.extend(it if isinstance(it, list) else [it])
        else:
            flat, est = schedule(r, window=self.opt.window, verbose=True)
        self.p.items.extend(flat)
    def stamp(self, anchor=None, final=False):
        o = self.opt
        if not o.stamps: return
        if o.stamps == 4 and not (self.nstamp == 0 or final): return
        if final: self.nstamp = 19
        if self.nstamp >= 19 and not final: return
        k = self.nstamp; self.nstamp += 1
        self.I(f's_memtime s[{60+2*k}:{61+2*k}]', xrd=([('v', anchor)] if anchor is not None else []), xwr=[('X', 'stamp')])
    def slot(self):
        r = STR0 + 4 * (self.strn % NSTR); self.strn += 1
        return r
    def cvt(self, dst, a): self.I(f'v_cvt_pk_bf16_f32 v{dst}, v{a}, v{a+1}')

    def eload(self, t, rdy=0):
        for s in range(4):
            self.I(f'ds_read_b128 {A(EC(t,s),4)}, v{aE} offset:{t*4096+s*256}', xrd=[('L', f'E{t}'), ('RDY', rdy)], pt=[('L', f'E{t}')], pw=[('LR', f'E{t}')])
    def dma(self, base, boff, t):
        ld = self.opt.ldmod
        self.I(f's_add_u32 m0, s{sWB}, {t*4096}')
        self.I(f's_add_u32 s{sT}, s{base}, {boff + t*4096}')
        for g in range(4):
            self.I(f'buffer_load_dwordx4 v{vA if g < 2 else vB}, s[{sE}:{sE+3}], s{sT} offen offset:{g*1024} {ld} lds',
                   xwr=[('L', f'E{t}')], pw=[('L', f'E{t}')], pt=[('LR', f'E{t}')])

    def prologue(self):
        I = self.I; p = self.p; o = self.opt
        I('s_cmp_ge_u32 s2, 256')
        I('s_cbranch_scc1 L_end')
        self.stamp()
        if o.stamps: I('s_memrealtime s[100:101]'); I('s_load_dwordx2 s[18:19], s[0:1], 56')
        I('s_load_dwordx4 s[4:7], s[0:1], 0')
        I('s_load_dwordx4 s[8:11], s[0:1], 16')
        I('s_load_dwordx4 s[12:15], s[0:1], 32')
        I('v_lshrrev_b32 v2, 6, v0')
        I('v_and_b32 v1, 63, v0', 'lane')
        I('v_readfirstlane_b32 s20, v2', 'wave id = weight matrix handled in the prologue')
        if o.codepf:
            I('s_getpc_b64 s[16:17]')
            I('s_lshr_b32 s21, s2, 3'); I('s_and_b32 s21, s21, 3'); I(f's_mul_i32 s21, s21, {o.codepf*4096}')
            I('s_add_u32 s16, s16, s21'); I('s_addc_u32 s17, s17, 0')
            I('v_lshlrev_b32 v100, 4, v0', 'tid*16 : 4 KB per pass')
            I('v_mov_b32 v101, s17')
            I('v_add_co_u32 v100, vcc, s16, v100')
            I('v_addc_co_u32 v101, vcc, 0, v101, vcc')
            for k in range(o.codepf):
                if k:
                    I('v_add_co_u32 v100, vcc, 0x1000, v100')
                    I('v_addc_co_u32 v101, vcc, 0, v101, vcc')
                I(f'global_load_dwordx4 {A(STR0+4*k,4)}, v[100:101], off')
        I('v_and_b32 v6, 7, v1'); I('v_lshrrev_b32 v7, 3, v1')
        I(f'v_lshlrev_b32 v{vA}, 7, v6')
        I(f'v_xor_b32 v8, 1, v7')
        I(f'v_lshl_add_u32 v{vB}, v8, 4, v{vA}')
        I(f'v_lshl_add_u32 v{vA}, v7, 4, v{vA}')
        I('v_and_b32 v8, 3, v1', 'fq'); I('v_bfe_u32 v9, v1, 2, 1', 'bit2'); I('v_bfe_u32 v10, v1, 3, 1', 'bit3')
        I('v_bfe_u32 v11, v1, 4, 1', 'q&1'); I('v_lshrrev_b32 v12, 5, v1', 'q>>1')
        I(f'v_mul_u32_u24 v13, {BSTRIDE}, v10')
        I('v_lshl_add_u32 v13, v8, 7, v13')
        I('v_lshl_add_u32 v13, v12, 4, v13')
        I('v_add_u32 v13, 12288, v13')
        I(f'v_mov_b32 v14, 0x{OOB_G:x}')
        I('v_cmp_eq_u32 vcc, v9, v11')
        I('v_cndmask_b32 v13, v14, v13, vcc', 'remainder-row voffset')
        I(f's_lshl_b32 s{sB}, s2, 4'); I(f's_add_u32 s{sB}, s{sB}, s20'); I(f's_mul_i32 s{sB}, s{sB}, 12800')
        I(f's_mul_i32 s{sWB}, s20, {WSTRIDE}')
        I('v_bfe_u32 v15, v1, 2, 3', 'dg')
        I('s_cmp_eq_u32 s20, 3')
        I('s_cselect_b32 s36, 128, 64', 'row stride'); I('s_cselect_b32 s37, 64, 4096', 'head offset')
        I('s_lshl_b32 s38, s36, 3')
        I('v_mul_lo_u32 v4, v15, s38')
        I('v_lshl_add_u32 v4, v8, 4, v4')
        I('v_mul_lo_u32 v5, v12, s37')
        I('v_add_u32 v4, v4, v5')
        I('s_waitcnt lgkmcnt(0)')
        self.stamp()
        I('s_mov_b32 s32, s6'); I('s_mov_b32 s33, s7')
        I('s_cmp_eq_u32 s20, 1'); I('s_cselect_b32 s32, s8, s32'); I('s_cselect_b32 s33, s9, s33')
        I('s_cmp_eq_u32 s20, 2'); I('s_cselect_b32 s32, s10, s32'); I('s_cselect_b32 s33, s11, s33')
        I('s_cmp_eq_u32 s20, 3'); I('s_cselect_b32 s32, s12, s32'); I('s_cselect_b32 s33, s13, s33')
        I('s_mov_b32 s34, 8192'); I('s_mov_b32 s35, 0x00020000')
        I('s_mov_b32 s37, 0')
        for j in range(8):
            I(f'buffer_load_dwordx4 v[{160+4*j}:{163+4*j}], v4, s[32:35], s37 offen')
            if j < 7: I('s_add_u32 s37, s37, s36')
        for (d, src, n) in ((sE, 4, 52428800), (sO, 14, 52428800)):
            I(f's_mov_b32 s{d}, s{src}'); I(f's_mov_b32 s{d+1}, s{src+1}'); I(f's_mov_b32 s{d+2}, {n}'); I(f's_mov_b32 s{d+3}, 0x00020000')
        I(f's_add_u32 s{sT2}, s{sB}, {2*BSTRIDE}')
        for pr in range(2):
            for s in range(4):
                I(f'buffer_load_dwordx4 {V(224+16*pr+4*s,4)}, v13, s[{sE}:{sE+3}], s{sB if pr == 0 else sT2} offen offset:{32*s}')
        for t in range(3): self.dma(sB, 0, t)
        self.stamp()
        I('v_bfe_u32 v14, v1, 3, 2', 'g')
        I('v_xor_b32 v3, v12, v11')
        I(f'v_lshlrev_b32 v{aE}, 10, v14')
        I(f'v_lshl_add_u32 v{aOW}, v12, 7, v{aE}')
        I(f'v_lshl_add_u32 v{aE}, v3, 7, v{aE}')
        I(f'v_lshl_add_u32 v{aE}, v6, 4, v{aE}')
        I(f'v_add_u32 v{aE}, s{sWB}, v{aE}')
        I(f'v_lshl_add_u32 v{aOW}, v6, 4, v{aOW}')
        I(f'v_add_u32 v{aOW}, s{sWB}, v{aOW}')
        I(f'v_lshlrev_b32 v2, 4, v1', 'lane*16')
        I(f'v_add_u32 v{aLIN}, s{sWB}, v2')
        I(f's_add_u32 s45, s{sWB}, {L_REM}')
        I(f's_mov_b32 s{sB3}, 0xff00ff00'); I(f's_mov_b32 s{sB3+1}, 0xff00ff00')
        I(f's_mov_b32 s{sVM}, 0x00000f0f'); I(f's_mov_b32 s{sVM+1}, 0')
        I(f's_mov_b32 s{sLIM}, 0x5f800000', '2^64')
        I(f'v_mov_b32 v16, 0x{OOB_L:x}')
        I('v_lshlrev_b32 v17, 5, v8', 'fq*32')
        I('v_lshl_add_u32 v18, v12, 4, v17', '+(q>>1)*16')
        I('v_add_u32 v18, s45, v18')
        I('v_cmp_eq_u32 vcc, v9, v11')
        I('v_cndmask_b32 v18, v16, v18, vcc', 'valid iff (q&1)==bit2')
        I(f'v_cndmask_b32 v{aKR}, v18, v16, s[{sB3}:{sB3+1}]')
        I(f'v_cndmask_b32 v{aQ1}, v16, v18, s[{sB3}:{sB3+1}]')
        I(f'v_lshl_add_u32 v{aPR}, v10, 7, v18')
        I(f'v_add_u32 v{aPR}, {L_PSH - L_REM}, v{aPR}')
        I('v_mov_b32 v19, 0x3f803f80')
        I('v_cndmask_b32 v20, 0, v19, vcc')
        for k in range(4):
            I(f'v_accvgpr_write_b32 a{SEL+k}, v20'); I(f'v_accvgpr_write_b32 a{ONE+k}, v19')
        I('v_cmp_eq_u32 vcc, 0, v12')
        I('v_cndmask_b32 v20, 0, v20, vcc')
        for k in range(2): I(f'v_accvgpr_write_b32 a{SEL16+k}, v20')
        I('v_and_b32 v21, 31, v1')
        I('v_lshlrev_b32 v21, 3, v21', 'i*8')
        I('v_add_u32 v21, s45, v21')
        I(f'v_cndmask_b32 v{aVR}, v16, v21, vcc')
        I('v_lshl_add_u32 v22, v12, 11, v21', 'V rem write addr: + bb*2048')
        I('v_lshlrev_b32 v23, 4, v11')
        I('v_lshl_add_u32 v23, v12, 3, v23', '(q&1)*16+(q>>1)*8')
        I('v_add_u32 v24, v23, v17', '+fq*32')
        I('v_lshl_add_u32 v25, v9, 7, v24', '+bit2*128 : chunk index inside a 256 B block')
        I('v_add_u32 v25, s45, v25')
        I(f'v_lshl_add_u32 v{aRR}, v10, 8, v25', 'res rem read: +hd*256')
        I('v_lshl_add_u32 v26, v10, 11, v25', 'K/Q/res rem write addr: +bb*2048')
        I(f'v_lshl_add_u32 v{aPW}, v9, 8, v24')
        I(f'v_lshl_add_u32 v{aPW}, v10, 7, v{aPW}')
        I(f's_add_u32 s45, s{sWB}, {L_PSH}')
        I(f'v_add_u32 v{aPW}, s45, v{aPW}')
        I(f'v_lshl_add_u32 v{vOR}, v8, 7, v23')
        I(f'v_lshl_add_u32 v{vOR}, v10, 6, v{vOR}')
        I(f'v_lshl_add_u32 v{vOR}, v9, 5, v{vOR}')
        I(f'v_mov_b32 v{NEG}, 0xff800000')
        I(f'v_mov_b32 v{BAD}, 0')
        I(f'v_mov_b32 v{INV[0]}, v22', 'V rem write addr (prologue only)')
        I(f'v_mov_b32 v{INV[1]}, v26', 'K/Q/res rem write addr (prologue only)')
        I('v_lshlrev_b32 v5, 12, v12')
        I('v_lshl_add_u32 v5, v15, 9, v5')
        I('v_bfe_u32 v14, v8, 1, 1'); I('v_lshl_add_u32 v5, v14, 8, v5')
        I('v_and_b32 v14, 1, v8'); I('v_lshl_add_u32 v5, v14, 6, v5')
        I(f'v_add_u32 v5, s{sWB}, v5')
        I('s_cmp_eq_u32 s20, 0'); I(f's_cselect_b32 s39, 0x{CSCALE:08x}, 1.0', 'scale*log2e folded into Wq')
        for jp in range(4):
            for j in (2 * jp, 2 * jp + 1):
                for b in range(8):
                    src = 160 + 4 * j + (b >> 1); t = 32 + 8 * (j & 1) + b
                    if b & 1: I(f'v_and_b32 v{t}, 0xffff0000, v{src}')
                    else: I(f'v_lshlrev_b32 v{t}, 16, v{src}')
                    I(f'v_mul_f32 v{t}, s39, v{t}')
            for b in range(8):
                I(f'v_cvt_pk_bf16_f32 v{64+4*b+jp}, v{32+b}, v{40+b}')
        for b in range(8):
            I(f'ds_write_b128 v5, v[{64+4*b}:{67+4*b}] offset:{L_OUT + (b>>2)*128 + (b&3)*16}')
        I('s_waitcnt lgkmcnt(0)')
        I('s_barrier')
        self.stamp()
        I(f'v_add_u32 v3, {2*WSTRIDE}, v2')
        for m in (1, 2, 0, 3):
            for h in range(2):
                for s in range(4):
                    I(f'ds_read_b128 {A(WF(m,h,s),4)}, v{2 if m < 2 else 3} offset:{(m&1)*WSTRIDE + L_OUT + h*4096 + s*1024}', pw=[('LW', 'W')])

    def rem_proj(self, pr):
        I = self.I
        ER = lambda s: 224 + 16 * pr + 4 * s
        def D(m, h):
            k = 2 * m + h
            if pr == 0: return 160 + 4 * k if k < 6 else FD + 4 * (k - 6)
            return 184 + 4 * k if k < 6 else 232 + 4 * (k - 6)
        for m in (1, 2, 0, 3):
            for h in range(2):
                d = D(m, h)
                for s in range(4):
                    c = '0' if s == 0 else V(d, 4)
                    if m == 2: I(f'{MF16} {V(d,4)}, {V(ER(s),4)}, {A(WF(m,h,s),4)}, {c}')
                    else: I(f'{MF16} {V(d,4)}, {A(WF(m,h,s),4)}, {V(ER(s),4)}, {c}')
                self.cvt(d, d); self.cvt(d + 1, d + 2)
                off = pr * 4096 + h * 256 + {1: 0, 0: 512, 2: 1024, 3: 1536}[m]
                I(f'ds_write_b64 v{INV[0] if m == 2 else INV[1]}, {V(d,2)} offset:{off}', xwr=[('L', 'REM')])

    def tproj(self, h, t):
        I = self.I
        for m in (1, 2):
            acc = PA[m - 1]
            for s in range(4):
                c = '0' if s == 0 else V(acc, 16)
                if m == 1: I(f'{MF32} {V(acc,16)}, {A(WF(1,h,s),4)}, {A(EC(t,s),4)}, {c}')
                else: I(f'{MF32} {V(acc,16)}, {A(EC(t,s),4)}, {A(WF(2,h,s),4)}, {c}')
            dst = KF(h, t, 0) if m == 1 else VF(h, t, 0)
            for i in range(8): self.cvt(dst + i, acc + 2 * i)

    def qproj(self, j):
        h, ft = divmod(j % 6, 3)
        X = ACC[2 + (j & 1)]
        for s in range(4):
            self.I(f'{MF32} {V(X,16)}, {A(WF(0,h,s),4)}, {A(EC(ft,s),4)}, {"0" if s == 0 else V(X,16)}')
        for i in range(8): self.cvt(QF[j & 1] + i, X + 2 * i)

    def rem_loads(self, bi, h):
        ro = bi * 2048
        for ks in range(2):
            self.I(f'ds_read_b128 {A(KRA(h,ks),4)}, v{aKR} offset:{ro + h*256 + ks*128}', xrd=[('L', 'REM')])
        self.I(f'ds_read_b64 {A(VREM(h),2)}, v{aVR} offset:{ro + 1024 + h*256}', xrd=[('L', 'REM')])

    def frem_s(self, bi, h):
        I = self.I
        ro = bi * 2048
        for ks in range(2):
            qb = self.slot()
            I(f'ds_read_b128 {A(qb,4)}, v{aKR if h == 0 else aQ1} offset:{ro + 512 + h*256 + ks*128}', xrd=[('L', 'REM')])
            for t in range(4):
                a = V(KF(h, t, ks), 4) if t < 3 else A(KRA(h, ks), 4)
                c = '0' if (h == 0 and ks == 0) else V(FD + 4 * t, 4)
                I(f'{MF16} {V(FD+4*t,4)}, {a}, {A(qb,4)}, {c}')

    def frem_rest(self, bi):
        I = self.I
        D = lambda t: FD + 4 * t
        for r in range(4):
            I(f'v_cndmask_b32 v{D(3)+r}, v{NEG}, v{D(3)+r}, s[{sVM}:{sVM+1}]')
        for t in range(4):
            for r in range(4): I(f'v_exp_f32 v{D(t)+r}, v{D(t)+r}')
            self.cvt(D(t), D(t)); self.cvt(D(t) + 1, D(t) + 2)
            I(f'ds_write_b64 v{aPW}, {V(D(t),2)} offset:{t*512}', xwr=[('L', 'PSH')])
        DH = [FD, FD + 4]; L = FD + 8
        I(f'ds_read_b64 {V(RR,2)}, v{aRR} offset:{bi*2048 + 1536}', xrd=[('L', 'REM')])
        for u in range(7):
            r = self.slot()
            t, sub = u >> 1, u & 1
            if u < 6:
                I(f'ds_read_b128 {A(r,4)}, v{aPR} offset:{u*256}', xrd=[('L', 'PSH')])
                for h in range(2):
                    I(f'{MF16} {V(DH[h],4)}, {V(VF(h,t,sub),4)}, {A(r,4)}, {"0" if u == 0 else V(DH[h],4)}')
                I(f'{MF16} {V(L,4)}, {A(ONE,4)}, {A(r,4)}, {"0" if u == 0 else V(L,4)}')
            else:
                I(f'ds_read_b64 {A(r,2)}, v{aPR} offset:{u*256}', xrd=[('L', 'PSH')])
                for h in range(2):
                    I(f'{MF16K16} {V(DH[h],4)}, {A(VREM(h),2)}, {A(r,2)}, {V(DH[h],4)}')
                I(f'{MF16K16} {V(L,4)}, {A(ONE,2)}, {A(r,2)}, {V(L,4)}')
        I(f'v_rcp_f32 v{L+1}, v{L}')
        I(f'v_max3_u32 v{BAD}, v{BAD}, v{L}, v{L+1}')
        for r in range(4):
            I(f'v_cndmask_b32 v{DH[0]+r}, v{DH[0]+r}, v{DH[1]+r}, s[{sB3}:{sB3+1}]')
            if r & 1: I(f'v_and_b32 v{DH[1]+r}, 0xffff0000, v{RR+(r>>1)}')
            else: I(f'v_lshlrev_b32 v{DH[1]+r}, 16, v{RR+(r>>1)}')
            I(f'v_fma_f32 v{DH[0]+r}, v{DH[0]+r}, v{L+1}, v{DH[1]+r}')
        self.cvt(DH[0], DH[0]); self.cvt(DH[0] + 1, DH[0] + 2)
        for k in range(2): I(f'v_pk_max_i16 v{DH[0]+k}, v{DH[0]+k}, 0')
        I(f's_add_u32 s{sNX}, s{sB}, {bi*BSTRIDE + 12288}')
        I(f'buffer_store_dwordx2 {V(DH[0],2)}, v{vOR}, s[{sO}:{sO+3}], s{sNX} offen {self.opt.stmod}')

    def block(self, bi, j, has_next, dma_next, part=3, sbase=None):
        I = self.I
        h, ft = divmod(j, 3)
        O = ACC[0]; SA = ACC[1]; X = ACC[2 + (j & 1)]
        Q = QF[j & 1]; L = LS[j & 1]; inv = INV[j & 1]
        if sbase is None: sbase = sB
        def smm(t, dst):
            I(f'{MF32} {V(dst,16)}, {V(KF(h,t,0),4)}, {V(Q,4)}, 0')
            I(f'{MF32} {V(dst,16)}, {V(KF(h,t,1),4)}, {V(Q+4,4)}, {V(dst,16)}')
        def soft(buf):
            for i in range(8):
                I(f'v_exp_f32 v{buf+2*i}, v{buf+2*i}')
                I(f'v_exp_f32 v{buf+2*i+1}, v{buf+2*i+1}')
                self.cvt(buf + i, buf + 2 * i)
        def pv(t, buf):
            for sub in range(2):
                first = (t == 0 and sub == 0)
                I(f'{MF32} {V(O,16)}, {V(VF(h,t,sub),4)}, {V(buf+4*sub,4)}, {"0" if first else V(O,16)}')
                I(f'{MF16} {V(L,4)}, {A(SEL,4)}, {V(buf+4*sub,4)}, {"0" if first else V(L,4)}')
        if part & 1:
            smm(0, SA); smm(1, X)
            if ft == 0: self.tproj(h, 2)
            for ks in range(2):
                I(f'{MF16} {V(SR,4)}, {A(KRA(h,ks),4)}, {V(Q+4*ks,4)}, {"0" if ks == 0 else V(SR,4)}')
            if j == 1: self.rem_loads(bi, 1)
            if j == 1: self.frem_s(bi, 0)
            if j == 3: self.frem_s(bi, 1); self.frem_rest(bi)
            soft(SA); pv(0, SA)
            if j < 5 or has_next: self.qproj(j + 1)
            soft(X)
            smm(2, SA)
            pv(1, X)
            if ft > 0 and (h == 0 or has_next): self.tproj(1 - h, ft - 1)
            for r in range(4): I(f'v_exp_f32 v{SR+r}, v{SR+r}')
            self.cvt(SR, SR); self.cvt(SR + 1, SR + 2)
            I(f'{MF32K8} {V(O,16)}, {A(VREM(h),2)}, {V(SR,2)}, {V(O,16)}')
            I(f'{MF16K16} {V(L,4)}, {A(SEL16,2)}, {V(SR,2)}, {V(L,4)}')
            for s in range(4):
                I(f'{MF32} {V(X,16)}, {A(WF(3,h,s),4)}, {A(EC(ft,s),4)}, {"0" if s == 0 else V(X,16)}')
            if h == 1 and has_next: self.eload(ft)
            if h == 0 and dma_next is not None: self.dma(dma_next[0], dma_next[1], ft)
            if j == 5 and has_next: self.rem_loads(bi + 1, 0)
        if part & 2:
            soft(SA); pv(2, SA)
            I(f'v_rcp_f32 v{inv}, v{L}')
            I(f'v_max3_u32 v{BAD}, v{BAD}, v{L}, v{inv}')
            for r in range(16): I(f'v_fma_f32 v{X+r}, v{O+r}, v{inv}, v{X+r}')
            for i in range(8):
                self.cvt(X + i, X + 2 * i)
                I(f'v_pk_max_i16 v{X+i}, v{X+i}, 0')
            for a1 in range(2):
                I(f'ds_write_b128 v{aOW}, {V(X+4*a1,4)} offset:{L_OUT + ft*4096 + h*512 + a1*256}', xwr=[('L', f'O{ft}')], xrd=[('B', 'W')])
        if (part & 2 and not part & 8) or part & 4:
            if h == 1:
                I(f's_add_u32 s{sT2}, s{sbase}, {bi*BSTRIDE + ft*4096}')
                for kk in range(4):
                    r = OUTB + 4 * kk
                    I(f'ds_read_b128 {A(r,4)}, v{aLIN} offset:{L_OUT + ft*4096 + kk*1024}', xrd=[('L', f'O{ft}')])
                    I(f'buffer_store_dwordx4 {A(r,4)}, v{vA}, s[{sO}:{sO+3}], s{sT2} offen offset:{kk*1024} {self.opt.stmod}')

    def slow_path(self):
        I = self.I; p = self.p
        p.label('L_slow')
        I('s_waitcnt vmcnt(0) lgkmcnt(0)')
        I('v_mbcnt_lo_u32_b32 v1, -1, 0'); I('v_mbcnt_hi_u32_b32 v1, -1, v1')
        I('v_and_b32 v6, 31, v1'); I('v_lshrrev_b32 v7, 5, v1')
        I('v_lshlrev_b32 v2, 7, v6'); I('v_lshl_add_u32 v2, v7, 4, v2')
        I(f'v_mov_b32 v3, 0x{OOB_G:x}'); I('v_cmp_gt_u32 vcc, 4, v6'); I('v_cndmask_b32 v3, v3, v2, vcc')
        I('v_mov_b32 v5, 0xff800000')
        I('s_mov_b32 s56, 0'); I('s_mov_b32 s57, -1')
        I('s_lshl_b32 s58, s2, 4'); I('s_add_u32 s58, s58, s20'); I('s_mul_i32 s58, s58, 12800'); I('s_mov_b32 s59, 0')
        p.label('L_sbatch')
        E = lambda t, s: 16 + 16 * t + 4 * s
        KFs = lambda t, ks: 80 + 8 * t + 4 * ks
        VFs = lambda u: 112 + 4 * u
        QA = 172
        SS = lambda t: 188 + 16 * t
        for t in range(4): I(f's_add_u32 s{60+t}, s58, {4096*t}')
        for t in range(4):
            for s in range(4):
                I(f'buffer_load_dwordx4 {V(E(t,s),4)}, v{3 if t==3 else 2}, s[{sE}:{sE+3}], s{60+t} offen offset:{32*s}')
        for h in range(2):
            for t in range(4):
                acc = SS(t)
                for s in range(4): I(f'{MF32} {V(acc,16)}, {A(WF(1,h,s),4)}, {V(E(t,s),4)}, {"0" if s==0 else V(acc,16)}')
            for t in range(4):
                for i in range(8): self.cvt(KFs(t, 0) + i, SS(t) + 2 * i)
            for t in range(4):
                acc = SS(t)
                for s in range(4): I(f'{MF32} {V(acc,16)}, {V(E(t,s),4)}, {A(WF(2,h,s),4)}, {"0" if s==0 else V(acc,16)}')
            for t in range(4):
                for i in range(8 if t < 3 else 4): self.cvt(VFs(2 * t) + i, SS(t) + 2 * i)
            for ft in range(4):
                for s in range(4): I(f'{MF32} {V(QA,16)}, {A(WF(0,h,s),4)}, {V(E(ft,s),4)}, {"0" if s==0 else V(QA,16)}')
                for i in range(8): self.cvt(QA + i, QA + 2 * i)
                for t in range(4):
                    I(f'{MF32} {V(SS(t),16)}, {V(KFs(t,0),4)}, {V(QA,4)}, 0')
                    I(f'{MF32} {V(SS(t),16)}, {V(KFs(t,1),4)}, {V(QA+4,4)}, {V(SS(t),16)}')
                for r in range(4): I(f'v_cndmask_b32 v{SS(3)+r}, v{SS(3)+r}, v5, s[56:57]')
                vals = [SS(0) + i for i in range(52)]
                I(f'v_max3_f32 v8, v{vals[0]}, v{vals[1]}, v{vals[2]}')
                k = 3
                while k < 52:
                    if k + 1 < 52: I(f'v_max3_f32 v8, v8, v{vals[k]}, v{vals[k+1]}'); k += 2
                    else: I(f'v_max_f32 v8, v8, v{vals[k]}'); k += 1
                I('v_mov_b32 v9, v8'); I('v_permlane32_swap_b32 v9, v8'); I('v_max_f32 v8, v8, v9', 'true row max')
                for k in range(0, 52, 2):
                    I(f'v_pk_add_f32 {V(vals[k],2)}, {V(vals[k],2)}, v[8:9] op_sel_hi:[1,0] neg_lo:[0,1] neg_hi:[0,1]')
                for k in range(52): I(f'v_exp_f32 v{vals[k]}, v{vals[k]}')
                I(f'v_pk_add_f32 v[10:11], {V(vals[0],2)}, {V(vals[2],2)}')
                for k in range(4, 52, 2): I(f'v_pk_add_f32 v[10:11], v[10:11], {V(vals[k],2)}')
                I('v_add_f32 v10, v10, v11'); I('v_mov_b32 v11, v10'); I('v_permlane32_swap_b32 v11, v10')
                I('v_add_f32 v10, v10, v11'); I('v_rcp_f32 v10, v10')
                PF = {0: SS(0), 1: SS(0) + 4, 2: SS(0) + 8, 3: SS(0) + 12, 4: SS(2), 5: SS(2) + 4, 6: SS(2) + 8}
                for t in range(3):
                    for i in range(8): self.cvt(PF[2 * t] + i, SS(t) + 2 * i)
                self.cvt(PF[6], SS(3)); self.cvt(PF[6] + 1, SS(3) + 2)
                I(f'v_mov_b32 v{PF[6]+2}, 0'); I(f'v_mov_b32 v{PF[6]+3}, 0')
                RA = SS(1)
                for s in range(4): I(f'{MF32} {V(RA,16)}, {A(WF(3,h,s),4)}, {V(E(ft,s),4)}, {"0" if s==0 else V(RA,16)}')
                OA = QA
                for u in range(7): I(f'{MF32} {V(OA,16)}, {V(VFs(u),4)}, {V(PF[u],4)}, {"0" if u==0 else V(OA,16)}')
                for k in range(0, 16, 2):
                    I(f'v_pk_fma_f32 {V(OA+k,2)}, {V(OA+k,2)}, v[10:11], {V(RA+k,2)} op_sel_hi:[1,0,1]')
                for i in range(8): self.cvt(OA + i, OA + 2 * i)
                for i in range(8): I(f'v_pk_max_i16 v{OA+i}, v{OA+i}, 0')
                for k in range(2):
                    I(f'buffer_store_dwordx4 {V(OA+4*k,4)}, v{3 if ft==3 else 2}, s[{sO}:{sO+3}], s{60+ft} offen offset:{64*h+32*k}')
        I(f's_add_u32 s58, s58, {BSTRIDE}'); I('s_add_u32 s59, s59, 1'); I('s_cmp_lt_u32 s59, 4')
        I('s_nop 15')
        I('s_cbranch_scc1 L_sbatch')
        I('s_endpgm')

    def build(self):
        p = self.p; I = self.I; o = self.opt
        p.raw(HEADER.rstrip())
        p.raw(f'; @launch grid=(256,1,1) block=(256,1,1) lds={4*WSTRIDE}')
        p.raw('.amdgcn_target "amdgcn-amd-amdhsa--gfx950"')
        p.raw('.text')
        p.raw(f'.globl {NAME}_kernel')
        p.raw('.p2align 8')
        p.raw(f'.type {NAME}_kernel,@function')
        p.raw(f'{NAME}_kernel:')
        self.prologue()
        p.raw('L_main:   ;')
        self.begin()
        self.rem_proj(0)
        self.group([('s_barrier', dict(pt=[('LW', 'W')], xwr=[('B', 'W')], xrd=[('v', FD + 4)]))])
        for t in range(3):
            self.eload(t, rdy=600 + 400 * t)
        self.rem_loads(0, 0)
        self.tproj(0, 0); self.tproj(0, 1)
        self.qproj(0)
        self.rem_proj(1)
        self.stamp(QF[0] + 7)
        if not o.loop:
            for bi in range(4):
                for j in range(6):
                    self.block(bi, j, has_next=(bi < 3), dma_next=((sB, (bi + 1) * BSTRIDE) if bi < 3 else None))
                    if j in (2, 5) or bi == 1: self.stamp(INV[j & 1])
            self.end()
        else:
            for r in range(16):
                I(f'v_mov_b32 v{ACC[1]+r}, 0'); I(f'v_mov_b32 v{ACC[0]+r}, 0'); I(f'v_mov_b32 v{ACC[3]+r}, 0')
            for r in range(4): I(f'v_mov_b32 v{LS[1]+r}, 1.0')
            for r in range(8): I(f'v_mov_b32 v{VF(1,2,0)+r}, 0')
            I(f's_mov_b32 s{sPV}, 0x{OOB_G:x}', 'previous batch base: out of range on the first pass')
            I(f's_add_u32 s{sDM}, s{sB}, {BSTRIDE}', 'batch to prefetch')
            I(f's_mov_b32 s{sIT}, 0')
            self.end()
            I('s_waitcnt lgkmcnt(0)')
            I('s_nop 7')
            p.raw('.p2align 6')
            p.raw('L_loop:   ;')
            p.items.append(('PH', []))
            self.begin()
            self.block(0, 4, True, None, part=4, sbase=sPV)
            self.block(0, 5, True, None, part=2, sbase=sPV)
            for j in range(5):
                self.block(0, j, True, (sDM, 0), part=(3 if j < 4 else 11))
            self.block(0, 5, True, None, part=1)
            for r in (aKR, aQ1, aVR, aRR): I(f'v_add_u32 v{r}, 2048, v{r}')
            I(f's_mov_b32 s{sPV}, s{sB}')
            I(f's_add_u32 s{sB}, s{sB}, {BSTRIDE}')
            I(f's_add_u32 s{sDM}, s{sDM}, {BSTRIDE}')
            self.end()
            I(f's_add_u32 s{sIT}, s{sIT}, 1')
            I(f's_cmp_eq_u32 s{sIT}, 3')
            I(f's_cselect_b32 s{sDM}, 0x{OOB_G:x}, s{sDM}', 'no batch left to prefetch')
            I('s_waitcnt lgkmcnt(0)')
            I(f's_cmp_lt_u32 s{sIT}, 4')
            I('s_nop 5', 'MFMA results of the body end vs first readers of the next pass')
            I('s_cbranch_scc1 L_loop', 'nowait')
            self.begin()
            self.block(0, 4, False, None, part=4, sbase=sPV)
            self.block(0, 5, False, None, part=2, sbase=sPV)
            sched.VM_GAP = 0
            self.end()
        if o.stamps:
            self.stamp(final=True)
            I('s_memrealtime s[58:59]')
            I('s_waitcnt lgkmcnt(0)')
            I('s_mov_b32 s16, s18'); I('s_mov_b32 s17, s19'); I('s_mov_b32 s18, 0x1000000'); I('s_mov_b32 s19, 0x00020000')
            I('s_lshl_b32 s21, s2, 2'); I('s_add_u32 s21, s21, s20'); I('s_lshl_b32 s21, s21, 7')
            I('v_mov_b32 v1, 0')
            for k in range(22):
                I(f'v_mov_b32 v0, s{60+2*k if k < 21 else 58}')
                I(f'buffer_store_dword v0, v1, s[16:19], s21 offen offset:{4*k}')
        I(f'v_cmp_lt_u32 vcc, s{sLIM}, v{BAD}')
        I('s_cmp_lg_u64 vcc, 0')
        I('s_cbranch_scc1 L_slow')
        p.raw('L_end:')
        I('s_endpgm')
        self.slow_path()
        p.raw('.section .rodata,"a"')
        p.raw('.p2align 6')
        p.raw(f'.amdhsa_kernel {NAME}_kernel')
        p.raw('  .amdhsa_next_free_vgpr 512')
        p.raw(f'  .amdhsa_next_free_sgpr {102 if o.stamps else 72}')
        p.raw('  .amdhsa_accum_offset 256')
        p.raw('  .amdhsa_group_segment_fixed_size 0')
        p.raw('  .amdhsa_kernarg_size 64')
        p.raw('  .amdhsa_user_sgpr_count 2')
        p.raw('  .amdhsa_user_sgpr_kernarg_segment_ptr 1')
        p.raw('  .amdhsa_system_sgpr_workgroup_id_x 1')
        p.raw('.end_amdhsa_kernel')
        import asmlib
        asmlib.HX = o.hx
        p.finalize()
        return p.text()

if __name__ == '__main__':
    ap = argparse.ArgumentParser()
    ap.add_argument('-o', default=f'cdna_kernels/{NAME}.s')
    ap.add_argument('--nosched', action='store_true')
    ap.add_argument('--window', type=int, default=700)
    ap.add_argument('--ldmod', default='nt')
    ap.add_argument('--stmod', default='nt')
    ap.add_argument('--codepf', type=int, default=3)
    ap.add_argument('--stamps', type=int, default=0)
    ap.add_argument('--pscale', type=float, default=1.0)
    ap.add_argument('--ldslat', type=int, default=128)
    ap.add_argument('--safewar', type=int, default=0)
    ap.add_argument('--hx', type=int, default=0)
    ap.add_argument('--vmgap', type=int, default=250)
    ap.add_argument('--loop', type=int, default=1)
    o = ap.parse_args()
    sched.VM_GAP = o.vmgap
    import asmlib
    asmlib.SAFE_WAR = o.safewar
    HXV = o.hx
    sched.PIPE_SCALE = o.pscale; sched.LDS_LAT = o.ldslat
    txt = Gen(o).build()
    open(o.o, 'w').write(txt)
    import collections
    c = collections.Counter(l.split()[0] for l in txt.split('L_slow:')[0].split('\n') if l.startswith('    ') and not l.strip().startswith(';'))
    print('fast path instr counts:', sum(c.values()), {k: v for k, v in c.most_common(14)})
```

```python
import re

REG_RE = re.compile(r'^(-|abs\()?([vas])(\d+)\)?$')
RNG_RE = re.compile(r'^(-|abs\()?([vas])\[(\d+):(\d+)\]\)?$')

def regs_of(tok):
    tok = tok.strip()
    m = REG_RE.match(tok)
    if m:
        return [(m.group(2), int(m.group(3)))]
    m = RNG_RE.match(tok)
    if m:
        return [(m.group(2), i) for i in range(int(m.group(3)), int(m.group(4)) + 1)]
    if tok == 'vcc':
        return [('s', 106), ('s', 107)]
    if tok == 'exec':
        return [('s', 126), ('s', 127)]
    if tok == 'm0':
        return [('s', 124)]
    if tok == 'scc':
        return [('s', 200)]
    return []

TRANS = ('v_exp_f32', 'v_log_f32', 'v_rcp_f32', 'v_rsq_f32', 'v_sqrt_f32', 'v_sin_f32', 'v_cos_f32')

class Ins:
    __slots__ = ('text', 'op', 'cls', 'rd', 'wr', 'srcc', 'ab', 'passes', 'comment', 'lds_dma', 'wide_store', 'extra', 'xrd', 'xwr', 'pw', 'pt')
    def __init__(self, text, comment=None):
        self.text = text
        self.comment = comment
        self.xrd = set(); self.xwr = set()
        self.pw = set(); self.pt = set()
        parts = text.split(None, 1)
        self.op = parts[0]
        rest = parts[1] if len(parts) > 1 else ''
        ops = []
        cur = ''
        depth = 0
        for ch in rest:
            if ch == '[': depth += 1
            if ch == ']': depth -= 1
            if ch == ',' and depth == 0:
                ops.append(cur.strip()); cur = ''
            else:
                cur += ch
        if cur.strip(): ops.append(cur.strip())
        mods = []
        if ops:
            toks = ops[-1].split()
            ops[-1] = toks[0]
            mods = toks[1:]
        op = self.op
        self.rd = set(); self.wr = set(); self.srcc = set(); self.ab = set()
        self.passes = 0; self.lds_dma = False; self.wide_store = False
        self.extra = None
        R = lambda i: regs_of(ops[i]) if i < len(ops) else []
        if op.startswith('v_smfmac'):
            self.cls = 'mfma'
            self.passes = 8 if '32x32' in op else 4
            self.wr |= set(R(0)); self.ab |= set(R(1)) | set(R(2)) | set(R(3)); self.srcc |= set(R(0))
            self.rd |= self.ab | self.srcc
        elif op.startswith('v_mfma'):
            self.cls = 'mfma'
            self.passes = 8 if '32x32' in op else 4
            self.wr |= set(R(0)); self.ab |= set(R(1)) | set(R(2)); self.srcc |= set(R(3))
            self.rd |= self.ab | self.srcc
        elif op.startswith('v_cmp'):
            self.cls = 'valu'
            self.wr |= set(R(0))
            for i in range(1, len(ops)): self.rd |= set(R(i))
        elif op.startswith('v_permlane') and 'swap' in op:
            self.cls = 'valu'
            self.wr |= set(R(0)) | set(R(1)); self.rd |= set(R(0)) | set(R(1))
        elif op.startswith('v_'):
            self.cls = 'trans' if op.replace('_e32', '').replace('_e64', '') in TRANS else 'valu'
            self.wr |= set(R(0))
            start = 1
            if op.startswith(('v_add_co', 'v_sub_co', 'v_addc_co', 'v_subb_co')):
                self.wr |= set(R(1)); start = 2
            for i in range(start, len(ops)): self.rd |= set(R(i))
            if op.startswith(('v_fmac', 'v_pk_fmac', 'v_dot2c')): self.rd |= set(R(0))
            if op.startswith('v_cndmask') and len(ops) == 3: self.rd |= set(regs_of('vcc'))
        elif op.startswith('ds_read') or op.startswith('ds_bpermute') or op.startswith('ds_permute') or op.startswith('ds_swizzle'):
            self.cls = 'lds'
            self.wr |= set(R(0))
            for i in range(1, len(ops)): self.rd |= set(R(i))
        elif op.startswith('ds_write'):
            self.cls = 'lds'
            for i in range(len(ops)): self.rd |= set(R(i))
        elif op.startswith('buffer_load') or op.startswith('global_load'):
            self.cls = 'vmem'
            if 'lds' in mods or '_lds_' in op:
                self.lds_dma = True
                for i in range(len(ops)): self.rd |= set(R(i))
                self.rd |= set(regs_of('m0'))
            else:
                self.wr |= set(R(0))
                for i in range(1, len(ops)): self.rd |= set(R(i))
        elif op.startswith('buffer_store') or op.startswith('global_store') or op.startswith('buffer_atomic'):
            self.cls = 'vmem'
            for i in range(len(ops)): self.rd |= set(R(i))
            if 'x4' in op or 'x3' in op:
                self.wide_store = True
                self.extra = set(R(0)) if op.startswith('buffer') else set(R(1))
        elif op.startswith('s_load') or op.startswith('s_memtime') or op.startswith('s_memrealtime') or op.startswith('s_buffer_load'):
            self.cls = 'smem'
            self.wr |= set(R(0))
            for i in range(1, len(ops)): self.rd |= set(R(i))
        elif op in ('s_nop', 's_waitcnt', 's_barrier', 's_endpgm', 's_setprio', 's_sleep') or op.startswith(('s_branch', 's_cbranch')):
            self.cls = 'ctl'
        elif op.startswith('s_cmp') or op.startswith('s_bitcmp'):
            self.cls = 'salu'
            for i in range(len(ops)): self.rd |= set(R(i))
            self.wr |= set(regs_of('scc'))
        elif op.startswith('s_'):
            self.cls = 'salu'
            self.wr |= set(R(0))
            for i in range(1, len(ops)): self.rd |= set(R(i))
            if 'saveexec' in op:
                self.wr |= set(regs_of('exec')); self.rd |= set(regs_of('exec'))
            if op.startswith(('s_cselect', 's_addc', 's_subb')): self.rd |= set(regs_of('scc'))
            if not op.startswith(('s_mov', 's_cselect', 's_getpc', 's_mul')): self.wr |= set(regs_of('scc'))
        else:
            raise ValueError('unknown op ' + text)

    def states(self):
        if self.op == 's_nop':
            return int(self.text.split()[1]) + 1
        return 1

def is_valu(i): return i.cls in ('valu', 'trans')
def vg(s): return set(r for r in s if r[0] in 'va')
def sg(s): return set(r for r in s if r[0] == 's')

HX = 0
def need_states(p, c):
    n = 0
    if p.cls == 'mfma':
        big = p.passes == 8
        if c.cls == 'mfma':
            if p.wr & c.ab: n = max(n, 12 if big else 8)
            if p.wr & c.srcc:
                if p.wr == c.srcc and p.op == c.op and not (HX & 8): pass
                else: n = max(n, 10 if big else 6)
            elif p.wr & c.wr:
                n = max(n, 10 if big else 6)
        elif is_valu(c) or c.cls in ('lds', 'vmem'):
            if p.wr & (c.rd | c.wr): n = max(n, (12 if big else 8) + (6 if HX & 4 else 0))
            if is_valu(c) and (p.srcc & c.wr): n = max(n, 7 if big else 3)
            if HX & 1 and is_valu(c) and (p.ab & c.wr): n = max(n, 8 if big else 4)
            if HX & 2 and not is_valu(c) and (p.ab & c.wr): n = max(n, 8)
    elif is_valu(p):
        pw_v = vg(p.wr); pw_s = sg(p.wr)
        if c.cls == 'mfma' and (pw_v & c.rd): n = max(n, 4 if HX & 16 else 2)
        if p.cls == 'trans' and c.cls == 'valu' and (pw_v & c.rd): n = max(n, 1)
        if p.cls == 'trans' and c.cls in ('lds', 'vmem') and (pw_v & c.rd): n = max(n, 1)
        if is_valu(c):
            if c.op.startswith('v_permlane') and (pw_v & c.rd): n = max(n, 2)
            if ('dpp' in c.text or 'row_' in c.text or 'quad_perm' in c.text) and (pw_v & c.rd): n = max(n, 2)
            if c.op.startswith(('v_readlane', 'v_readfirstlane')) and (pw_v & c.rd): n = max(n, 1)
            if pw_s & c.rd: n = max(n, 4 if c.op.startswith(('v_readlane', 'v_writelane')) else 2)
            if ('op_sel' in p.text and not p.op.startswith('v_pk_')) or 'sdwa' in p.text:
                if pw_v & (c.rd | c.wr): n = max(n, 1)
        if c.cls == 'vmem' and (pw_s & c.rd): n = max(n, 5)
        if c.cls in ('salu', 'ctl') and (pw_s & c.rd): n = max(n, 1)
    elif p.cls == 'salu':
        if c.lds_dma and (('s', 124) in p.wr): n = max(n, 1)
    elif p.cls == 'vmem' and p.wide_store:
        if (is_valu(c) or c.cls == 'mfma') and (p.extra & c.wr): n = max(n, 2)
        elif p.extra & c.wr: n = max(n, 1)
    return n

MAXLOOK = 20
SAFE_WAR = 0

class Prog:
    def __init__(self):
        self.items = []
    def I(self, text, comment=None):
        self.items.append(Ins(text, comment))
    def raw(self, text):
        self.items.append(text)
    def label(self, name):
        self.items.append(name + ':')
    def c(self, text):
        self.items.append('    ; ' + text)

    def finalize(self, auto_wait=True):
        out = []
        vm = []
        lg = []
        smem_out = False
        def flush_all():
            pass
        for it in self.items:
            if isinstance(it, tuple) and it[0] == 'BACKEDGE':
                out.append(it); continue
            if isinstance(it, tuple) and it[0] == 'PH':
                vm = [set(x) for x in it[1]]
                continue
            if isinstance(it, str):
                if it.endswith(':') and auto_wait:
                    if any(w for w in vm) or any(w for w in lg) or smem_out:
                        out.append(Ins('s_waitcnt vmcnt(0) lgkmcnt(0)', 'auto: label'))
                    vm = []; lg = []; smem_out = False
                out.append(it)
                continue
            ins = it
            if auto_wait:
                touched = ins.rd | ins.wr | ins.pt | set(('SRC',) + r for r in ins.wr)
                nv = None; nl = None
                for k in range(len(vm) - 1, -1, -1):
                    if vm[k] & touched:
                        nv = len(vm) - 1 - k; break
                for k in range(len(lg) - 1, -1, -1):
                    if lg[k] & touched:
                        nl = len(lg) - 1 - k; break
                if nl is not None and smem_out: nl = 0
                if ins.op.startswith(('s_branch', 's_cbranch')) and ins.comment != 'nowait':
                    if any(w for w in vm): nv = 0
                    if any(w for w in lg): nl = 0
                if nv is not None or nl is not None:
                    t = 's_waitcnt'
                    if nv is not None:
                        nv = min(nv, 63)
                        t += f' vmcnt({nv})'; vm = vm[len(vm) - nv:] if nv else []
                    if nl is not None:
                        nl = min(nl, 15)
                        t += f' lgkmcnt({nl})'; lg = lg[len(lg) - nl:] if nl else []
                        if nl == 0: smem_out = False
                    out.append(Ins(t, 'auto'))
                if ins.op == 's_waitcnt':
                    m = re.search(r'vmcnt\((\d+)\)', ins.text)
                    if m:
                        n = int(m.group(1)); vm = vm[len(vm) - n:] if n and n < len(vm) else ([] if n == 0 else vm)
                    m = re.search(r'lgkmcnt\((\d+)\)', ins.text)
                    if m:
                        n = int(m.group(1)); lg = lg[len(lg) - n:] if n and n < len(lg) else ([] if n == 0 else lg)
                        if n == 0: smem_out = False
                if ins.cls == 'vmem' and ins.comment != 'nocount': vm.append(set(ins.wr) | ins.pw | (set(('SRC',) + r for r in vg(ins.rd)) if SAFE_WAR & 2 else set()))
                if ins.cls == 'lds': lg.append(set(ins.wr) | ins.pw | (set(('SRC',) + r for r in vg(ins.rd)) if SAFE_WAR & 1 else set()))
                if ins.cls == 'smem':
                    lg.append(set(ins.wr)); smem_out = True
            out.append(ins)
        res = []
        hist = []
        for it in out:
            if isinstance(it, tuple) and it[0] == 'BACKEDGE':
                k = next(n for n, x in enumerate(res) if isinstance(x, str) and x.startswith(it[1]))
                head = [x for x in res[k + 1:k + 40] if not isinstance(x, str)][:20]
                tail = [x for x in hist if x != 'LABEL'][-20:]
                need = 0
                dh = 1
                for c in head:
                    dist = dh
                    for p_ in reversed(tail):
                        n = need_states(p_, c)
                        if n > dist: need = max(need, n - dist)
                        dist += p_.states()
                    dh += c.states()
                if need:
                    nop = Ins(f's_nop {need-1}', 'hazard across the back edge')
                    res.append(nop); hist.append(nop)
                continue
            if isinstance(it, str):
                if it.endswith(':'):
                    res.append(it)
                    hist.append('LABEL')
                else:
                    res.append(it)
                continue
            dist = 0
            need = 0
            for p in reversed(hist[-MAXLOOK:]):
                if p == 'LABEL':
                    continue
                n = need_states(p, it)
                if n > dist: need = max(need, n - dist)
                dist += p.states()
                if dist >= 19: break
            while need > 0:
                k = min(need, 16)
                nop = Ins(f's_nop {k-1}', 'hazard')
                res.append(nop); hist.append(nop)
                need -= k
            res.append(it); hist.append(it)
        self.final = res
        return res

    def text(self):
        lines = []
        for it in self.final:
            if isinstance(it, str): lines.append(it)
            else:
                lines.append('    ' + it.text + (('    ; ' + it.comment) if it.comment else ''))
        return '\n'.join(lines) + '\n'

def V(a, n=1):
    return f'v{a}' if n == 1 else f'v[{a}:{a+n-1}]'
def S(a, n=1):
    return f's{a}' if n == 1 else f's[{a}:{a+n-1}]'
```

```python
import random
from asmlib import Ins, need_states, is_valu

LDS_LAT = 128
VM_GAP = 0
PIPE_SCALE = 1.0
DMA_LAT = 2500
NOISE = 0.0
SEED = 0
SHADOW = True
SLACK = 200
FREEWAIT = True
FIT = True
VMC = 16
DSWC = 16
ORDER = False

class Node:
    __slots__ = ('ins', 'idx', 'rd', 'wr', 'preds', 'succs', 'npred', 'prio', 'ready', 'pos_end', 't_issue', 'kind', 'wave', 'port', 'pipe', 'isvm', 'touch')
    def __init__(self, ins_list, idx):
        self.ins = ins_list
        self.idx = idx
        self.rd = set(); self.wr = set(); self.touch = set()
        for i in ins_list:
            self.rd |= i.rd | i.xrd
            self.wr |= i.wr | i.xwr
            self.touch |= i.rd | i.wr | i.pt
        self.preds = []; self.succs = []
        self.prio = 0; self.ready = 0
        wave = 0; port = 0; pipe = 0
        for i in ins_list:
            w, p, m = cost(i)
            wave += w; port += p; pipe += m
        self.wave = wave; self.port = port; self.pipe = pipe
        self.kind = ins_list[0].cls if len(ins_list) == 1 else 'group'
        self.isvm = any(i.cls == 'vmem' for i in ins_list)

def cost(i):
    if i.cls == 'mfma':
        return (4, 12 if i.op.startswith('v_smfmac') else 8, int((32 if i.passes == 8 else 16) * PIPE_SCALE))
    if i.cls == 'trans' or i.op.startswith('v_permlane'):
        return (8, 8, 0)
    if i.cls == 'valu':
        return (4, 4, 0)
    if i.cls == 'lds':
        return (DSWC if i.op.startswith('ds_write_b128') else (DSWC // 2 if i.op.startswith('ds_write') else 4), 0, 0)
    if i.cls == 'vmem':
        return (VMC, 0, 0)
    return (4, 0, 0)

def latency(p, c, regs):
    pi = p.ins[-1]
    if pi.lds_dma and c.ins[0].cls == 'lds':
        return DMA_LAT
    if p.kind == 'mfma':
        ci = c.ins[0]
        if ci.cls == 'mfma' and (regs <= ci.srcc) and not (regs & ci.ab):
            if ci.op == pi.op: return 4
            return 48 if pi.passes == 8 else 32
        return 56 if pi.passes == 8 else 40
    if p.kind == 'lds' and pi.wr:
        if any(r[0] in 'va' for r in regs): return LDS_LAT
        return 4
    if p.kind == 'lds' and c.ins[0].lds_dma:
        return LDS_LAT
    if p.kind == 'vmem' and pi.wr:
        if any(r[0] in 'va' for r in regs): return 1500
        return 4
    return p.wave

def build(items):
    nodes = [Node(it if isinstance(it, list) else [it], k) for k, it in enumerate(items)]
    lastw = {}; readers = {}
    for n in nodes:
        deps = {}
        for r in n.rd:
            w = lastw.get(r)
            if w is not None: deps.setdefault(w, set()).add(r)
        for r in n.wr:
            w = lastw.get(r)
            if w is not None: deps.setdefault(w, set()).add(r)
            for q in readers.get(r, ()):
                if q is not n: deps.setdefault(q, set())
        for pnode, regs in deps.items():
            if regs: lat = latency(pnode, n, regs)
            elif pnode.kind == 'lds' and n.ins[0].lds_dma: lat = LDS_LAT
            else: lat = pnode.wave
            n.preds.append((pnode, lat, need_states(pnode.ins[-1], n.ins[0]))); pnode.succs.append((n, lat))
        for r in n.rd: readers.setdefault(r, []).append(n)
        for r in n.wr:
            lastw[r] = n; readers[r] = []
    return nodes

def schedule(items, window=600, verbose=False, mfma_bias=True):
    nodes = build(items)
    rnd = random.Random(SEED)
    for n in reversed(nodes):
        best = 0
        for s, lat in n.succs:
            best = max(best, lat + s.prio)
        n.prio = best + max(n.wave, n.port, n.pipe // 2)
    if ORDER:
        for n in nodes: n.prio = -4 * n.idx
    if NOISE:
        for n in nodes: n.prio += rnd.uniform(-NOISE, NOISE)
    for n in nodes:
        n.npred = len(n.preds); n.ready = 0
        for i in n.ins:
            for x in i.xrd:
                if x[0] == 'RDY': n.ready = max(n.ready, x[1])
    ready = [n for n in nodes if n.npred == 0]
    now = 0; port_free = 0; pipe_free = 0; pos = 0; vm_free = 0
    out = []
    done = [False] * len(nodes)
    oldest = 0
    busy_port = 0; busy_pipe = 0
    lg = []
    while ready:
        while oldest < len(nodes) and done[oldest]: oldest += 1
        shadow = port_free > now
        maxprio = max(n.prio for n in ready)
        best = None; bestkey = None
        gap = pipe_free - max(now, port_free)
        mready = FIT and gap > 0 and any(n.pipe and n.ready <= pipe_free and n.idx <= oldest + window for n in ready)
        for n in ready:
            if n.idx > oldest + window: continue
            est = max(now, n.ready)
            needw = any(t & n.touch for _, t in lg)
            if needw: est = max(est, now + 4)
            if n.port: est = max(est, port_free)
            if n.pipe: est = max(est, pipe_free)
            if n.isvm: est = max(est, vm_free)
            miss = 0
            for p, _, ns in n.preds:
                if ns:
                    d = pos - p.pos_end + (1 if needw else 0)
                    if ns > d: miss = max(miss, ns - d)
            if miss: est = max(est, now + 4 * miss + (4 if needw else 0))
            k0 = est
            if mfma_bias and n.pipe: k0 -= 2
            if SHADOW and not n.port and not shadow and n.prio < maxprio - SLACK: k0 += 6
            if mready and n.port and not n.pipe and n.port > gap: k0 += 1
            key = (k0, -n.prio, n.idx)
            if bestkey is None or key < bestkey:
                best = n; bestkey = key; best_est = est; best_w = needw
        n = best
        if FREEWAIT and shadow and best_est >= port_free and not best_w:
            k = 0
            while k < len(lg) and lg[k][0] + LDS_LAT <= now: k += 1
            while k > 0 and not lg[k - 1][1]: k -= 1
            if k > 0 and len(lg) - k <= 15:
                out.append(Ins(f's_waitcnt lgkmcnt({len(lg) - k})', 'shadow'))
                lg = lg[k:]; now += 4; pos += 1
                continue
        ready.remove(n)
        done[n.idx] = True
        if best_w:
            kk = max(k for k, (_, t) in enumerate(lg) if t & n.touch)
            lg = lg[kk + 1:]; pos += 1
        t = best_est
        n.t_issue = t
        now = t + n.wave
        if n.port: port_free = t + n.port; busy_port += n.port
        if n.pipe: pipe_free = t + n.pipe; busy_pipe += n.pipe
        if n.isvm: vm_free = t + VM_GAP
        for i in n.ins:
            if i.cls == 'lds': lg.append((t, set(i.wr) | i.pw))
        pos += len(n.ins)
        n.pos_end = pos
        out.extend(n.ins)
        for s, lat in n.succs:
            s.ready = max(s.ready, t + lat)
            s.npred -= 1
            if s.npred == 0: ready.append(s)
    if verbose:
        print(f'schedule: {len(out)} instrs, est {now} cycles, port busy {busy_port}, pipe busy {busy_pipe}')
    return out, now
```

```python
import sys, struct, argparse
sys.path.insert(0, 'gen')
from asmlib import *
import sched
from sched import schedule

NAME = 'standalone__attention_interact_autoint__recsys'
HEADER = open('cdna_kernels/%s.s.ref' % NAME).read().split('; Override launch')[0]
def f32bits(x): return struct.unpack('<I', struct.pack('<f', x))[0]
CSCALE = f32bits((32.0 ** -0.5) * 1.4426950408889634)
MF32 = 'v_mfma_f32_32x32x16_bf16'
MF32K8 = 'v_mfma_f32_32x32x8_bf16'
MF16 = 'v_mfma_f32_16x16x32_bf16'
MF16K16 = 'v_mfma_f32_16x16x16_bf16'
SMF = 'v_smfmac_f32_16x16x64_bf16'
OOB_G = 0x40000000
OOB_L = 0x40000
def A(a, n=1): return f'a{a}' if n == 1 else f'a[{a}:{a+n-1}]'

WF = lambda m, h, s: ((m * 2 + h) * 4 + s) * 4
EC = lambda t, s: 128 + 16 * t + 4 * s
KRA = lambda h, ks: 176 + 8 * h + 4 * ks
STR0 = 192; NSTR = 8; OUTB = 224
SEL = 240; ONE = 244; SEL16 = 248; ONE16 = 254
VREM = lambda h: 250 + 2 * h
ACC = [0, 16, 32, 48]
PA = [64, 80]
QF = [96, 104]
LS = [112, 116]
SR = 120
SR2 = [120, 120]
INV = [124, 125]; BAD = 126
aE = 127; vA = 128; vB = 129; aOW = 130; aLIN = 131; aKR = 132; aQ1 = 133; aVR = 134; aRR = 135
aPW = 136; aPR = 137; vOR = 138; aQ0 = 139
FD = 140
RR = 156
IDX = 158; aPR6 = 159
KF = lambda h, t, ks: 160 + 24 * h + 8 * t + 4 * ks
VF = lambda h, t, sub: 208 + 24 * h + 8 * t + 4 * sub
sE = 24; sO = 28
sB = 40
sWB = 42
sT = 43; sT2 = 44; sIT = 45; sNX = 46; sPV = 47; sDM = 48
sB3 = 50; sVM = 52; sLIM = 54
WSTRIDE = 34816; L_OUT = 12288; L_REM = 24576; L_PSH = 32768
BSTRIDE = 4 * 12800

class Gen:
    def __init__(self, opt):
        self.opt = opt; self.p = Prog(); self.reg = None
        self.strn = 0; self.nstamp = 0; self.nocount = False
    def mk(self, text, comment=None, xrd=(), xwr=(), pw=(), pt=()):
        ins = Ins(text, comment)
        ins.xrd = set(xrd); ins.xwr = set(xwr); ins.pw = set(pw); ins.pt = set(pt)
        if ins.cls == 'vmem':
            if self.nocount: ins.comment = 'nocount'
        return ins
    def I(self, text, comment=None, **kw):
        ins = self.mk(text, comment, **kw)
        (self.p.items if self.reg is None else self.reg).append(ins)
    def group(self, lst):
        g = [self.mk(t, **kw) for t, kw in lst]
        if self.reg is None: self.p.items.extend(g)
        else: self.reg.append(g)
    def begin(self): self.reg = []
    def end(self):
        r = self.reg; self.reg = None
        if self.opt.nosched:
            flat = []
            for it in r: flat.extend(it if isinstance(it, list) else [it])
        else:
            flat, est = schedule(r, window=self.opt.window, verbose=True)
        self.p.items.extend(flat)
    def stamp(self, anchor=None, final=False):
        o = self.opt
        if not o.stamps: return
        if o.stamps == 4 and not (self.nstamp == 0 or final): return
        if final: self.nstamp = 19
        if self.nstamp >= 19 and not final: return
        k = self.nstamp; self.nstamp += 1
        self.I(f's_memtime s[{60+2*k}:{61+2*k}]', xrd=([('v', anchor)] if anchor is not None else []), xwr=[('X', 'stamp')])
    def slot(self):
        r = STR0 + 4 * (self.strn % NSTR); self.strn += 1
        return r
    def cvt(self, dst, a): self.I(f'v_cvt_pk_bf16_f32 v{dst}, v{a}, v{a+1}')

    def eload(self, t, rdy=0):
        for s in range(4):
            self.I(f'ds_read_b128 {A(EC(t,s),4)}, v{aE} offset:{t*4096+s*256}', xrd=[('L', f'E{t}'), ('RDY', rdy)], pt=[('L', f'E{t}')], pw=[('LR', f'E{t}')])
    def dma(self, base, boff, t):
        ld = self.opt.ldmod
        self.I(f's_add_u32 m0, s{sWB}, {t*4096}')
        self.I(f's_add_u32 s{sT}, s{base}, {boff + t*4096}')
        for g in range(4):
            self.I(f'buffer_load_dwordx4 v{vA if g < 2 else vB}, s[{sE}:{sE+3}], s{sT} offen offset:{g*1024} {ld} lds',
                   xwr=[('L', f'E{t}')], pw=[('L', f'E{t}')], pt=[('LR', f'E{t}')])

    def prologue(self):
        I = self.I; p = self.p; o = self.opt
        I('s_cmp_ge_u32 s2, 256')
        I('s_cbranch_scc1 L_end')
        self.stamp()
        if o.stamps: I('s_memrealtime s[100:101]'); I('s_load_dwordx2 s[18:19], s[0:1], 56')
        I('s_load_dwordx4 s[4:7], s[0:1], 0')
        I('s_load_dwordx4 s[8:11], s[0:1], 16')
        I('s_load_dwordx4 s[12:15], s[0:1], 32')
        I('v_lshrrev_b32 v2, 6, v0')
        I('v_and_b32 v1, 63, v0', 'lane')
        I('v_readfirstlane_b32 s20, v2', 'wave id = weight matrix handled in the prologue')
        if o.codepf:
            I('s_getpc_b64 s[16:17]')
            I('s_lshr_b32 s21, s2, 3'); I('s_and_b32 s21, s21, 3'); I(f's_mul_i32 s21, s21, {o.codepf*4096}')
            I('s_add_u32 s16, s16, s21'); I('s_addc_u32 s17, s17, 0')
            I('v_lshlrev_b32 v100, 4, v0', 'tid*16 : 4 KB per pass')
            I('v_mov_b32 v101, s17')
            I('v_add_co_u32 v100, vcc, s16, v100')
            I('v_addc_co_u32 v101, vcc, 0, v101, vcc')
            for k in range(o.codepf):
                if k:
                    I('v_add_co_u32 v100, vcc, 0x1000, v100')
                    I('v_addc_co_u32 v101, vcc, 0, v101, vcc')
                I(f'global_load_dwordx4 {A(STR0+4*k,4)}, v[100:101], off')
        I('v_and_b32 v6, 7, v1'); I('v_lshrrev_b32 v7, 3, v1')
        I(f'v_lshlrev_b32 v{vA}, 7, v6')
        I(f'v_xor_b32 v8, 1, v7')
        I(f'v_lshl_add_u32 v{vB}, v8, 4, v{vA}')
        I(f'v_lshl_add_u32 v{vA}, v7, 4, v{vA}')
        I('v_and_b32 v8, 3, v1', 'fq'); I('v_bfe_u32 v9, v1, 2, 1', 'bit2'); I('v_bfe_u32 v10, v1, 3, 1', 'bit3')
        I('v_bfe_u32 v11, v1, 4, 1', 'q&1'); I('v_lshrrev_b32 v12, 5, v1', 'q>>1')
        I(f'v_mul_u32_u24 v13, {BSTRIDE}, v10')
        I('v_lshl_add_u32 v13, v8, 7, v13')
        I('v_lshl_add_u32 v13, v12, 4, v13')
        I('v_add_u32 v13, 12288, v13')
        I(f'v_mov_b32 v14, 0x{OOB_G:x}')
        I('v_cmp_eq_u32 vcc, v9, v11')
        I('v_cndmask_b32 v13, v14, v13, vcc', 'remainder-row voffset')
        I(f's_lshl_b32 s{sB}, s2, 4'); I(f's_add_u32 s{sB}, s{sB}, s20'); I(f's_mul_i32 s{sB}, s{sB}, 12800')
        I(f's_mul_i32 s{sWB}, s20, {WSTRIDE}')
        I('v_bfe_u32 v15, v1, 2, 3', 'dg')
        I('s_cmp_eq_u32 s20, 3')
        I('s_cselect_b32 s36, 128, 64', 'row stride'); I('s_cselect_b32 s37, 64, 4096', 'head offset')
        I('s_lshl_b32 s38, s36, 3')
        I('v_mul_lo_u32 v4, v15, s38')
        I('v_lshl_add_u32 v4, v8, 4, v4')
        I('v_mul_lo_u32 v5, v12, s37')
        I('v_add_u32 v4, v4, v5')
        I('s_waitcnt lgkmcnt(0)')
        self.stamp()
        I('s_mov_b32 s32, s6'); I('s_mov_b32 s33, s7')
        I('s_cmp_eq_u32 s20, 1'); I('s_cselect_b32 s32, s8, s32'); I('s_cselect_b32 s33, s9, s33')
        I('s_cmp_eq_u32 s20, 2'); I('s_cselect_b32 s32, s10, s32'); I('s_cselect_b32 s33, s11, s33')
        I('s_cmp_eq_u32 s20, 3'); I('s_cselect_b32 s32, s12, s32'); I('s_cselect_b32 s33, s13, s33')
        I('s_mov_b32 s34, 8192'); I('s_mov_b32 s35, 0x00020000')
        I('s_mov_b32 s37, 0')
        for j in range(8):
            I(f'buffer_load_dwordx4 v[{160+4*j}:{163+4*j}], v4, s[32:35], s37 offen')
            if j < 7: I('s_add_u32 s37, s37, s36')
        for (d, src, n) in ((sE, 4, 52428800), (sO, 14, 52428800)):
            I(f's_mov_b32 s{d}, s{src}'); I(f's_mov_b32 s{d+1}, s{src+1}'); I(f's_mov_b32 s{d+2}, {n}'); I(f's_mov_b32 s{d+3}, 0x00020000')
        I(f's_add_u32 s{sT2}, s{sB}, {2*BSTRIDE}')
        for pr in range(2):
            for s in range(4):
                I(f'buffer_load_dwordx4 {V(224+16*pr+4*s,4)}, v13, s[{sE}:{sE+3}], s{sB if pr == 0 else sT2} offen offset:{32*s}')
        for t in range(3): self.dma(sB, 0, t)
        self.stamp()
        I('v_bfe_u32 v14, v1, 3, 2', 'g')
        I('v_xor_b32 v3, v12, v11')
        I(f'v_lshlrev_b32 v{aE}, 10, v14')
        I(f'v_lshl_add_u32 v{aOW}, v12, 7, v{aE}')
        I(f'v_lshl_add_u32 v{aE}, v3, 7, v{aE}')
        I(f'v_lshl_add_u32 v{aE}, v6, 4, v{aE}')
        I(f'v_add_u32 v{aE}, s{sWB}, v{aE}')
        I(f'v_lshl_add_u32 v{aOW}, v6, 4, v{aOW}')
        I(f'v_add_u32 v{aOW}, s{sWB}, v{aOW}')
        I(f'v_lshlrev_b32 v2, 4, v1', 'lane*16')
        I(f'v_add_u32 v{aLIN}, s{sWB}, v2')
        I(f's_add_u32 s45, s{sWB}, {L_REM}')
        I(f's_mov_b32 s{sB3}, 0xff00ff00'); I(f's_mov_b32 s{sB3+1}, 0xff00ff00')
        I(f's_mov_b32 s{sVM}, 0x00000f0f'); I(f's_mov_b32 s{sVM+1}, 0x00000f0f')
        I(f's_mov_b32 s{sLIM}, 0x5f800000', '2^64')
        I(f'v_mov_b32 v16, 0x{OOB_L:x}')
        I('v_lshlrev_b32 v17, 5, v8', 'fq*32')
        I('v_lshl_add_u32 v18, v12, 4, v17', '+(q>>1)*16')
        I('v_add_u32 v18, s45, v18')
        I('v_cmp_eq_u32 vcc, v9, v11')
        I('v_cndmask_b32 v18, v16, v18, vcc', 'valid iff (q&1)==bit2')
        I(f'v_cndmask_b32 v{aQ0}, v18, v16, s[{sB3}:{sB3+1}]')
        I(f'v_cndmask_b32 v{aQ1}, v16, v18, s[{sB3}:{sB3+1}]')
        I(f'v_lshl_add_u32 v{aPR}, v10, 7, v18')
        I(f'v_add_u32 v{aPR}, {L_PSH - L_REM}, v{aPR}')
        I('v_lshlrev_b32 v19, 3, v12')
        I(f'v_sub_u32 v{aPR6}, v{aPR}, v19', 'key-remainder step: (q>>1)*8 instead of *16')
        I('v_and_b32 v19, 1, v1', 'r&1'); I('v_lshl_add_u32 v19, v10, 1, v19', 'key = 2*bit3 + r')
        I('v_lshlrev_b32 v19, 5, v19'); I('v_lshl_add_u32 v19, v12, 4, v19'); I('v_add_u32 v19, s45, v19')
        I('v_cndmask_b32 v19, v16, v19, vcc')
        I('v_bfe_u32 v20, v1, 1, 1', 'bit1')
        I('v_cmp_eq_u32 s[22:23], 0, v20')
        I(f'v_cndmask_b32 v{aKR}, v16, v19, s[22:23]')
        I('v_mov_b32 v19, 0x3f803f80')
        I('v_cndmask_b32 v20, 0, v19, vcc', 'ones iff (q&1)==bit2')
        I('v_cmp_eq_u32 s[22:23], 0, v8', 'row r==0')
        I('v_cndmask_b32 v20, 0, v20, s[22:23]')
        I('v_cndmask_b32 v21, 0, v19, s[22:23]')
        for k in range(2):
            I(f'v_accvgpr_write_b32 a{SEL16+k}, v20'); I(f'v_accvgpr_write_b32 a{ONE16+k}, v21')
        I('v_cmp_eq_u32 vcc, 0, v9')
        I('v_cndmask_b32 v20, 0, v19, vcc', 'rows with bit2==0 sum the even lane groups')
        I('v_cndmask_b32 v21, v19, 0, vcc') if False else I('v_xor_b32 v21, v19, v20')
        for k in range(4):
            I(f'v_accvgpr_write_b32 a{SEL+k}, v{20 if k < 2 else 21}'); I(f'v_accvgpr_write_b32 a{ONE+k}, v19')
        I('v_mov_b32 v20, 0x44444444'); I('v_mov_b32 v21, 0xeeeeeeee')
        I(f'v_cndmask_b32 v{IDX}, v21, v20, s[22:23]', 'sparse index: row 0 -> positions 0,1 ; others -> 2,3')
        I('v_and_b32 v21, 31, v1')
        I('v_lshlrev_b32 v21, 3, v21', 'i*8')
        I('v_add_u32 v21, s45, v21')
        I(f'v_lshl_add_u32 v{aVR}, v12, 2, v21', 'V rem read: 4 bytes at i*8 + hf*4')
        I('v_lshl_add_u32 v22, v12, 11, v21', 'V rem write addr: + bb*2048')
        I('v_mov_b32 v19, 0')
        for h in range(2): I(f'v_accvgpr_write_b32 a{VREM(h)+1}, v19')
        I('v_lshlrev_b32 v23, 4, v11')
        I('v_lshl_add_u32 v23, v12, 3, v23', '(q&1)*16+(q>>1)*8')
        I('v_add_u32 v24, v23, v17', '+fq*32')
        I('v_lshl_add_u32 v25, v9, 7, v24', '+bit2*128 : chunk index inside a 256 B block')
        I('v_add_u32 v25, s45, v25')
        I(f'v_lshl_add_u32 v{aRR}, v10, 8, v25', 'res rem read: +hd*256')
        I('v_lshl_add_u32 v26, v10, 11, v25', 'K/Q/res rem write addr: +bb*2048')
        I(f'v_lshl_add_u32 v{aPW}, v9, 8, v24')
        I(f'v_lshl_add_u32 v{aPW}, v10, 7, v{aPW}')
        I(f's_add_u32 s45, s{sWB}, {L_PSH}')
        I(f'v_add_u32 v{aPW}, s45, v{aPW}')
        I(f'v_lshl_add_u32 v{vOR}, v8, 7, v23')
        I(f'v_lshl_add_u32 v{vOR}, v10, 6, v{vOR}')
        I(f'v_lshl_add_u32 v{vOR}, v9, 5, v{vOR}')
        I(f'v_mov_b32 v{BAD}, 0')
        I(f'v_mov_b32 v{INV[0]}, v22', 'V rem write addr (prologue only)')
        I(f'v_mov_b32 v{INV[1]}, v26', 'K/Q/res rem write addr (prologue only)')
        I('v_lshlrev_b32 v5, 12, v12')
        I('v_lshl_add_u32 v5, v15, 9, v5')
        I('v_bfe_u32 v14, v8, 1, 1'); I('v_lshl_add_u32 v5, v14, 8, v5')
        I('v_and_b32 v14, 1, v8'); I('v_lshl_add_u32 v5, v14, 6, v5')
        I(f'v_add_u32 v5, s{sWB}, v5')
        I('s_cmp_eq_u32 s20, 0'); I(f's_cselect_b32 s39, 0x{CSCALE:08x}, 1.0', 'scale*log2e folded into Wq')
        for jp in range(4):
            for j in (2 * jp, 2 * jp + 1):
                for b in range(8):
                    src = 160 + 4 * j + (b >> 1); t = 32 + 8 * (j & 1) + b
                    if b & 1: I(f'v_and_b32 v{t}, 0xffff0000, v{src}')
                    else: I(f'v_lshlrev_b32 v{t}, 16, v{src}')
                    I(f'v_mul_f32 v{t}, s39, v{t}')
            for b in range(8):
                I(f'v_cvt_pk_bf16_f32 v{64+4*b+jp}, v{32+b}, v{40+b}')
        for b in range(8):
            I(f'ds_write_b128 v5, v[{64+4*b}:{67+4*b}] offset:{L_OUT + (b>>2)*128 + (b&3)*16}')
        I('s_waitcnt lgkmcnt(0)')
        I('s_barrier')
        self.stamp()
        I(f'v_add_u32 v3, {2*WSTRIDE}, v2')
        for m in (1, 2, 0, 3):
            for h in range(2):
                for s in range(4):
                    I(f'ds_read_b128 {A(WF(m,h,s),4)}, v{2 if m < 2 else 3} offset:{(m&1)*WSTRIDE + L_OUT + h*4096 + s*1024}', pw=[('LW', 'W')])

    def rem_proj(self, pr):
        I = self.I
        ER = lambda s: 224 + 16 * pr + 4 * s
        def D(m, h):
            k = 2 * m + h
            if pr == 0: return 160 + 4 * k if k < 6 else FD + 4 * (k - 6)
            return 184 + 4 * k if k < 6 else 232 + 4 * (k - 6)
        for m in (1, 2, 0, 3):
            for h in range(2):
                d = D(m, h)
                for s in range(4):
                    c = '0' if s == 0 else V(d, 4)
                    if m == 2: I(f'{MF16} {V(d,4)}, {V(ER(s),4)}, {A(WF(m,h,s),4)}, {c}')
                    else: I(f'{MF16} {V(d,4)}, {A(WF(m,h,s),4)}, {V(ER(s),4)}, {c}')
                self.cvt(d, d); self.cvt(d + 1, d + 2)
                off = pr * 4096 + h * 256 + {1: 0, 0: 512, 2: 1024, 3: 1536}[m]
                I(f'ds_write_b64 v{INV[0] if m == 2 else INV[1]}, {V(d,2)} offset:{off}', xwr=[('L', 'REM')])

    def tproj(self, h, t):
        I = self.I
        for m in (1, 2):
            acc = PA[m - 1] if not self.opt.alloc2 else PA[1]
            for s in range(4):
                c = '0' if s == 0 else V(acc, 16)
                if m == 1: I(f'{MF32} {V(acc,16)}, {A(WF(1,h,s),4)}, {A(EC(t,s),4)}, {c}')
                else: I(f'{MF32} {V(acc,16)}, {A(EC(t,s),4)}, {A(WF(2,h,s),4)}, {c}')
            dst = KF(h, t, 0) if m == 1 else VF(h, t, 0)
            for i in range(8): self.cvt(dst + i, acc + 2 * i)

    def qproj(self, j):
        h, ft = divmod(j % 6, 3)
        X = ACC[2 + (j & 1)] if not self.opt.alloc2 else PA[0]
        for s in range(4):
            self.I(f'{MF32} {V(X,16)}, {A(WF(0,h,s),4)}, {A(EC(ft,s),4)}, {"0" if s == 0 else V(X,16)}')
        for i in range(8): self.cvt(QF[j & 1] + i, X + 2 * i)

    def rem_loads(self, bi, h):
        ro = bi * 2048
        for ks in range(2):
            self.I(f'ds_read_b128 {A(KRA(h,ks),4)}, v{aKR} offset:{ro + h*256 + ks*128}', xrd=[('L', 'REM')])
        self.I(f'ds_read_b32 {A(VREM(h))}, v{aVR} offset:{ro + 1024 + h*256}', xrd=[('L', 'REM')])

    def frem_s(self, bi, h):
        I = self.I
        ro = bi * 2048
        for ks in range(2):
            qb = self.slot()
            I(f'ds_read_b128 {A(qb,4)}, v{aQ0 if h == 0 else aQ1} offset:{ro + 512 + h*256 + ks*128}', xrd=[('L', 'REM')])
            for t in range(4):
                a = V(KF(h, t, ks), 4) if t < 3 else A(KRA(h, ks), 4)
                c = '0' if (h == 0 and ks == 0) else V(FD + 4 * t, 4)
                I(f'{MF16} {V(FD+4*t,4)}, {a}, {A(qb,4)}, {c}')

    def frem_rest(self, bi):
        I = self.I
        D = lambda t: FD + 4 * t
        for t in range(3):
            for r in range(4): I(f'v_exp_f32 v{D(t)+r}, v{D(t)+r}')
            self.cvt(D(t), D(t)); self.cvt(D(t) + 1, D(t) + 2)
            I(f'ds_write_b64 v{aPW}, {V(D(t),2)} offset:{t*512}', xwr=[('L', 'PSH')])
        for r in range(2): I(f'v_exp_f32 v{D(3)+r}, v{D(3)+r}')
        self.cvt(D(3), D(3))
        I(f'v_cndmask_b32 v{D(3)+2}, 0, v{D(3)}, s[{sVM}:{sVM+1}]', 'keep only the real key-remainder entries; D3+3 is 0')
        I(f'ds_write_b64 v{aPW}, {V(D(3)+2,2)} offset:{3*512}', xwr=[('L', 'PSH')])
        DH = [FD, FD + 4]; L = FD + 8
        I(f'ds_read_b64 {V(RR,2)}, v{aRR} offset:{bi*2048 + 1536}', xrd=[('L', 'REM')])
        if self.strn % 2: self.strn += 1
        r = self.slot(); self.slot()
        I(f'ds_read_b64 {A(r,2)}, v{aPR6} offset:{6*256}', xrd=[('L', 'PSH')])
        I(f'{MF16K16} {V(L,4)}, {A(ONE16,2)}, {A(r,2)}, 0')
        for h in range(2):
            I(f'{MF16K16} {V(DH[h],4)}, {A(VREM(h),2)}, {A(r,2)}, 0')
        for t in range(3):
            r = self.slot(); self.slot()
            for sub in range(2):
                I(f'ds_read_b128 {A(r+4*sub,4)}, v{aPR} offset:{(2*t+sub)*256}', xrd=[('L', 'PSH')])
                for h in range(2):
                    I(f'{MF16} {V(DH[h],4)}, {V(VF(h,t,sub),4)}, {A(r+4*sub,4)}, {V(DH[h],4)}')
            I(f'{SMF} {V(L,4)}, {A(ONE,4)}, {A(r,8)}, v{IDX}')
        I(f'v_add_f32 v{L}, v{L}, v{L+1}')
        I(f'v_rcp_f32 v{L+1}, v{L}')
        I(f'v_max3_u32 v{BAD}, v{BAD}, v{L}, v{L+1}')
        for r in range(4):
            I(f'v_cndmask_b32 v{DH[0]+r}, v{DH[0]+r}, v{DH[1]+r}, s[{sB3}:{sB3+1}]')
            if r & 1: I(f'v_and_b32 v{DH[1]+r}, 0xffff0000, v{RR+(r>>1)}')
            else: I(f'v_lshlrev_b32 v{DH[1]+r}, 16, v{RR+(r>>1)}')
            I(f'v_fma_f32 v{DH[0]+r}, v{DH[0]+r}, v{L+1}, v{DH[1]+r}')
        self.cvt(DH[0], DH[0]); self.cvt(DH[0] + 1, DH[0] + 2)
        for k in range(2): I(f'v_pk_max_i16 v{DH[0]+k}, v{DH[0]+k}, 0')
        I(f's_add_u32 s{sNX}, s{sB}, {bi*BSTRIDE + 12288}')
        I(f'buffer_store_dwordx2 {V(DH[0],2)}, v{vOR}, s[{sO}:{sO+3}], s{sNX} offen {self.opt.stmod}')

    def block(self, bi, j, has_next, dma_next, part=3, sbase=None):
        I = self.I
        h, ft = divmod(j, 3)
        O = ACC[0]; SA = ACC[1]; X = ACC[2 + (j & 1)]
        S0 = S2 = SA; S1 = X
        if self.opt.alloc2: S0, S1, S2, X = ACC[1], ACC[2], ACC[3], PA[0]
        Q = QF[j & 1]; L = LS[j & 1]; inv = INV[j & 1]
        if sbase is None: sbase = sB
        def smm(t, dst):
            I(f'{MF32} {V(dst,16)}, {V(KF(h,t,0),4)}, {V(Q,4)}, 0')
            I(f'{MF32} {V(dst,16)}, {V(KF(h,t,1),4)}, {V(Q+4,4)}, {V(dst,16)}')
        def soft(buf):
            for i in range(8):
                I(f'v_exp_f32 v{buf+2*i}, v{buf+2*i}')
                I(f'v_exp_f32 v{buf+2*i+1}, v{buf+2*i+1}')
                self.cvt(buf + i, buf + 2 * i)
        def pv(t, buf):
            for sub in range(2):
                first = (t == 0 and sub == 0)
                I(f'{MF32} {V(O,16)}, {V(VF(h,t,sub),4)}, {V(buf+4*sub,4)}, {"0" if first else V(O,16)}')
            I(f'{SMF} {V(L,4)}, {A(SEL,4)}, {V(buf,8)}, v{IDX}')
        if part & 1:
            smm(0, S0); smm(1, S1)
            if ft == 0: self.tproj(h, 2)
            for ks in range(2):
                I(f'{MF16} {V(SR,4)}, {A(KRA(h,ks),4)}, {V(Q+4*ks,4)}, {"0" if ks == 0 else V(SR,4)}')
            for r in range(2): I(f'v_exp_f32 v{SR+r}, v{SR+r}')
            self.cvt(SR + 2, SR)
            I(f'{MF16K16} {V(L,4)}, {A(SEL16,2)}, {V(SR+2,2)}, 0')
            if j == 1: self.rem_loads(bi, 1)
            if j == 1: self.frem_s(bi, 0)
            if j == 3: self.frem_s(bi, 1); self.frem_rest(bi)
            soft(S0); pv(0, S0)
            if j < 5 or has_next: self.qproj(j + 1)
            soft(S1)
            smm(2, S2)
            pv(1, S1)
            if ft > 0 and (h == 0 or has_next): self.tproj(1 - h, ft - 1)
            I(f'{MF32K8} {V(O,16)}, {A(VREM(h),2)}, {V(SR+2,2)}, {V(O,16)}')
            for s in range(4):
                I(f'{MF32} {V(X,16)}, {A(WF(3,h,s),4)}, {A(EC(ft,s),4)}, {"0" if s == 0 else V(X,16)}')
            if h == 1 and has_next: self.eload(ft)
            if h == 0 and dma_next is not None: self.dma(dma_next[0], dma_next[1], ft)
            if j == 5 and has_next: self.rem_loads(bi + 1, 0)
        if part & 2:
            soft(S2); pv(2, S2)
            I(f'v_add_f32 v{L}, v{L}, v{L+1}')
            I(f'v_rcp_f32 v{inv}, v{L}')
            I(f'v_max3_u32 v{BAD}, v{BAD}, v{L}, v{inv}')
            for r in range(16): I(f'v_fma_f32 v{X+r}, v{O+r}, v{inv}, v{X+r}')
            for i in range(8):
                self.cvt(X + i, X + 2 * i)
                I(f'v_pk_max_i16 v{X+i}, v{X+i}, 0')
            for a1 in range(2):
                I(f'ds_write_b128 v{aOW}, {V(X+4*a1,4)} offset:{L_OUT + ft*4096 + h*512 + a1*256}', xwr=[('L', f'O{ft}')], xrd=[('B', 'W')])
        if (part & 2 and not part & 8) or part & 4:
            if h == 1:
                I(f's_add_u32 s{sT2}, s{sbase}, {bi*BSTRIDE + ft*4096}')
                for kk in range(4):
                    r = OUTB + 4 * kk
                    I(f'ds_read_b128 {A(r,4)}, v{aLIN} offset:{L_OUT + ft*4096 + kk*1024}', xrd=[('L', f'O{ft}')])
                    I(f'buffer_store_dwordx4 {A(r,4)}, v{vA}, s[{sO}:{sO+3}], s{sT2} offen offset:{kk*1024} {self.opt.stmod}')

    def T_smm(self, j, t):
        h = (j % 6) // 3; Q = QF[j & 1]; dst = ACC[1 + t]
        self.I(f'{MF32} {V(dst,16)}, {V(KF(h,t,0),4)}, {V(Q,4)}, 0')
        self.I(f'{MF32} {V(dst,16)}, {V(KF(h,t,1),4)}, {V(Q+4,4)}, {V(dst,16)}')
    def T_srem(self, j):
        h = (j % 6) // 3; Q = QF[j & 1]; L = LS[j & 1]; sr = SR2[j & 1]
        for ks in range(2):
            self.I(f'{MF16} {V(sr,4)}, {A(KRA(h,ks),4)}, {V(Q+4*ks,4)}, {"0" if ks == 0 else V(sr,4)}')
    def T_sremv(self, j):
        L = LS[j & 1]; sr = SR2[j & 1]
        for r in range(2): self.I(f'v_exp_f32 v{sr+r}, v{sr+r}')
        self.cvt(sr + 2, sr)
        self.I(f'{MF16K16} {V(L,4)}, {A(SEL16,2)}, {V(sr+2,2)}, 0')
    def T_soft(self, t, half):
        buf = ACC[1 + t]
        for i in range(4 * half, 4 * half + 4):
            self.I(f'v_exp_f32 v{buf+2*i}, v{buf+2*i}')
            self.I(f'v_exp_f32 v{buf+2*i+1}, v{buf+2*i+1}')
            self.cvt(buf + i, buf + 2 * i)
    def T_pv(self, j, t, sub):
        h = (j % 6) // 3; O = ACC[0]; buf = ACC[1 + t]
        first = (t == 0 and sub == 0)
        self.I(f'{MF32} {V(O,16)}, {V(VF(h,t,sub),4)}, {V(buf+4*sub,4)}, {"0" if first else V(O,16)}')
        if sub == 1: self.I(f'{SMF} {V(LS[j & 1],4)}, {A(SEL,4)}, {V(buf,8)}, v{IDX}')
    def T_pvr(self, j):
        h = (j % 6) // 3; O = ACC[0]
        self.I(f'{MF32K8} {V(O,16)}, {A(VREM(h),2)}, {V(SR2[j & 1]+2,2)}, {V(O,16)}')
    def T_projm(self, m, h, t, acc):
        for s in range(4):
            c = '0' if s == 0 else V(acc, 16)
            if m == 2: self.I(f'{MF32} {V(acc,16)}, {A(EC(t,s),4)}, {A(WF(2,h,s),4)}, {c}')
            else: self.I(f'{MF32} {V(acc,16)}, {A(WF(m,h,s),4)}, {A(EC(t,s),4)}, {c}')
    def T_projv(self, dst, acc):
        for i in range(8): self.cvt(dst + i, acc + 2 * i)
    def T_ep(self, j):
        I = self.I
        h, ft = divmod(j % 6, 3)
        O = ACC[0]; R = PA[0]; X = ACC[3]; L = LS[j & 1]; inv = INV[j & 1]
        I(f'v_add_f32 v{L}, v{L}, v{L+1}')
        I(f'v_rcp_f32 v{inv}, v{L}')
        I(f'v_max3_u32 v{BAD}, v{BAD}, v{L}, v{inv}')
        for r in range(16): I(f'v_fma_f32 v{X+r}, v{O+r}, v{inv}, v{R+r}')
        for a1 in range(2):
            for i in range(4 * a1, 4 * a1 + 4):
                self.cvt(X + i, X + 2 * i)
                I(f'v_pk_max_i16 v{X+i}, v{X+i}, 0')
            I(f'ds_write_b128 v{aOW}, {V(X+4*a1,4)} offset:{L_OUT + ft*4096 + h*512 + a1*256}', xwr=[('L', f'O{ft}')], xrd=[('B', 'W')])
    def T_store(self, ft, sbase):
        I = self.I
        I(f's_add_u32 s{sT2}, s{sbase}, {ft*4096}')
        for kk in range(4):
            r = OUTB + 4 * kk
            I(f'ds_read_b128 {A(r,4)}, v{aLIN} offset:{L_OUT + ft*4096 + kk*1024}', xrd=[('L', f'O{ft}')])
            I(f'buffer_store_dwordx4 {A(r,4)}, v{vA}, s[{sO}:{sO+3}], s{sT2} offen offset:{kk*1024} {self.opt.stmod}')
    def T_block(self, j):
        h, ft = divmod(j, 3)
        ph, pt = (h, 2) if ft == 0 else (1 - h, ft - 1)
        jn = j + 1; hn, fn = divmod(jn % 6, 3); jp = j - 1
        self.T_projm(1, ph, pt, PA[1])
        self.T_pv(jp % 6, 2, 1)
        self.T_soft(0, 0)
        self.T_soft(0, 1)
        self.T_smm(j, 1)
        if j == 0: self.T_store(1, sPV)
        if j < 3: self.dma(sDM, 0, j)
        self.T_projv(KF(ph, pt, 0), PA[1])
        self.T_projm(2, ph, pt, PA[1])
        self.T_ep(jp % 6)
        if j == 0: self.T_store(2, sPV)
        if j == 4: self.T_store(0, sB)
        self.T_pv(j, 0, 0); self.T_pv(j, 0, 1)
        self.T_projm(0, hn, fn, PA[0])
        if j == 1: self.rem_loads(0, 1); self.frem_s(0, 0)
        if j == 3: self.frem_s(0, 1)
        self.T_soft(1, 0)
        self.T_smm(j, 2)
        self.T_soft(1, 1)
        self.T_pv(j, 1, 0)
        self.T_pvr(j)
        self.T_projv(QF[jn & 1], PA[0])
        if j == 5: self.rem_loads(1, 0)
        self.T_srem(jn)
        self.T_pv(j, 1, 1)
        self.T_projm(3, h, ft, PA[0])
        if h == 1: self.eload(ft)
        self.T_projv(VF(ph, pt, 0), PA[1])
        self.T_soft(2, 0)
        self.T_sremv(jn)
        self.T_smm(jn, 0)
        if j == 3: self.frem_rest(0)
        self.T_soft(2, 1)
        self.T_pv(j, 2, 0)

    def slow_path(self):
        I = self.I; p = self.p
        p.label('L_slow')
        I('s_waitcnt vmcnt(0) lgkmcnt(0)')
        I('v_mbcnt_lo_u32_b32 v1, -1, 0'); I('v_mbcnt_hi_u32_b32 v1, -1, v1')
        I('v_and_b32 v6, 31, v1'); I('v_lshrrev_b32 v7, 5, v1')
        I('v_lshlrev_b32 v2, 7, v6'); I('v_lshl_add_u32 v2, v7, 4, v2')
        I(f'v_mov_b32 v3, 0x{OOB_G:x}'); I('v_cmp_gt_u32 vcc, 4, v6'); I('v_cndmask_b32 v3, v3, v2, vcc')
        I('v_mov_b32 v5, 0xff800000')
        I('s_mov_b32 s56, 0'); I('s_mov_b32 s57, -1')
        I('s_lshl_b32 s58, s2, 4'); I('s_add_u32 s58, s58, s20'); I('s_mul_i32 s58, s58, 12800'); I('s_mov_b32 s59, 0')
        p.label('L_sbatch')
        E = lambda t, s: 16 + 16 * t + 4 * s
        KFs = lambda t, ks: 80 + 8 * t + 4 * ks
        VFs = lambda u: 112 + 4 * u
        QA = 172
        SS = lambda t: 188 + 16 * t
        for t in range(4): I(f's_add_u32 s{60+t}, s58, {4096*t}')
        for t in range(4):
            for s in range(4):
                I(f'buffer_load_dwordx4 {V(E(t,s),4)}, v{3 if t==3 else 2}, s[{sE}:{sE+3}], s{60+t} offen offset:{32*s}')
        for h in range(2):
            for t in range(4):
                acc = SS(t)
                for s in range(4): I(f'{MF32} {V(acc,16)}, {A(WF(1,h,s),4)}, {V(E(t,s),4)}, {"0" if s==0 else V(acc,16)}')
            for t in range(4):
                for i in range(8): self.cvt(KFs(t, 0) + i, SS(t) + 2 * i)
            for t in range(4):
                acc = SS(t)
                for s in range(4): I(f'{MF32} {V(acc,16)}, {V(E(t,s),4)}, {A(WF(2,h,s),4)}, {"0" if s==0 else V(acc,16)}')
            for t in range(4):
                for i in range(8 if t < 3 else 4): self.cvt(VFs(2 * t) + i, SS(t) + 2 * i)
            for ft in range(4):
                for s in range(4): I(f'{MF32} {V(QA,16)}, {A(WF(0,h,s),4)}, {V(E(ft,s),4)}, {"0" if s==0 else V(QA,16)}')
                for i in range(8): self.cvt(QA + i, QA + 2 * i)
                for t in range(4):
                    I(f'{MF32} {V(SS(t),16)}, {V(KFs(t,0),4)}, {V(QA,4)}, 0')
                    I(f'{MF32} {V(SS(t),16)}, {V(KFs(t,1),4)}, {V(QA+4,4)}, {V(SS(t),16)}')
                for r in range(4): I(f'v_cndmask_b32 v{SS(3)+r}, v{SS(3)+r}, v5, s[56:57]')
                vals = [SS(0) + i for i in range(52)]
                I(f'v_max3_f32 v8, v{vals[0]}, v{vals[1]}, v{vals[2]}')
                k = 3
                while k < 52:
                    if k + 1 < 52: I(f'v_max3_f32 v8, v8, v{vals[k]}, v{vals[k+1]}'); k += 2
                    else: I(f'v_max_f32 v8, v8, v{vals[k]}'); k += 1
                I('v_mov_b32 v9, v8'); I('v_permlane32_swap_b32 v9, v8'); I('v_max_f32 v8, v8, v9', 'true row max')
                for k in range(0, 52, 2):
                    I(f'v_pk_add_f32 {V(vals[k],2)}, {V(vals[k],2)}, v[8:9] op_sel_hi:[1,0] neg_lo:[0,1] neg_hi:[0,1]')
                for k in range(52): I(f'v_exp_f32 v{vals[k]}, v{vals[k]}')
                I(f'v_pk_add_f32 v[10:11], {V(vals[0],2)}, {V(vals[2],2)}')
                for k in range(4, 52, 2): I(f'v_pk_add_f32 v[10:11], v[10:11], {V(vals[k],2)}')
                I('v_add_f32 v10, v10, v11'); I('v_mov_b32 v11, v10'); I('v_permlane32_swap_b32 v11, v10')
                I('v_add_f32 v10, v10, v11'); I('v_rcp_f32 v10, v10')
                PF = {0: SS(0), 1: SS(0) + 4, 2: SS(0) + 8, 3: SS(0) + 12, 4: SS(2), 5: SS(2) + 4, 6: SS(2) + 8}
                for t in range(3):
                    for i in range(8): self.cvt(PF[2 * t] + i, SS(t) + 2 * i)
                self.cvt(PF[6], SS(3)); self.cvt(PF[6] + 1, SS(3) + 2)
                I(f'v_mov_b32 v{PF[6]+2}, 0'); I(f'v_mov_b32 v{PF[6]+3}, 0')
                RA = SS(1)
                for s in range(4): I(f'{MF32} {V(RA,16)}, {A(WF(3,h,s),4)}, {V(E(ft,s),4)}, {"0" if s==0 else V(RA,16)}')
                OA = QA
                for u in range(7): I(f'{MF32} {V(OA,16)}, {V(VFs(u),4)}, {V(PF[u],4)}, {"0" if u==0 else V(OA,16)}')
                for k in range(0, 16, 2):
                    I(f'v_pk_fma_f32 {V(OA+k,2)}, {V(OA+k,2)}, v[10:11], {V(RA+k,2)} op_sel_hi:[1,0,1]')
                for i in range(8): self.cvt(OA + i, OA + 2 * i)
                for i in range(8): I(f'v_pk_max_i16 v{OA+i}, v{OA+i}, 0')
                for k in range(2):
                    I(f'buffer_store_dwordx4 {V(OA+4*k,4)}, v{3 if ft==3 else 2}, s[{sO}:{sO+3}], s{60+ft} offen offset:{64*h+32*k}')
        I(f's_add_u32 s58, s58, {BSTRIDE}'); I('s_add_u32 s59, s59, 1'); I('s_cmp_lt_u32 s59, 4')
        I('s_nop 15')
        I('s_cbranch_scc1 L_sbatch')
        I('s_endpgm')

    def build(self):
        p = self.p; I = self.I; o = self.opt
        p.raw(HEADER.rstrip())
        p.raw(f'; @launch grid=(256,1,1) block=(256,1,1) lds={4*WSTRIDE}')
        p.raw('.amdgcn_target "amdgcn-amd-amdhsa--gfx950"')
        p.raw('.text')
        p.raw(f'.globl {NAME}_kernel')
        p.raw('.p2align 8')
        p.raw(f'.type {NAME}_kernel,@function')
        p.raw(f'{NAME}_kernel:')
        self.prologue()
        p.raw('L_main:   ;')
        self.begin()
        self.rem_proj(0)
        self.group([('s_barrier', dict(pt=[('LW', 'W')], xwr=[('B', 'W')], xrd=[('v', FD + 4)]))])
        for t in range(3):
            self.eload(t, rdy=600 + 400 * t)
        self.rem_loads(0, 0)
        self.tproj(0, 0); self.tproj(0, 1)
        self.qproj(0)
        self.rem_proj(1)
        self.stamp(QF[0] + 7)
        if o.tmpl:
            self.T_smm(0, 0); self.T_srem(0); self.T_sremv(0)
            for r in range(16):
                I(f'v_mov_b32 v{PA[0]+r}, 0'); I(f'v_mov_b32 v{ACC[0]+r}, 0')
            for r in range(8): I(f'v_mov_b32 v{ACC[3]+r}, 0')
            for r in range(4): I(f'v_mov_b32 v{LS[1]+r}, 1.0'); I(f'v_mov_b32 v{VF(1,2,1)+r}, 0')
            I(f's_mov_b32 s{sPV}, 0x{OOB_G:x}', 'previous batch base: out of range on the first pass')
            I(f's_add_u32 s{sDM}, s{sB}, {BSTRIDE}', 'batch to prefetch')
            I(f's_mov_b32 s{sIT}, 0')
            self.end()
            I('s_waitcnt lgkmcnt(0)')
            I('s_nop 7')
            p.raw('.p2align 6')
            p.raw('L_loop:   ;')
            p.items.append(('PH', []))
            self.stamp()
            sched.ORDER = True
            self.begin()
            for j in range(6):
                self.T_block(j)
                self.stamp(INV[(j + 1) & 1])
            for r in (aKR, aQ0, aQ1, aVR, aRR): I(f'v_add_u32 v{r}, 2048, v{r}')
            I(f's_mov_b32 s{sPV}, s{sB}')
            I(f's_add_u32 s{sB}, s{sB}, {BSTRIDE}')
            I(f's_add_u32 s{sDM}, s{sDM}, {BSTRIDE}')
            I(f's_add_u32 s{sIT}, s{sIT}, 1')
            I(f's_cmp_eq_u32 s{sIT}, 3')
            I(f's_cselect_b32 s{sDM}, 0x{OOB_G:x}, s{sDM}', 'no batch left to prefetch')
            I(f's_cmp_lt_u32 s{sIT}, {o.x_iters}')
            self.end()
            self.stamp()
            I('s_waitcnt lgkmcnt(0)')
            p.items.append(('BACKEDGE', 'L_loop:'))
            I('s_cbranch_scc1 L_loop', 'nowait')
            self.begin()
            self.T_store(1, sPV)
            self.T_pv(5, 2, 1)
            self.T_ep(5)
            self.T_store(2, sPV)
            sched.VM_GAP = 0
            self.end()
        elif not o.loop:
            for bi in range(4):
                for j in range(6):
                    self.block(bi, j, has_next=(bi < 3), dma_next=((sB, (bi + 1) * BSTRIDE) if bi < 3 else None))
                    if j in (2, 5) or bi == 1: self.stamp(INV[j & 1])
            self.end()
        else:
            for r in range(16):
                I(f'v_mov_b32 v{(PA[0] if o.alloc2 else ACC[1])+r}, 0'); I(f'v_mov_b32 v{ACC[0]+r}, 0'); I(f'v_mov_b32 v{ACC[3]+r}, 0')
            for r in range(4): I(f'v_mov_b32 v{LS[1]+r}, 1.0')
            for r in range(8): I(f'v_mov_b32 v{VF(1,2,0)+r}, 0')
            I(f's_mov_b32 s{sPV}, 0x{OOB_G:x}', 'previous batch base: out of range on the first pass')
            I(f's_add_u32 s{sDM}, s{sB}, {BSTRIDE}', 'batch to prefetch')
            I(f's_mov_b32 s{sIT}, 0')
            self.end()
            I('s_waitcnt lgkmcnt(0)')
            I('s_nop 7')
            p.raw('.p2align 6')
            p.raw('L_loop:   ;')
            p.items.append(('PH', []))
            self.stamp()
            self.begin()
            self.block(0, 4, True, None, part=4, sbase=sPV)
            self.block(0, 5, True, None, part=2, sbase=sPV)
            self.stamp(INV[1])
            for j in range(5):
                self.block(0, j, True, (sDM, 0), part=(3 if j < 4 else 11))
                self.stamp(INV[j & 1])
            self.block(0, 5, True, None, part=1)
            for r in (aKR, aQ0, aQ1, aVR, aRR): I(f'v_add_u32 v{r}, 2048, v{r}')
            I(f's_mov_b32 s{sPV}, s{sB}')
            I(f's_add_u32 s{sB}, s{sB}, {BSTRIDE}')
            I(f's_add_u32 s{sDM}, s{sDM}, {BSTRIDE}')
            self.end()
            self.stamp()
            I(f's_add_u32 s{sIT}, s{sIT}, 1')
            I(f's_cmp_eq_u32 s{sIT}, 3')
            I(f's_cselect_b32 s{sDM}, 0x{OOB_G:x}, s{sDM}', 'no batch left to prefetch')
            I('s_waitcnt lgkmcnt(0)')
            I(f's_cmp_lt_u32 s{sIT}, {o.x_iters}')
            I('s_nop 5', 'MFMA results of the body end vs first readers of the next pass')
            I('s_cbranch_scc1 L_loop', 'nowait')
            self.begin()
            self.block(0, 4, False, None, part=4, sbase=sPV)
            self.block(0, 5, False, None, part=2, sbase=sPV)
            sched.VM_GAP = 0
            self.end()
        if o.stamps:
            self.stamp(final=True)
            I('s_memrealtime s[58:59]')
            I('s_waitcnt lgkmcnt(0)')
            I('s_mov_b32 s16, s18'); I('s_mov_b32 s17, s19'); I('s_mov_b32 s18, 0x1000000'); I('s_mov_b32 s19, 0x00020000')
            I('s_lshl_b32 s21, s2, 2'); I('s_add_u32 s21, s21, s20'); I('s_lshl_b32 s21, s21, 7')
            I('v_mov_b32 v1, 0')
            for k in range(22):
                I(f'v_mov_b32 v0, s{60+2*k if k < 21 else 58}')
                I(f'buffer_store_dword v0, v1, s[16:19], s21 offen offset:{4*k}')
        I(f'v_cmp_lt_u32 vcc, s{sLIM}, v{BAD}')
        I('s_cmp_lg_u64 vcc, 0')
        I('s_cbranch_scc1 L_slow')
        p.raw('L_end:')
        I('s_endpgm')
        self.slow_path()
        p.raw('.section .rodata,"a"')
        p.raw('.p2align 6')
        p.raw(f'.amdhsa_kernel {NAME}_kernel')
        p.raw('  .amdhsa_next_free_vgpr 512')
        p.raw(f'  .amdhsa_next_free_sgpr {102 if o.stamps else 72}')
        p.raw('  .amdhsa_accum_offset 256')
        p.raw('  .amdhsa_group_segment_fixed_size 0')
        p.raw('  .amdhsa_kernarg_size 64')
        p.raw('  .amdhsa_user_sgpr_count 2')
        p.raw('  .amdhsa_user_sgpr_kernarg_segment_ptr 1')
        p.raw('  .amdhsa_system_sgpr_workgroup_id_x 1')
        p.raw('.end_amdhsa_kernel')
        import asmlib
        asmlib.HX = o.hx
        p.finalize()
        return p.text()

if __name__ == '__main__':
    ap = argparse.ArgumentParser()
    ap.add_argument('-o', default=f'cdna_kernels/{NAME}.s')
    ap.add_argument('--nosched', action='store_true')
    ap.add_argument('--window', type=int, default=700)
    ap.add_argument('--ldmod', default='nt')
    ap.add_argument('--stmod', default='nt')
    ap.add_argument('--codepf', type=int, default=1)
    ap.add_argument('--stamps', type=int, default=0)
    ap.add_argument('--pscale', type=float, default=1.0)
    ap.add_argument('--ldslat', type=int, default=128)
    ap.add_argument('--safewar', type=int, default=0)
    ap.add_argument('--hx', type=int, default=0)
    ap.add_argument('--vmgap', type=int, default=200)
    ap.add_argument('--loop', type=int, default=1)
    ap.add_argument('--x_iters', type=int, default=4)
    ap.add_argument('--noise', type=float, default=0)
    ap.add_argument('--seed', type=int, default=0)
    ap.add_argument('--slack', type=int, default=0)
    ap.add_argument('--shadow', type=int, default=1)
    ap.add_argument('--freewait', type=int, default=1)
    ap.add_argument('--alloc2', type=int, default=1)
    ap.add_argument('--tmpl', type=int, default=1)
    ap.add_argument('--fit', type=int, default=1)
    ap.add_argument('--vmc', type=int, default=16)
    ap.add_argument('--dswc', type=int, default=16)
    o = ap.parse_args()
    sched.FIT = o.fit; sched.VMC = o.vmc; sched.DSWC = o.dswc
    sched.NOISE = o.noise; sched.SEED = o.seed; sched.SLACK = o.slack; sched.SHADOW = o.shadow; sched.FREEWAIT = o.freewait
    sched.VM_GAP = o.vmgap
    import asmlib
    asmlib.SAFE_WAR = o.safewar
    HXV = o.hx
    sched.PIPE_SCALE = o.pscale; sched.LDS_LAT = o.ldslat
    txt = Gen(o).build()
    open(o.o, 'w').write(txt)
    import collections
    c = collections.Counter(l.split()[0] for l in txt.split('L_slow:')[0].split('\n') if l.startswith('    ') and not l.strip().startswith(';'))
    print('fast path instr counts:', sum(c.values()), {k: v for k, v in c.most_common(14)})
```

```python
import re

REG_RE = re.compile(r'^(-|abs\()?([vas])(\d+)\)?$')
RNG_RE = re.compile(r'^(-|abs\()?([vas])\[(\d+):(\d+)\]\)?$')

def regs_of(tok):
    tok = tok.strip()
    m = REG_RE.match(tok)
    if m:
        return [(m.group(2), int(m.group(3)))]
    m = RNG_RE.match(tok)
    if m:
        return [(m.group(2), i) for i in range(int(m.group(3)), int(m.group(4)) + 1)]
    if tok == 'vcc':
        return [('s', 106), ('s', 107)]
    if tok == 'exec':
        return [('s', 126), ('s', 127)]
    if tok == 'm0':
        return [('s', 124)]
    if tok == 'scc':
        return [('s', 200)]
    return []

TRANS = ('v_exp_f32', 'v_log_f32', 'v_rcp_f32', 'v_rsq_f32', 'v_sqrt_f32', 'v_sin_f32', 'v_cos_f32')

class Ins:
    __slots__ = ('text', 'op', 'cls', 'rd', 'wr', 'srcc', 'ab', 'passes', 'comment', 'lds_dma', 'wide_store', 'extra', 'xrd', 'xwr', 'pw', 'pt')
    def __init__(self, text, comment=None):
        self.text = text
        self.comment = comment
        self.xrd = set(); self.xwr = set()
        self.pw = set(); self.pt = set()
        parts = text.split(None, 1)
        self.op = parts[0]
        rest = parts[1] if len(parts) > 1 else ''
        ops = []
        cur = ''
        depth = 0
        for ch in rest:
            if ch == '[': depth += 1
            if ch == ']': depth -= 1
            if ch == ',' and depth == 0:
                ops.append(cur.strip()); cur = ''
            else:
                cur += ch
        if cur.strip(): ops.append(cur.strip())
        mods = []
        if ops:
            toks = ops[-1].split()
            ops[-1] = toks[0]
            mods = toks[1:]
        op = self.op
        self.rd = set(); self.wr = set(); self.srcc = set(); self.ab = set()
        self.passes = 0; self.lds_dma = False; self.wide_store = False
        self.extra = None
        R = lambda i: regs_of(ops[i]) if i < len(ops) else []
        if op.startswith('v_smfmac'):
            self.cls = 'mfma'
            self.passes = 8 if '32x32' in op else 4
            self.wr |= set(R(0)); self.ab |= set(R(1)) | set(R(2)) | set(R(3)); self.srcc |= set(R(0))
            self.rd |= self.ab | self.srcc
        elif op.startswith('v_mfma'):
            self.cls = 'mfma'
            self.passes = 8 if '32x32' in op else 4
            self.wr |= set(R(0)); self.ab |= set(R(1)) | set(R(2)); self.srcc |= set(R(3))
            self.rd |= self.ab | self.srcc
        elif op.startswith('v_cmp'):
            self.cls = 'valu'
            self.wr |= set(R(0))
            for i in range(1, len(ops)): self.rd |= set(R(i))
        elif op.startswith('v_permlane') and 'swap' in op:
            self.cls = 'valu'
            self.wr |= set(R(0)) | set(R(1)); self.rd |= set(R(0)) | set(R(1))
        elif op.startswith('v_'):
            self.cls = 'trans' if op.replace('_e32', '').replace('_e64', '') in TRANS else 'valu'
            self.wr |= set(R(0))
            start = 1
            if op.startswith(('v_add_co', 'v_sub_co', 'v_addc_co', 'v_subb_co')):
                self.wr |= set(R(1)); start = 2
            for i in range(start, len(ops)): self.rd |= set(R(i))
            if op.startswith(('v_fmac', 'v_pk_fmac', 'v_dot2c')): self.rd |= set(R(0))
            if op.startswith('v_cndmask') and len(ops) == 3: self.rd |= set(regs_of('vcc'))
        elif op.startswith('ds_read') or op.startswith('ds_bpermute') or op.startswith('ds_permute') or op.startswith('ds_swizzle'):
            self.cls = 'lds'
            self.wr |= set(R(0))
            for i in range(1, len(ops)): self.rd |= set(R(i))
        elif op.startswith('ds_write'):
            self.cls = 'lds'
            for i in range(len(ops)): self.rd |= set(R(i))
        elif op.startswith('buffer_load') or op.startswith('global_load'):
            self.cls = 'vmem'
            if 'lds' in mods or '_lds_' in op:
                self.lds_dma = True
                for i in range(len(ops)): self.rd |= set(R(i))
                self.rd |= set(regs_of('m0'))
            else:
                self.wr |= set(R(0))
                for i in range(1, len(ops)): self.rd |= set(R(i))
        elif op.startswith('buffer_store') or op.startswith('global_store') or op.startswith('buffer_atomic'):
            self.cls = 'vmem'
            for i in range(len(ops)): self.rd |= set(R(i))
            if 'x4' in op or 'x3' in op:
                self.wide_store = True
                self.extra = set(R(0)) if op.startswith('buffer') else set(R(1))
        elif op.startswith('s_load') or op.startswith('s_memtime') or op.startswith('s_memrealtime') or op.startswith('s_buffer_load'):
            self.cls = 'smem'
            self.wr |= set(R(0))
            for i in range(1, len(ops)): self.rd |= set(R(i))
        elif op in ('s_nop', 's_waitcnt', 's_barrier', 's_endpgm', 's_setprio', 's_sleep') or op.startswith(('s_branch', 's_cbranch')):
            self.cls = 'ctl'
        elif op.startswith('s_cmp') or op.startswith('s_bitcmp'):
            self.cls = 'salu'
            for i in range(len(ops)): self.rd |= set(R(i))
            self.wr |= set(regs_of('scc'))
        elif op.startswith('s_'):
            self.cls = 'salu'
            self.wr |= set(R(0))
            for i in range(1, len(ops)): self.rd |= set(R(i))
            if 'saveexec' in op:
                self.wr |= set(regs_of('exec')); self.rd |= set(regs_of('exec'))
            if op.startswith(('s_cselect', 's_addc', 's_subb')): self.rd |= set(regs_of('scc'))
            if not op.startswith(('s_mov', 's_cselect', 's_getpc', 's_mul')): self.wr |= set(regs_of('scc'))
        else:
            raise ValueError('unknown op ' + text)

    def states(self):
        if self.op == 's_nop':
            return int(self.text.split()[1]) + 1
        return 1

def is_valu(i): return i.cls in ('valu', 'trans')
def vg(s): return set(r for r in s if r[0] in 'va')
def sg(s): return set(r for r in s if r[0] == 's')

HX = 0
def need_states(p, c):
    n = 0
    if p.cls == 'mfma':
        big = p.passes == 8
        if c.cls == 'mfma':
            if p.wr & c.ab: n = max(n, 12 if big else 8)
            if p.wr & c.srcc:
                if p.wr == c.srcc and p.op == c.op and not (HX & 8): pass
                else: n = max(n, 10 if big else 6)
            elif p.wr & c.wr:
                n = max(n, 10 if big else 6)
        elif is_valu(c) or c.cls in ('lds', 'vmem'):
            if p.wr & (c.rd | c.wr): n = max(n, (12 if big else 8) + (6 if HX & 4 else 0))
            if is_valu(c) and (p.srcc & c.wr): n = max(n, 7 if big else 3)
            if HX & 1 and is_valu(c) and (p.ab & c.wr): n = max(n, 8 if big else 4)
            if HX & 2 and not is_valu(c) and (p.ab & c.wr): n = max(n, 8)
    elif is_valu(p):
        pw_v = vg(p.wr); pw_s = sg(p.wr)
        if c.cls == 'mfma' and (pw_v & c.rd): n = max(n, 4 if HX & 16 else 2)
        if p.cls == 'trans' and c.cls == 'valu' and (pw_v & c.rd): n = max(n, 1)
        if p.cls == 'trans' and c.cls in ('lds', 'vmem') and (pw_v & c.rd): n = max(n, 1)
        if is_valu(c):
            if c.op.startswith('v_permlane') and (pw_v & c.rd): n = max(n, 2)
            if ('dpp' in c.text or 'row_' in c.text or 'quad_perm' in c.text) and (pw_v & c.rd): n = max(n, 2)
            if c.op.startswith(('v_readlane', 'v_readfirstlane')) and (pw_v & c.rd): n = max(n, 1)
            if pw_s & c.rd: n = max(n, 4 if c.op.startswith(('v_readlane', 'v_writelane')) else 2)
            if ('op_sel' in p.text and not p.op.startswith('v_pk_')) or 'sdwa' in p.text:
                if pw_v & (c.rd | c.wr): n = max(n, 1)
        if c.cls == 'vmem' and (pw_s & c.rd): n = max(n, 5)
        if c.cls in ('salu', 'ctl') and (pw_s & c.rd): n = max(n, 1)
    elif p.cls == 'salu':
        if c.lds_dma and (('s', 124) in p.wr): n = max(n, 1)
    elif p.cls == 'vmem' and p.wide_store:
        if (is_valu(c) or c.cls == 'mfma') and (p.extra & c.wr): n = max(n, 2)
        elif p.extra & c.wr: n = max(n, 1)
    return n

MAXLOOK = 20
SAFE_WAR = 0

class Prog:
    def __init__(self):
        self.items = []
    def I(self, text, comment=None):
        self.items.append(Ins(text, comment))
    def raw(self, text):
        self.items.append(text)
    def label(self, name):
        self.items.append(name + ':')
    def c(self, text):
        self.items.append('    ; ' + text)

    def finalize(self, auto_wait=True):
        out = []
        vm = []
        lg = []
        smem_out = False
        def flush_all():
            pass
        for it in self.items:
            if isinstance(it, tuple) and it[0] == 'BACKEDGE':
                out.append(it); continue
            if isinstance(it, tuple) and it[0] == 'PH':
                vm = [set(x) for x in it[1]]
                continue
            if isinstance(it, str):
                if it.endswith(':') and auto_wait:
                    if any(w for w in vm) or any(w for w in lg) or smem_out:
                        out.append(Ins('s_waitcnt vmcnt(0) lgkmcnt(0)', 'auto: label'))
                    vm = []; lg = []; smem_out = False
                out.append(it)
                continue
            ins = it
            if auto_wait:
                touched = ins.rd | ins.wr | ins.pt | set(('SRC',) + r for r in ins.wr)
                nv = None; nl = None
                for k in range(len(vm) - 1, -1, -1):
                    if vm[k] & touched:
                        nv = len(vm) - 1 - k; break
                for k in range(len(lg) - 1, -1, -1):
                    if lg[k] & touched:
                        nl = len(lg) - 1 - k; break
                if nl is not None and smem_out: nl = 0
                if ins.op.startswith(('s_branch', 's_cbranch')) and ins.comment != 'nowait':
                    if any(w for w in vm): nv = 0
                    if any(w for w in lg): nl = 0
                if nv is not None or nl is not None:
                    t = 's_waitcnt'
                    if nv is not None:
                        nv = min(nv, 63)
                        t += f' vmcnt({nv})'; vm = vm[len(vm) - nv:] if nv else []
                    if nl is not None:
                        nl = min(nl, 15)
                        t += f' lgkmcnt({nl})'; lg = lg[len(lg) - nl:] if nl else []
                        if nl == 0: smem_out = False
                    out.append(Ins(t, 'auto'))
                if ins.op == 's_waitcnt':
                    m = re.search(r'vmcnt\((\d+)\)', ins.text)
                    if m:
                        n = int(m.group(1)); vm = vm[len(vm) - n:] if n and n < len(vm) else ([] if n == 0 else vm)
                    m = re.search(r'lgkmcnt\((\d+)\)', ins.text)
                    if m:
                        n = int(m.group(1)); lg = lg[len(lg) - n:] if n and n < len(lg) else ([] if n == 0 else lg)
                        if n == 0: smem_out = False
                if ins.cls == 'vmem' and ins.comment != 'nocount': vm.append(set(ins.wr) | ins.pw | (set(('SRC',) + r for r in vg(ins.rd)) if SAFE_WAR & 2 else set()))
                if ins.cls == 'lds': lg.append(set(ins.wr) | ins.pw | (set(('SRC',) + r for r in vg(ins.rd)) if SAFE_WAR & 1 else set()))
                if ins.cls == 'smem':
                    lg.append(set(ins.wr)); smem_out = True
            out.append(ins)
        res = []
        hist = []
        for it in out:
            if isinstance(it, tuple) and it[0] == 'BACKEDGE':
                k = next(n for n, x in enumerate(res) if isinstance(x, str) and x.startswith(it[1]))
                head = [x for x in res[k + 1:k + 40] if not isinstance(x, str)][:20]
                tail = [x for x in hist if x != 'LABEL'][-20:]
                need = 0
                dh = 1
                for c in head:
                    dist = dh
                    for p_ in reversed(tail):
                        n = need_states(p_, c)
                        if n > dist: need = max(need, n - dist)
                        dist += p_.states()
                    dh += c.states()
                if need:
                    nop = Ins(f's_nop {need-1}', 'hazard across the back edge')
                    res.append(nop); hist.append(nop)
                continue
            if isinstance(it, str):
                if it.endswith(':'):
                    res.append(it)
                    hist.append('LABEL')
                else:
                    res.append(it)
                continue
            dist = 0
            need = 0
            for p in reversed(hist[-MAXLOOK:]):
                if p == 'LABEL':
                    continue
                n = need_states(p, it)
                if n > dist: need = max(need, n - dist)
                dist += p.states()
                if dist >= 19: break
            while need > 0:
                k = min(need, 16)
                nop = Ins(f's_nop {k-1}', 'hazard')
                res.append(nop); hist.append(nop)
                need -= k
            res.append(it); hist.append(it)
        self.final = res
        return res

    def align8(self, mode=1):
        import subprocess, tempfile, os
        E32OK = ('v_exp_f32', 'v_rcp_f32', 'v_add_f32', 'v_mov_b32', 'v_lshlrev_b32', 'v_mul_f32', 'v_xor_b32', 'v_or_b32', 'v_max_f32')
        def size(i):
            op = i.op; t = i.text
            lit = bool(re.search(r'(?<![\w\[:])(0x[0-9a-fA-F]+|\d+)(?![\w\]:.(])', t.split(None, 1)[1] if ' ' in t else '') and
                       any((int(x, 0) > 64) for x in re.findall(r'(?<![\w\[:(])(0x[0-9a-fA-F]+|\d+)(?![\w\]:.)])', t.split(None, 1)[1] if ' ' in t else '')))
            if i.cls in ('mfma', 'lds', 'vmem', 'smem'): return 8
            if i.cls == 'ctl': return 4
            if i.cls == 'salu': return 8 if lit else 4
            if op.endswith('_e64'): return 8
            if op in E32OK or op in ('v_add_u32', 'v_and_b32', 'v_sub_u32', 'v_lshrrev_b32', 'v_accvgpr_read_b32x'):
                return 8 if lit else 4
            if op.startswith('v_cndmask') and t.rstrip().endswith('vcc'): return 4
            if op.startswith('v_cmp') and ' vcc,' in t: return 8 if lit else 4
            return 8
        off = None; run = []
        nconv = 0; nmis = 0
        for it in self.final:
            if isinstance(it, str):
                if it.startswith('.p2align'): off = 0; run = []
                elif it.startswith('L_end'): off = None
                continue
            if off is None: continue
            sz = size(it)
            if sz == 4:
                if mode == 2 and it.op in E32OK:
                    it.text = it.text.replace(it.op, it.op + '_e64', 1); it.op += '_e64'; sz = 8
                else:
                    run.append(it); off = (off + 4) % 8; continue
            if off == 4:
                c = [x for x in run if x.op in E32OK]
                if c:
                    x = c[-1] if False else c[0]
                    x.text = x.text.replace(x.op, x.op + '_e64', 1); x.op += '_e64'; off = 0; nconv += 1
                else: nmis += 1
            run = []
        return nconv, nmis

    def text(self):
        lines = []
        for it in self.final:
            if isinstance(it, str): lines.append(it)
            else:
                lines.append('    ' + it.text + (('    ; ' + it.comment) if it.comment else ''))
        return '\n'.join(lines) + '\n'

def V(a, n=1):
    return f'v{a}' if n == 1 else f'v[{a}:{a+n-1}]'
def S(a, n=1):
    return f's{a}' if n == 1 else f's[{a}:{a+n-1}]'
```

```python
import random
from asmlib import Ins, need_states, is_valu

LDS_LAT = 128
VM_GAP = 0
PIPE_SCALE = 1.0
DMA_LAT = 2500
NOISE = 0.0
SEED = 0
SHADOW = True
SLACK = 200
FREEWAIT = True
FIT = True
PKDRAIN = 12
HOIST = 400
LDS_GAP = 32
MEMPORT = True
VMC = 16
DSWC = 16
ORDER = False

class Node:
    __slots__ = ('ins', 'idx', 'rd', 'wr', 'preds', 'succs', 'npred', 'prio', 'ready', 'pos_end', 't_issue', 'kind', 'wave', 'port', 'pipe', 'isvm', 'touch')
    def __init__(self, ins_list, idx):
        self.ins = ins_list
        self.idx = idx
        self.rd = set(); self.wr = set(); self.touch = set()
        for i in ins_list:
            self.rd |= i.rd | i.xrd
            self.wr |= i.wr | i.xwr
            self.touch |= i.rd | i.wr | i.pt
        self.preds = []; self.succs = []
        self.prio = 0; self.ready = 0
        wave = 0; port = 0; pipe = 0
        for i in ins_list:
            w, p, m = cost(i)
            wave += w; port += p; pipe += m
        self.wave = wave; self.port = port; self.pipe = pipe
        self.kind = ins_list[0].cls if len(ins_list) == 1 else 'group'
        self.isvm = any(i.cls == 'vmem' for i in ins_list)

def cost(i):
    if i.cls == 'mfma':
        return (4, 12 if i.op.startswith('v_smfmac') else 8, int((32 if i.passes == 8 else 16) * PIPE_SCALE))
    if i.cls == 'trans' or i.op.startswith('v_permlane'):
        return (8, 8, 0)
    if i.op.startswith('v_pk_') and i.op.endswith('f32'):
        return (4, 4, 4)
    if i.cls == 'valu':
        return (4, 4, 0)
    if MEMPORT:
        if i.cls == 'lds':
            c = 20 if i.op.startswith('ds_write_b128') else (12 if i.op.startswith('ds_write') else 4)
            return (c, c, 0)
        if i.cls == 'vmem':
            return (12, 12, 0)
    if i.cls == 'lds':
        return (DSWC if i.op.startswith('ds_write_b128') else (DSWC // 2 if i.op.startswith('ds_write') else 4), 0, 0)
    if i.cls == 'vmem':
        return (VMC, 0, 0)
    return (4, 0, 0)

def latency(p, c, regs):
    pi = p.ins[-1]
    if pi.lds_dma and c.ins[0].cls == 'lds':
        return DMA_LAT
    if p.kind == 'mfma':
        ci = c.ins[0]
        if ci.cls == 'mfma' and (regs <= ci.srcc) and not (regs & ci.ab):
            if ci.op == pi.op: return 4
            return 48 if pi.passes == 8 else 32
        return 56 if pi.passes == 8 else 40
    if p.kind == 'lds' and pi.wr:
        if any(r[0] in 'va' for r in regs): return LDS_LAT
        return 4
    if p.kind == 'lds' and c.ins[0].lds_dma:
        return LDS_LAT
    if p.kind == 'vmem' and pi.wr:
        if any(r[0] in 'va' for r in regs): return 1500
        return 4
    return p.wave

def build(items):
    nodes = [Node(it if isinstance(it, list) else [it], k) for k, it in enumerate(items)]
    lastw = {}; readers = {}
    for n in nodes:
        deps = {}
        for r in n.rd:
            w = lastw.get(r)
            if w is not None: deps.setdefault(w, set()).add(r)
        for r in n.wr:
            w = lastw.get(r)
            if w is not None: deps.setdefault(w, set()).add(r)
            for q in readers.get(r, ()):
                if q is not n: deps.setdefault(q, set())
        for pnode, regs in deps.items():
            if regs: lat = latency(pnode, n, regs)
            elif pnode.kind == 'lds' and n.ins[0].lds_dma: lat = LDS_LAT
            else: lat = pnode.wave
            n.preds.append((pnode, lat, need_states(pnode.ins[-1], n.ins[0]))); pnode.succs.append((n, lat))
        for r in n.rd: readers.setdefault(r, []).append(n)
        for r in n.wr:
            lastw[r] = n; readers[r] = []
    return nodes

def schedule(items, window=600, verbose=False, mfma_bias=True):
    nodes = build(items)
    rnd = random.Random(SEED)
    for n in reversed(nodes):
        best = 0
        for s, lat in n.succs:
            best = max(best, lat + s.prio)
        n.prio = best + max(n.wave, n.port, n.pipe // 2)
    if ORDER:
        for n in nodes:
            n.prio = -4 * n.idx
            if n.kind == 'lds' and n.ins[0].wr: n.prio += HOIST
    if NOISE:
        for n in nodes: n.prio += rnd.uniform(-NOISE, NOISE)
    for n in nodes:
        n.npred = len(n.preds); n.ready = 0
        for i in n.ins:
            for x in i.xrd:
                if x[0] == 'RDY': n.ready = max(n.ready, x[1])
    ready = [n for n in nodes if n.npred == 0]
    now = 0; port_free = 0; pipe_free = 0; pos = 0; vm_free = 0; lds_free = 0
    out = []
    done = [False] * len(nodes)
    oldest = 0
    busy_port = 0; busy_pipe = 0
    lg = []
    while ready:
        while oldest < len(nodes) and done[oldest]: oldest += 1
        shadow = port_free > now
        maxprio = max(n.prio for n in ready)
        best = None; bestkey = None
        gap = pipe_free - max(now, port_free)
        mready = FIT and gap > 0 and any(n.pipe and n.ready <= pipe_free and n.idx <= oldest + window for n in ready)
        pkr = [n for n in ready if n.pipe and n.kind != 'mfma' and n.ready <= pipe_free + PKDRAIN]
        for n in ready:
            if n.idx > oldest + window: continue
            if pkr and n.kind == 'mfma': continue
            est = max(now, n.ready)
            needw = any(t & n.touch for _, t in lg)
            if needw: est = max(est, now + 4)
            if n.port: est = max(est, port_free)
            if n.pipe: est = max(est, pipe_free + (PKDRAIN if n.kind != 'mfma' else 0))
            if n.isvm: est = max(est, vm_free)
            if n.kind == 'lds': est = max(est, lds_free)
            miss = 0
            for p, _, ns in n.preds:
                if ns:
                    d = pos - p.pos_end + (1 if needw else 0)
                    if ns > d: miss = max(miss, ns - d)
            if miss: est = max(est, now + 4 * miss + (4 if needw else 0))
            k0 = est
            if mfma_bias and n.pipe: k0 -= 2
            if SHADOW and not n.port and not shadow and n.prio < maxprio - SLACK: k0 += 6
            if mready and n.port and not n.pipe and n.port > gap: k0 += 1
            key = (k0, -n.prio, n.idx)
            if bestkey is None or key < bestkey:
                best = n; bestkey = key; best_est = est; best_w = needw
        n = best
        if FREEWAIT and shadow and best_est >= port_free and not best_w:
            k = 0
            while k < len(lg) and lg[k][0] + LDS_LAT <= now: k += 1
            while k > 0 and not lg[k - 1][1]: k -= 1
            if k > 0 and len(lg) - k <= 15:
                out.append(Ins(f's_waitcnt lgkmcnt({len(lg) - k})', 'shadow'))
                lg = lg[k:]; now += 4; pos += 1
                continue
        ready.remove(n)
        done[n.idx] = True
        if best_w:
            kk = max(k for k, (_, t) in enumerate(lg) if t & n.touch)
            lg = lg[kk + 1:]; pos += 1
        t = best_est
        n.t_issue = t
        now = t + n.wave
        if n.port: port_free = t + n.port; busy_port += n.port
        if n.pipe: pipe_free = t + n.pipe; busy_pipe += n.pipe
        if n.isvm: vm_free = t + VM_GAP
        if n.kind == 'lds': lds_free = t + (LDS_GAP if n.ins[0].wr else 2 * LDS_GAP)
        for i in n.ins:
            if i.cls == 'lds': lg.append((t, set(i.wr) | i.pw))
        pos += len(n.ins)
        n.pos_end = pos
        out.extend(n.ins)
        for s, lat in n.succs:
            s.ready = max(s.ready, t + lat)
            s.npred -= 1
            if s.npred == 0: ready.append(s)
    if verbose:
        print(f'schedule: {len(out)} instrs, est {now} cycles, port busy {busy_port}, pipe busy {busy_pipe}')
    return out, now
```

```python
import sys, struct, argparse
sys.path.insert(0, 'gen')
from asmlib import *
import sched
from sched import schedule

NAME = 'standalone__attention_interact_autoint__recsys'
HEADER = open('cdna_kernels/%s.s.ref' % NAME).read().split('; Override launch')[0]
def f32bits(x): return struct.unpack('<I', struct.pack('<f', x))[0]
CSCALE = f32bits((32.0 ** -0.5) * 1.4426950408889634)
MF32 = 'v_mfma_f32_32x32x16_bf16'
MF32K8 = 'v_mfma_f32_32x32x8_bf16'
MF16 = 'v_mfma_f32_16x16x32_bf16'
MF16K16 = 'v_mfma_f32_16x16x16_bf16'
SMF = 'v_smfmac_f32_16x16x64_bf16'
OOB_G = 0x40000000
OOB_L = 0x40000
def A(a, n=1): return f'a{a}' if n == 1 else f'a[{a}:{a+n-1}]'

WF = lambda m, h, s: ((m * 2 + h) * 4 + s) * 4
EC = lambda t, s: 128 + 16 * t + 4 * s
KRA = lambda h, ks: 176 + 8 * h + 4 * ks
STR0 = 192; NSTR = 8; OUTB = 224
SEL = 240; ONE = 244; SEL16 = 248; ONE16 = 254
VREM = lambda h: 250 + 2 * h
ACC = [0, 16, 32, 48]
PA = [64, 80]
QF = [96, 104]
LS = [112, 116]
SR = 120
SR2 = [120, 120]
INV = [124, 125]; BAD = 126
aE = 127; vA = 128; vB = 129; aOW = 130; aLIN = 131; aKR = 132; aQ1 = 133; aVR = 134; aRR = 135
aPW = 136; aPR = 137; vOR = 138; aQ0 = 139
FD = 140
RR = 156
IDX = 158; aPR6 = 159
tW0 = 104; tW1 = 105; tER = 106; tWQ = 107
KF = lambda h, t, ks: 160 + 24 * h + 8 * t + 4 * ks
VF = lambda h, t, sub: 208 + 24 * h + 8 * t + 4 * sub
sE = 24; sO = 28
sB = 40
sWB = 42
sT = 43; sT2 = 44; sIT = 45; sNX = 46; sPV = 47; sDM = 48
sB3 = 50; sVM = 52; sLIM = 54
WSTRIDE = 34816; L_OUT = 12288; L_REM = 24576; L_PSH = 32768
BSTRIDE = 4 * 12800

class Gen:
    def __init__(self, opt):
        self.opt = opt; self.p = Prog(); self.reg = None
        self.strn = 0; self.nstamp = 0; self.nocount = False
    def mk(self, text, comment=None, xrd=(), xwr=(), pw=(), pt=()):
        ins = Ins(text, comment)
        ins.xrd = set(xrd); ins.xwr = set(xwr); ins.pw = set(pw); ins.pt = set(pt)
        if ins.cls == 'vmem':
            if self.nocount: ins.comment = 'nocount'
        return ins
    def I(self, text, comment=None, **kw):
        ins = self.mk(text, comment, **kw)
        (self.p.items if self.reg is None else self.reg).append(ins)
    def group(self, lst):
        g = [self.mk(t, **kw) for t, kw in lst]
        if self.reg is None: self.p.items.extend(g)
        else: self.reg.append(g)
    def begin(self): self.reg = []
    def end(self):
        r = self.reg; self.reg = None
        if self.opt.nosched:
            flat = []
            for it in r: flat.extend(it if isinstance(it, list) else [it])
        else:
            flat, est = schedule(r, window=self.opt.window, verbose=True)
        self.p.items.extend(flat)
    def stamp(self, anchor=None, final=False):
        o = self.opt
        if not o.stamps: return
        if o.stamps == 4 and not (self.nstamp == 0 or final): return
        if final: self.nstamp = 19
        if self.nstamp >= 19 and not final: return
        k = self.nstamp; self.nstamp += 1
        self.I(f's_memtime s[{60+2*k}:{61+2*k}]', xrd=([('v', anchor)] if anchor is not None else []), xwr=[('X', 'stamp')])
    def slot(self):
        r = STR0 + 4 * (self.strn % NSTR); self.strn += 1
        return r
    def cvt(self, dst, a): self.I(f'v_cvt_pk_bf16_f32 v{dst}, v{a}, v{a+1}')

    def eload(self, t, rdy=0):
        for s in range(4):
            self.I(f'ds_read_b128 {A(EC(t,s),4)}, v{aE} offset:{t*4096+s*256}', xrd=[('L', f'E{t}'), ('RDY', rdy)], pt=[('L', f'E{t}')], pw=[('LR', f'E{t}')])
    def dma(self, base, boff, t):
        ld = self.opt.ldmod
        self.I(f's_add_u32 m0, s{sWB}, {t*4096}')
        self.I(f's_add_u32 s{sT}, s{base}, {boff + t*4096}')
        for g in range(4):
            self.I(f'buffer_load_dwordx4 v{vA if g < 2 else vB}, s[{sE}:{sE+3}], s{sT} offen offset:{g*1024} {ld} lds',
                   xwr=[('L', f'E{t}')], pw=[('L', f'E{t}')], pt=[('LR', f'E{t}')])

    def prologue(self):
        I = self.I; p = self.p; o = self.opt
        I('s_cmp_ge_u32 s2, 256')
        I('s_cbranch_scc1 L_end')
        self.stamp()
        if o.stamps: I('s_memrealtime s[100:101]'); I('s_load_dwordx2 s[18:19], s[0:1], 56')
        I('s_load_dwordx4 s[4:7], s[0:1], 0')
        I('s_load_dwordx4 s[8:11], s[0:1], 16')
        I('s_load_dwordx4 s[12:15], s[0:1], 32')
        I('v_lshrrev_b32 v2, 6, v0')
        I('v_and_b32 v1, 63, v0', 'lane')
        I('v_readfirstlane_b32 s20, v2', 'wave id = weight matrix handled in the prologue')
        if o.codepf:
            I('s_getpc_b64 s[16:17]')
            I('s_lshr_b32 s21, s2, 3'); I('s_and_b32 s21, s21, 3'); I(f's_mul_i32 s21, s21, {o.codepf*4096}')
            I('s_add_u32 s16, s16, s21'); I('s_addc_u32 s17, s17, 0')
            I('v_lshlrev_b32 v100, 4, v0', 'tid*16 : 4 KB per pass')
            I('v_mov_b32 v101, s17')
            I('v_add_co_u32 v100, vcc, s16, v100')
            I('v_addc_co_u32 v101, vcc, 0, v101, vcc')
            for k in range(o.codepf):
                if k:
                    I('v_add_co_u32 v100, vcc, 0x1000, v100')
                    I('v_addc_co_u32 v101, vcc, 0, v101, vcc')
                I(f'global_load_dwordx4 {A(OUTB+4*k,4)}, v[100:101], off')
        I('v_and_b32 v6, 7, v1'); I('v_lshrrev_b32 v7, 3, v1')
        I('v_and_b32 v8, 3, v1', 'fq'); I('v_bfe_u32 v9, v1, 2, 1', 'bit2'); I('v_bfe_u32 v10, v1, 3, 1', 'bit3')
        I('v_bfe_u32 v11, v1, 4, 1', 'q&1'); I('v_lshrrev_b32 v12, 5, v1', 'q>>1')
        I(f's_lshl_b32 s{sB}, s2, 4'); I(f's_add_u32 s{sB}, s{sB}, s20'); I(f's_mul_i32 s{sB}, s{sB}, 12800')
        I(f's_mul_i32 s{sWB}, s20, {WSTRIDE}')
        I('v_bfe_u32 v15, v1, 2, 3', 'dg')
        I('s_cmp_eq_u32 s20, 3')
        I('s_cselect_b32 s36, 128, 64', 'row stride'); I('s_cselect_b32 s37, 64, 4096', 'head offset')
        I('s_lshl_b32 s38, s36, 3')
        I('v_mul_lo_u32 v4, v15, s38')
        I('v_lshl_add_u32 v4, v8, 4, v4')
        I('v_mul_lo_u32 v5, v12, s37')
        I('v_add_u32 v4, v4, v5')
        I(f'v_lshlrev_b32 v{vA}, 7, v6')
        I(f'v_xor_b32 v3, 1, v7')
        I(f'v_lshl_add_u32 v{vB}, v3, 4, v{vA}')
        I(f'v_lshl_add_u32 v{vA}, v7, 4, v{vA}')
        I('v_and_b32 v27, 31, v1')
        I(f'v_mul_u32_u24 v13, {BSTRIDE}, v12')
        I('v_lshl_add_u32 v13, v27, 4, v13', 'remainder rows: half wave per batch, 512 B each')
        I('v_bfe_u32 v14, v1, 3, 2', 'g')
        I('v_xor_b32 v3, v12, v11')
        I(f'v_lshlrev_b32 v{aE}, 10, v14')
        I(f'v_lshl_add_u32 v{aOW}, v12, 7, v{aE}')
        I(f'v_lshl_add_u32 v{aE}, v3, 7, v{aE}')
        I(f'v_lshl_add_u32 v{aE}, v6, 4, v{aE}')
        I(f'v_add_u32 v{aE}, s{sWB}, v{aE}')
        I(f'v_lshl_add_u32 v{aOW}, v6, 4, v{aOW}')
        I(f'v_add_u32 v{aOW}, s{sWB}, v{aOW}')
        I(f'v_lshlrev_b32 v{tW0}, 4, v1', 'lane*16')
        I(f'v_add_u32 v{tW1}, {2*WSTRIDE}, v{tW0}')
        I(f'v_add_u32 v{aLIN}, s{sWB}, v{tW0}')
        I(f's_add_u32 s45, s{sWB}, {L_REM}')
        I(f's_mov_b32 s{sB3}, 0xff00ff00'); I(f's_mov_b32 s{sB3+1}, 0xff00ff00')
        I(f's_mov_b32 s{sVM}, 0x00000f0f'); I(f's_mov_b32 s{sVM+1}, 0x00000f0f')
        I(f's_mov_b32 s{sLIM}, 0x5f800000', '2^64')
        I(f'v_mov_b32 v16, 0x{OOB_L:x}')
        I('v_lshlrev_b32 v17, 5, v8', 'fq*32')
        I('v_lshl_add_u32 v18, v12, 4, v17', '+(q>>1)*16')
        I('v_add_u32 v18, s45, v18')
        I('v_cmp_eq_u32 vcc, v9, v11')
        I('v_cndmask_b32 v18, v16, v18, vcc', 'valid iff (q&1)==bit2')
        I(f'v_cndmask_b32 v{aQ0}, v18, v16, s[{sB3}:{sB3+1}]')
        I(f'v_cndmask_b32 v{aQ1}, v16, v18, s[{sB3}:{sB3+1}]')
        I(f'v_lshl_add_u32 v{aPR}, v10, 7, v18')
        I(f'v_add_u32 v{aPR}, {L_PSH - L_REM}, v{aPR}')
        I('v_lshlrev_b32 v19, 3, v12')
        I(f'v_sub_u32 v{aPR6}, v{aPR}, v19', 'key-remainder step: (q>>1)*8 instead of *16')
        I('v_lshlrev_b32 v19, 9, v10'); I('v_lshl_add_u32 v19, v8, 7, v19'); I('v_lshl_add_u32 v19, v12, 4, v19')
        I(f'v_add_u32 v19, s{sWB}, v19')
        I(f'v_cndmask_b32 v{tER}, v16, v19, vcc')
        I('v_and_b32 v19, 1, v1', 'r&1'); I('v_lshl_add_u32 v19, v10, 1, v19', 'key = 2*bit3 + r')
        I('v_lshlrev_b32 v19, 5, v19'); I('v_lshl_add_u32 v19, v12, 4, v19'); I('v_add_u32 v19, s45, v19')
        I('v_cndmask_b32 v19, v16, v19, vcc')
        I('v_bfe_u32 v20, v1, 1, 1', 'bit1')
        I('v_cmp_eq_u32 s[22:23], 0, v20')
        I(f'v_cndmask_b32 v{aKR}, v16, v19, s[22:23]')
        I('s_waitcnt lgkmcnt(0)')
        self.stamp()
        I('s_mov_b32 s32, s6'); I('s_mov_b32 s33, s7')
        I('s_cmp_eq_u32 s20, 1'); I('s_cselect_b32 s32, s8, s32'); I('s_cselect_b32 s33, s9, s33')
        I('s_cmp_eq_u32 s20, 2'); I('s_cselect_b32 s32, s10, s32'); I('s_cselect_b32 s33, s11, s33')
        I('s_cmp_eq_u32 s20, 3'); I('s_cselect_b32 s32, s12, s32'); I('s_cselect_b32 s33, s13, s33')
        I('s_mov_b32 s34, 8192'); I('s_mov_b32 s35, 0x00020000')
        I('s_mov_b32 s37, 0')
        for j in range(8):
            I(f'buffer_load_dwordx4 v[{160+4*j}:{163+4*j}], v4, s[32:35], s37 offen')
            if j < 7: I('s_add_u32 s37, s37, s36')
        for (d, src, n) in ((sE, 4, 52428800), (sO, 14, 52428800)):
            I(f's_mov_b32 s{d}, s{src}'); I(f's_mov_b32 s{d+1}, s{src+1}'); I(f's_mov_b32 s{d+2}, {n}'); I(f's_mov_b32 s{d+3}, 0x00020000')
        rest = []
        J = lambda *a, **k: rest.append((a, k))
        J('v_mov_b32 v19, 0x3f803f80')
        J('v_cndmask_b32 v20, 0, v19, vcc', 'ones iff (q&1)==bit2')
        J('v_cmp_eq_u32 s[22:23], 0, v8', 'row r==0')
        J('v_cndmask_b32 v20, 0, v20, s[22:23]')
        J('v_cndmask_b32 v21, 0, v19, s[22:23]')
        for k in range(2):
            J(f'v_accvgpr_write_b32 a{SEL16+k}, v20'); J(f'v_accvgpr_write_b32 a{ONE16+k}, v21')
        J('v_cmp_eq_u32 vcc, 0, v9')
        J('v_cndmask_b32 v20, 0, v19, vcc', 'rows with bit2==0 sum the even lane groups')
        J('v_xor_b32 v21, v19, v20')
        for k in range(4):
            J(f'v_accvgpr_write_b32 a{SEL+k}, v{20 if k < 2 else 21}'); J(f'v_accvgpr_write_b32 a{ONE+k}, v19')
        J('v_mov_b32 v20, 0x44444444'); J('v_mov_b32 v21, 0xeeeeeeee')
        J(f'v_cndmask_b32 v{IDX}, v21, v20, s[22:23]', 'sparse index: row 0 -> positions 0,1 ; others -> 2,3')
        J('v_lshlrev_b32 v21, 3, v27', 'i*8')
        J('v_add_u32 v21, s45, v21')
        J(f'v_lshl_add_u32 v{aVR}, v12, 2, v21', 'V rem read: 4 bytes at i*8 + hf*4')
        J(f'v_lshl_add_u32 v{INV[0]}, v12, 11, v21', 'V rem write addr: + bb*2048 (prologue only)')
        J('v_mov_b32 v19, 0')
        for h in range(2): J(f'v_accvgpr_write_b32 a{VREM(h)+1}, v19')
        J('v_lshlrev_b32 v23, 4, v11')
        J('v_lshl_add_u32 v23, v12, 3, v23', '(q&1)*16+(q>>1)*8')
        J('v_add_u32 v24, v23, v17', '+fq*32')
        J('v_lshl_add_u32 v25, v9, 7, v24', '+bit2*128 : chunk index inside a 256 B block')
        J('v_add_u32 v25, s45, v25')
        J(f'v_lshl_add_u32 v{aRR}, v10, 8, v25', 'res rem read: +hd*256')
        J(f'v_lshl_add_u32 v{INV[1]}, v10, 11, v25', 'K/Q/res rem write addr: +bb*2048 (prologue only)')
        J(f'v_lshl_add_u32 v{aPW}, v9, 8, v24')
        J(f'v_lshl_add_u32 v{aPW}, v10, 7, v{aPW}')
        J(f'v_add_u32 v{aPW}, s45, v{aPW}')
        J(f'v_add_u32 v{aPW}, {L_PSH - L_REM}, v{aPW}')
        J(f'v_lshl_add_u32 v{vOR}, v8, 7, v23')
        J(f'v_lshl_add_u32 v{vOR}, v10, 6, v{vOR}')
        J(f'v_lshl_add_u32 v{vOR}, v9, 5, v{vOR}')
        J(f'v_mov_b32 v{BAD}, 0')
        J('v_lshlrev_b32 v5, 12, v12')
        J('v_lshl_add_u32 v5, v15, 9, v5')
        J('v_bfe_u32 v14, v8, 1, 1'); J('v_lshl_add_u32 v5, v14, 8, v5')
        J('v_and_b32 v14, 1, v8'); J('v_lshl_add_u32 v5, v14, 6, v5')
        J(f'v_add_u32 v5, s{sWB}, v5')
        J('s_lshl_b32 s21, s20, 10')
        J(f'v_add_u32 v{tWQ}, s21, v{tW0}', 'this wave scales k-step (wave id) of Wq')
        J('s_mov_b32 s21, 0x05040100'); J('s_mov_b32 s22, 0x07060302')
        J(f's_mov_b32 s39, 0x{CSCALE:08x}', 'scale*log2e folded into Wq')
        for r in range(4): J(f'v_mov_b32 v{LS[1]+r}, 1.0'); J(f'v_mov_b32 v{VF(1,2,1)+r}, 0')
        loads = []
        K = lambda *a, **k: loads.append((a, k))
        ld = o.ldmod
        def kdma(t):
            K(f's_add_u32 m0, s{sWB}, {t*4096}'); K(f's_add_u32 s{sT}, s{sB}, {t*4096}')
            for g in range(4):
                K(f'buffer_load_dwordx4 v{vA if g < 2 else vB}, s[{sE}:{sE+3}], s{sT} offen offset:{g*1024} {ld} lds', pw=[('L', f'E{t}')])
        kdma(0)
        for pr in range(2):
            K(f's_add_u32 m0, s{sWB}, {L_PSH + pr*1024}'); K(f's_add_u32 s{sT}, s{sB}, {2*pr*BSTRIDE + 12288}')
            K(f'buffer_load_dwordx4 v13, s[{sE}:{sE+3}], s{sT} offen {ld} lds', pw=[('L', 'RAW')])
        if o.early >= 2: kdma(1)
        if o.early >= 3: kdma(2)
        nv = sum(1 for a, k in loads if a[0].startswith('buffer'))
        per = (len(rest) + nv - 1) // nv
        for a, k in loads:
            I(*a, **k)
            if a[0].startswith('buffer'):
                for _ in range(per):
                    if rest:
                        a2, k2 = rest.pop(0); I(*a2, **k2)
        for a2, k2 in rest: I(*a2, **k2)
        self.stamp()
        for jp in range(4):
            for b in range(8):
                s0 = 160 + 4 * (2 * jp) + (b >> 1); s1 = 160 + 4 * (2 * jp + 1) + (b >> 1)
                I(f'v_perm_b32 v{64+4*b+jp}, v{s1}, v{s0}, s{22 if b & 1 else 21}')
        for b in range(8):
            I(f'ds_write_b128 v5, v[{64+4*b}:{67+4*b}] offset:{L_OUT + (b>>2)*128 + (b&3)*16}')
        for t in range(o.early, 3): self.dma(sB, 0, t)
        I('s_waitcnt lgkmcnt(0)')
        I('s_barrier')
        self.stamp()

    def wload(self, m, h, extra=()):
        for s in range(4):
            self.I(f'ds_read_b128 {A(WF(m,h,s),4)}, v{tW0 if m < 2 else tW1} offset:{(m&1)*WSTRIDE + L_OUT + h*4096 + s*1024}',
                   pw=[('LW', 'W')], xrd=list(extra), xwr=[('WR', m, h, s)])

    def wq_scale(self):
        I = self.I
        T = 32
        for h in range(2):
            I(f'ds_read_b128 {V(T+4*h,4)}, v{tWQ} offset:{L_OUT + h*4096}')
        for d in range(8):
            I(f'v_lshlrev_b32 v{T+8}, 16, v{T+d}'); I(f'v_and_b32 v{T+9}, 0xffff0000, v{T+d}')
            I(f'v_mul_f32 v{T+8}, s39, v{T+8}'); I(f'v_mul_f32 v{T+9}, s39, v{T+9}')
            self.cvt(T + d, T + 8)
        for h in range(2):
            I(f'ds_write_b128 v{tWQ}, {V(T+4*h,4)} offset:{L_OUT + h*4096}', pw=[('LW', 'WQ')], xwr=[('L', 'WQ')])
        I('s_barrier', pt=[('LW', 'WQ')], xrd=[('L', 'WQ')], xwr=[('B', 'WQ')])

    def rem_proj(self, pr, ms):
        I = self.I
        ER = lambda s: STR0 + 16 * pr + 4 * s
        def D(m, h):
            k = 2 * m + h
            if pr == 0: return 184 + 4 * k if k < 6 else FD + 4 * (k - 6)
            return 232 + 4 * k if k < 4 else (FD + 8 + 4 * (k - 6) if k >= 6 else 48 + 4 * (k - 4) + 8)
        for m in ms:
            for h in range(2):
                d = D(m, h)
                for s in range(4):
                    c = '0' if s == 0 else V(d, 4)
                    if m == 2: I(f'{MF16} {V(d,4)}, {A(ER(s),4)}, {A(WF(m,h,s),4)}, {c}')
                    else: I(f'{MF16} {V(d,4)}, {A(WF(m,h,s),4)}, {A(ER(s),4)}, {c}')
                self.cvt(d, d); self.cvt(d + 1, d + 2)
                off = pr * 4096 + h * 256 + {1: 0, 0: 512, 2: 1024, 3: 1536}[m]
                I(f'ds_write_b64 v{INV[0] if m == 2 else INV[1]}, {V(d,2)} offset:{off}', xwr=[('L', 'REM', pr, m, h)])
    def er_load(self, pr):
        for s in range(4):
            self.I(f'ds_read_b128 {A(STR0+16*pr+4*s,4)}, v{tER} offset:{L_PSH + pr*1024 + 32*s}', pt=[('L', 'RAW')], xrd=[('RDY', 200)])

    def tproj(self, h, t):
        I = self.I
        for m in (1, 2):
            acc = PA[m - 1] if not self.opt.alloc2 else PA[1]
            for s in range(4):
                c = '0' if s == 0 else V(acc, 16)
                if m == 1: I(f'{MF32} {V(acc,16)}, {A(WF(1,h,s),4)}, {A(EC(t,s),4)}, {c}')
                else: I(f'{MF32} {V(acc,16)}, {A(EC(t,s),4)}, {A(WF(2,h,s),4)}, {c}')
            dst = KF(h, t, 0) if m == 1 else VF(h, t, 0)
            for i in range(8): self.cvt(dst + i, acc + 2 * i)

    def qproj(self, j):
        h, ft = divmod(j % 6, 3)
        X = ACC[2 + (j & 1)] if not self.opt.alloc2 else PA[0]
        for s in range(4):
            self.I(f'{MF32} {V(X,16)}, {A(WF(0,h,s),4)}, {A(EC(ft,s),4)}, {"0" if s == 0 else V(X,16)}')
        for i in range(8): self.cvt(QF[j & 1] + i, X + 2 * i)

    def rem_loads(self, bi, h):
        ro = bi * 2048
        for ks in range(2):
            self.I(f'ds_read_b128 {A(KRA(h,ks),4)}, v{aKR} offset:{ro + h*256 + ks*128}', xrd=[('L', 'REM', 0, 1, h)])
        self.I(f'ds_read_b32 {A(VREM(h))}, v{aVR} offset:{ro + 1024 + h*256}', xrd=[('L', 'REM', 0, 2, h)])

    def frem_s(self, bi, h):
        I = self.I
        ro = bi * 2048
        for ks in range(2):
            qb = self.slot()
            I(f'ds_read_b128 {A(qb,4)}, v{aQ0 if h == 0 else aQ1} offset:{ro + 512 + h*256 + ks*128}', xrd=[('L', 'REM')])
            for t in range(4):
                a = V(KF(h, t, ks), 4) if t < 3 else A(KRA(h, ks), 4)
                c = '0' if (h == 0 and ks == 0) else V(FD + 4 * t, 4)
                I(f'{MF16} {V(FD+4*t,4)}, {a}, {A(qb,4)}, {c}')

    def frem_rest(self, bi):
        I = self.I
        D = lambda t: FD + 4 * t
        for t in range(3):
            for r in range(4): I(f'v_exp_f32 v{D(t)+r}, v{D(t)+r}')
            self.cvt(D(t), D(t)); self.cvt(D(t) + 1, D(t) + 2)
            I(f'ds_write_b64 v{aPW}, {V(D(t),2)} offset:{t*512}', xwr=[('L', 'PSH')])
        for r in range(2): I(f'v_exp_f32 v{D(3)+r}, v{D(3)+r}')
        self.cvt(D(3), D(3))
        I(f'v_cndmask_b32 v{D(3)+2}, 0, v{D(3)}, s[{sVM}:{sVM+1}]', 'keep only the real key-remainder entries; D3+3 is 0')
        I(f'ds_write_b64 v{aPW}, {V(D(3)+2,2)} offset:{3*512}', xwr=[('L', 'PSH')])
        DH = [FD, FD + 4]; L = FD + 8
        I(f'ds_read_b64 {V(RR,2)}, v{aRR} offset:{bi*2048 + 1536}', xrd=[('L', 'REM')])
        if self.strn % 2: self.strn += 1
        r = self.slot(); self.slot()
        I(f'ds_read_b64 {A(r,2)}, v{aPR6} offset:{6*256}', xrd=[('L', 'PSH')])
        I(f'{MF16K16} {V(L,4)}, {A(ONE16,2)}, {A(r,2)}, 0')
        for h in range(2):
            I(f'{MF16K16} {V(DH[h],4)}, {A(VREM(h),2)}, {A(r,2)}, 0')
        for t in range(3):
            r = self.slot(); self.slot()
            for sub in range(2):
                I(f'ds_read_b128 {A(r+4*sub,4)}, v{aPR} offset:{(2*t+sub)*256}', xrd=[('L', 'PSH')])
                for h in range(2):
                    I(f'{MF16} {V(DH[h],4)}, {V(VF(h,t,sub),4)}, {A(r+4*sub,4)}, {V(DH[h],4)}')
            I(f'{SMF} {V(L,4)}, {A(ONE,4)}, {A(r,8)}, v{IDX}')
        I(f'v_add_f32 v{L}, v{L}, v{L+1}')
        I(f'v_rcp_f32 v{L+1}, v{L}')
        I(f'v_max3_u32 v{BAD}, v{BAD}, v{L}, v{L+1}')
        for r in range(4):
            I(f'v_cndmask_b32 v{DH[0]+r}, v{DH[0]+r}, v{DH[1]+r}, s[{sB3}:{sB3+1}]')
            if r & 1: I(f'v_and_b32 v{DH[1]+r}, 0xffff0000, v{RR+(r>>1)}')
            else: I(f'v_lshlrev_b32 v{DH[1]+r}, 16, v{RR+(r>>1)}')
            I(f'v_fma_f32 v{DH[0]+r}, v{DH[0]+r}, v{L+1}, v{DH[1]+r}')
        self.cvt(DH[0], DH[0]); self.cvt(DH[0] + 1, DH[0] + 2)
        for k in range(2): I(f'v_pk_max_i16 v{DH[0]+k}, v{DH[0]+k}, 0')
        I(f's_add_u32 s{sNX}, s{sB}, {bi*BSTRIDE + 12288}')
        I(f'buffer_store_dwordx2 {V(DH[0],2)}, v{vOR}, s[{sO}:{sO+3}], s{sNX} offen {self.opt.stmod}')

    def block(self, bi, j, has_next, dma_next, part=3, sbase=None):
        I = self.I
        h, ft = divmod(j, 3)
        O = ACC[0]; SA = ACC[1]; X = ACC[2 + (j & 1)]
        S0 = S2 = SA; S1 = X
        if self.opt.alloc2: S0, S1, S2, X = ACC[1], ACC[2], ACC[3], PA[0]
        Q = QF[j & 1]; L = LS[j & 1]; inv = INV[j & 1]
        if sbase is None: sbase = sB
        def smm(t, dst):
            I(f'{MF32} {V(dst,16)}, {V(KF(h,t,0),4)}, {V(Q,4)}, 0')
            I(f'{MF32} {V(dst,16)}, {V(KF(h,t,1),4)}, {V(Q+4,4)}, {V(dst,16)}')
        def soft(buf):
            for i in range(8):
                I(f'v_exp_f32 v{buf+2*i}, v{buf+2*i}')
                I(f'v_exp_f32 v{buf+2*i+1}, v{buf+2*i+1}')
                self.cvt(buf + i, buf + 2 * i)
        def pv(t, buf):
            for sub in range(2):
                first = (t == 0 and sub == 0)
                I(f'{MF32} {V(O,16)}, {V(VF(h,t,sub),4)}, {V(buf+4*sub,4)}, {"0" if first else V(O,16)}')
            I(f'{SMF} {V(L,4)}, {A(SEL,4)}, {V(buf,8)}, v{IDX}')
        if part & 1:
            smm(0, S0); smm(1, S1)
            if ft == 0: self.tproj(h, 2)
            for ks in range(2):
                I(f'{MF16} {V(SR,4)}, {A(KRA(h,ks),4)}, {V(Q+4*ks,4)}, {"0" if ks == 0 else V(SR,4)}')
            for r in range(2): I(f'v_exp_f32 v{SR+r}, v{SR+r}')
            self.cvt(SR + 2, SR)
            I(f'{MF16K16} {V(L,4)}, {A(SEL16,2)}, {V(SR+2,2)}, 0')
            if j == 1: self.rem_loads(bi, 1)
            if j == 1: self.frem_s(bi, 0)
            if j == 3: self.frem_s(bi, 1); self.frem_rest(bi)
            soft(S0); pv(0, S0)
            if j < 5 or has_next: self.qproj(j + 1)
            soft(S1)
            smm(2, S2)
            pv(1, S1)
            if ft > 0 and (h == 0 or has_next): self.tproj(1 - h, ft - 1)
            I(f'{MF32K8} {V(O,16)}, {A(VREM(h),2)}, {V(SR+2,2)}, {V(O,16)}')
            for s in range(4):
                I(f'{MF32} {V(X,16)}, {A(WF(3,h,s),4)}, {A(EC(ft,s),4)}, {"0" if s == 0 else V(X,16)}')
            if h == 1 and has_next: self.eload(ft)
            if h == 0 and dma_next is not None: self.dma(dma_next[0], dma_next[1], ft)
            if j == 5 and has_next: self.rem_loads(bi + 1, 0)
        if part & 2:
            soft(S2); pv(2, S2)
            I(f'v_add_f32 v{L}, v{L}, v{L+1}')
            I(f'v_rcp_f32 v{inv}, v{L}')
            I(f'v_max3_u32 v{BAD}, v{BAD}, v{L}, v{inv}')
            for r in range(16): I(f'v_fma_f32 v{X+r}, v{O+r}, v{inv}, v{X+r}')
            for i in range(8):
                self.cvt(X + i, X + 2 * i)
                I(f'v_pk_max_i16 v{X+i}, v{X+i}, 0')
            for a1 in range(2):
                I(f'ds_write_b128 v{aOW}, {V(X+4*a1,4)} offset:{L_OUT + ft*4096 + h*512 + a1*256}', xwr=[('L', f'O{ft}')], xrd=[('B', 'W')])
        if (part & 2 and not part & 8) or part & 4:
            if h == 1:
                I(f's_add_u32 s{sT2}, s{sbase}, {bi*BSTRIDE + ft*4096}')
                for kk in range(4):
                    r = OUTB + 4 * kk
                    I(f'ds_read_b128 {A(r,4)}, v{aLIN} offset:{L_OUT + ft*4096 + kk*1024}', xrd=[('L', f'O{ft}')])
                    I(f'buffer_store_dwordx4 {A(r,4)}, v{vA}, s[{sO}:{sO+3}], s{sT2} offen offset:{kk*1024} {self.opt.stmod}')

    def T_smm(self, j, t):
        h = (j % 6) // 3; Q = QF[j & 1]; dst = ACC[1 + t]
        self.I(f'{MF32} {V(dst,16)}, {V(KF(h,t,0),4)}, {V(Q,4)}, 0')
        self.I(f'{MF32} {V(dst,16)}, {V(KF(h,t,1),4)}, {V(Q+4,4)}, {V(dst,16)}')
    def T_srem(self, j):
        h = (j % 6) // 3; Q = QF[j & 1]; L = LS[j & 1]; sr = SR2[j & 1]
        for ks in range(2):
            self.I(f'{MF16} {V(sr,4)}, {A(KRA(h,ks),4)}, {V(Q+4*ks,4)}, {"0" if ks == 0 else V(sr,4)}')
    def T_sremv(self, j):
        L = LS[j & 1]; sr = SR2[j & 1]
        for r in range(2): self.I(f'v_exp_f32 v{sr+r}, v{sr+r}')
        self.cvt(sr + 2, sr)
        self.I(f'{MF16K16} {V(L,4)}, {A(SEL16,2)}, {V(sr+2,2)}, 0')
    def T_soft(self, t, half):
        buf = ACC[1 + t]
        for i in range(4 * half, 4 * half + 4):
            self.I(f'v_exp_f32 v{buf+2*i}, v{buf+2*i}')
            self.I(f'v_exp_f32 v{buf+2*i+1}, v{buf+2*i+1}')
            self.cvt(buf + i, buf + 2 * i)
    def T_pv(self, j, t, sub):
        h = (j % 6) // 3; O = ACC[0]; buf = ACC[1 + t]
        first = (t == 0 and sub == 0)
        self.I(f'{MF32} {V(O,16)}, {V(VF(h,t,sub),4)}, {V(buf+4*sub,4)}, {"0" if first else V(O,16)}')
        if sub == 1: self.I(f'{SMF} {V(LS[j & 1],4)}, {A(SEL,4)}, {V(buf,8)}, v{IDX}')
    def T_pvr(self, j):
        h = (j % 6) // 3; O = ACC[0]
        self.I(f'{MF32K8} {V(O,16)}, {A(VREM(h),2)}, {V(SR2[j & 1]+2,2)}, {V(O,16)}')
    def T_projm(self, m, h, t, acc):
        for s in range(4):
            c = '0' if s == 0 else V(acc, 16)
            if m == 2: self.I(f'{MF32} {V(acc,16)}, {A(EC(t,s),4)}, {A(WF(2,h,s),4)}, {c}')
            else: self.I(f'{MF32} {V(acc,16)}, {A(WF(m,h,s),4)}, {A(EC(t,s),4)}, {c}')
    def T_projv(self, dst, acc):
        for i in range(8): self.cvt(dst + i, acc + 2 * i)
    def T_ep(self, j):
        I = self.I
        h, ft = divmod(j % 6, 3)
        O = ACC[0]; R = PA[0]; X = ACC[3]; L = LS[j & 1]; inv = INV[j & 1]
        I(f'v_add_f32 v{L}, v{L}, v{L+1}')
        I(f'v_rcp_f32 v{inv}, v{L}')
        I(f'v_max3_u32 v{BAD}, v{BAD}, v{L}, v{inv}')
        if self.opt.pkfma:
            sel = 'op_sel_hi:[1,0,1]' if inv == INV[0] else 'op_sel:[0,1,0] op_sel_hi:[1,1,1]'
            self.group([(f'v_pk_fma_f32 {V(X+r,2)}, {V(O+r,2)}, {V(INV[0],2)}, {V(R+r,2)} {sel}', {}) for r in range(0, 16, 2)])
        else:
            for r in range(16): I(f'v_fma_f32 v{X+r}, v{O+r}, v{inv}, v{R+r}')
        for a1 in range(2):
            for i in range(4 * a1, 4 * a1 + 4):
                self.cvt(X + i, X + 2 * i)
                I(f'v_pk_max_i16 v{X+i}, v{X+i}, 0')
            I(f'ds_write_b128 v{aOW}, {V(X+4*a1,4)} offset:{L_OUT + ft*4096 + h*512 + a1*256}', xwr=[('L', f'O{ft}')], xrd=[('B', 'W')])
    def T_store(self, ft, sbase):
        I = self.I
        I(f's_add_u32 s{sT2}, s{sbase}, {ft*4096}')
        for kk in range(4):
            r = OUTB + 4 * kk
            I(f'ds_read_b128 {A(r,4)}, v{aLIN} offset:{L_OUT + ft*4096 + kk*1024}', xrd=[('L', f'O{ft}')])
            I(f'buffer_store_dwordx4 {A(r,4)}, v{vA}, s[{sO}:{sO+3}], s{sT2} offen offset:{kk*1024} {self.opt.stmod}')
    def T_block(self, j):
        h, ft = divmod(j, 3)
        ph, pt = (h, 2) if ft == 0 else (1 - h, ft - 1)
        jn = j + 1; hn, fn = divmod(jn % 6, 3); jp = j - 1
        self.T_projm(1, ph, pt, PA[1])
        self.T_pv(jp % 6, 2, 1)
        self.T_soft(0, 0)
        self.T_soft(0, 1)
        self.T_smm(j, 1)
        if j == 0: self.T_store(1, sPV)
        if j < 3: self.dma(sDM, 0, j)
        self.T_projv(KF(ph, pt, 0), PA[1])
        self.T_projm(2, ph, pt, PA[1])
        self.T_ep(jp % 6)
        if j == 0: self.T_store(2, sPV)
        if j == 4: self.T_store(0, sB)
        self.T_pv(j, 0, 0); self.T_pv(j, 0, 1)
        self.T_projm(0, hn, fn, PA[0])
        if j == 1: self.rem_loads(0, 1); self.frem_s(0, 0)
        if j == 3: self.frem_s(0, 1)
        self.T_soft(1, 0)
        self.T_smm(j, 2)
        self.T_soft(1, 1)
        self.T_pv(j, 1, 0)
        self.T_pvr(j)
        self.T_projv(QF[jn & 1], PA[0])
        if j == 5: self.rem_loads(1, 0)
        self.T_srem(jn)
        self.T_pv(j, 1, 1)
        self.T_projm(3, h, ft, PA[0])
        if h == 1: self.eload(ft)
        self.T_projv(VF(ph, pt, 0), PA[1])
        self.T_soft(2, 0)
        self.T_sremv(jn)
        self.T_smm(jn, 0)
        if j == 3: self.frem_rest(0)
        self.T_soft(2, 1)
        self.T_pv(j, 2, 0)

    def slow_path(self):
        I = self.I; p = self.p
        p.label('L_slow')
        I('s_waitcnt vmcnt(0) lgkmcnt(0)')
        I('v_mbcnt_lo_u32_b32 v1, -1, 0'); I('v_mbcnt_hi_u32_b32 v1, -1, v1')
        I('v_and_b32 v6, 31, v1'); I('v_lshrrev_b32 v7, 5, v1')
        I('v_lshlrev_b32 v2, 7, v6'); I('v_lshl_add_u32 v2, v7, 4, v2')
        I(f'v_mov_b32 v3, 0x{OOB_G:x}'); I('v_cmp_gt_u32 vcc, 4, v6'); I('v_cndmask_b32 v3, v3, v2, vcc')
        I('v_mov_b32 v5, 0xff800000')
        I('s_mov_b32 s56, 0'); I('s_mov_b32 s57, -1')
        I('s_lshl_b32 s58, s2, 4'); I('s_add_u32 s58, s58, s20'); I('s_mul_i32 s58, s58, 12800'); I('s_mov_b32 s59, 0')
        p.label('L_sbatch')
        E = lambda t, s: 16 + 16 * t + 4 * s
        KFs = lambda t, ks: 80 + 8 * t + 4 * ks
        VFs = lambda u: 112 + 4 * u
        QA = 172
        SS = lambda t: 188 + 16 * t
        for t in range(4): I(f's_add_u32 s{60+t}, s58, {4096*t}')
        for t in range(4):
            for s in range(4):
                I(f'buffer_load_dwordx4 {V(E(t,s),4)}, v{3 if t==3 else 2}, s[{sE}:{sE+3}], s{60+t} offen offset:{32*s}')
        for h in range(2):
            for t in range(4):
                acc = SS(t)
                for s in range(4): I(f'{MF32} {V(acc,16)}, {A(WF(1,h,s),4)}, {V(E(t,s),4)}, {"0" if s==0 else V(acc,16)}')
            for t in range(4):
                for i in range(8): self.cvt(KFs(t, 0) + i, SS(t) + 2 * i)
            for t in range(4):
                acc = SS(t)
                for s in range(4): I(f'{MF32} {V(acc,16)}, {V(E(t,s),4)}, {A(WF(2,h,s),4)}, {"0" if s==0 else V(acc,16)}')
            for t in range(4):
                for i in range(8 if t < 3 else 4): self.cvt(VFs(2 * t) + i, SS(t) + 2 * i)
            for ft in range(4):
                for s in range(4): I(f'{MF32} {V(QA,16)}, {A(WF(0,h,s),4)}, {V(E(ft,s),4)}, {"0" if s==0 else V(QA,16)}')
                for i in range(8): self.cvt(QA + i, QA + 2 * i)
                for t in range(4):
                    I(f'{MF32} {V(SS(t),16)}, {V(KFs(t,0),4)}, {V(QA,4)}, 0')
                    I(f'{MF32} {V(SS(t),16)}, {V(KFs(t,1),4)}, {V(QA+4,4)}, {V(SS(t),16)}')
                for r in range(4): I(f'v_cndmask_b32 v{SS(3)+r}, v{SS(3)+r}, v5, s[56:57]')
                vals = [SS(0) + i for i in range(52)]
                I(f'v_max3_f32 v8, v{vals[0]}, v{vals[1]}, v{vals[2]}')
                k = 3
                while k < 52:
                    if k + 1 < 52: I(f'v_max3_f32 v8, v8, v{vals[k]}, v{vals[k+1]}'); k += 2
                    else: I(f'v_max_f32 v8, v8, v{vals[k]}'); k += 1
                I('v_mov_b32 v9, v8'); I('v_permlane32_swap_b32 v9, v8'); I('v_max_f32 v8, v8, v9', 'true row max')
                for k in range(0, 52, 2):
                    I(f'v_pk_add_f32 {V(vals[k],2)}, {V(vals[k],2)}, v[8:9] op_sel_hi:[1,0] neg_lo:[0,1] neg_hi:[0,1]')
                for k in range(52): I(f'v_exp_f32 v{vals[k]}, v{vals[k]}')
                I(f'v_pk_add_f32 v[10:11], {V(vals[0],2)}, {V(vals[2],2)}')
                for k in range(4, 52, 2): I(f'v_pk_add_f32 v[10:11], v[10:11], {V(vals[k],2)}')
                I('v_add_f32 v10, v10, v11'); I('v_mov_b32 v11, v10'); I('v_permlane32_swap_b32 v11, v10')
                I('v_add_f32 v10, v10, v11'); I('v_rcp_f32 v10, v10')
                PF = {0: SS(0), 1: SS(0) + 4, 2: SS(0) + 8, 3: SS(0) + 12, 4: SS(2), 5: SS(2) + 4, 6: SS(2) + 8}
                for t in range(3):
                    for i in range(8): self.cvt(PF[2 * t] + i, SS(t) + 2 * i)
                self.cvt(PF[6], SS(3)); self.cvt(PF[6] + 1, SS(3) + 2)
                I(f'v_mov_b32 v{PF[6]+2}, 0'); I(f'v_mov_b32 v{PF[6]+3}, 0')
                RA = SS(1)
                for s in range(4): I(f'{MF32} {V(RA,16)}, {A(WF(3,h,s),4)}, {V(E(ft,s),4)}, {"0" if s==0 else V(RA,16)}')
                OA = QA
                for u in range(7): I(f'{MF32} {V(OA,16)}, {V(VFs(u),4)}, {V(PF[u],4)}, {"0" if u==0 else V(OA,16)}')
                for k in range(0, 16, 2):
                    I(f'v_pk_fma_f32 {V(OA+k,2)}, {V(OA+k,2)}, v[10:11], {V(RA+k,2)} op_sel_hi:[1,0,1]')
                for i in range(8): self.cvt(OA + i, OA + 2 * i)
                for i in range(8): I(f'v_pk_max_i16 v{OA+i}, v{OA+i}, 0')
                for k in range(2):
                    I(f'buffer_store_dwordx4 {V(OA+4*k,4)}, v{3 if ft==3 else 2}, s[{sO}:{sO+3}], s{60+ft} offen offset:{64*h+32*k}')
        I(f's_add_u32 s58, s58, {BSTRIDE}'); I('s_add_u32 s59, s59, 1'); I('s_cmp_lt_u32 s59, 4')
        I('s_nop 15')
        I('s_cbranch_scc1 L_sbatch')
        I('s_endpgm')

    def build(self):
        p = self.p; I = self.I; o = self.opt
        p.raw(HEADER.rstrip())
        p.raw(f'; @launch grid=(256,1,1) block=(256,1,1) lds={4*WSTRIDE}')
        p.raw('.amdgcn_target "amdgcn-amd-amdhsa--gfx950"')
        p.raw('.text')
        p.raw(f'.globl {NAME}_kernel')
        p.raw('.p2align 8')
        p.raw(f'.type {NAME}_kernel,@function')
        p.raw(f'{NAME}_kernel:')
        self.prologue()
        p.raw('L_main:   ;')
        sched.ORDER = True
        self.begin()
        self.wload(1, 0); self.eload(0, rdy=0); self.wload(2, 0)
        self.wq_scale()
        self.T_projm(1, 0, 0, PA[1]); self.T_projm(2, 0, 0, PA[0])
        self.er_load(0); self.wload(1, 1); self.wload(2, 1)
        self.T_projv(KF(0, 0, 0), PA[1]); self.T_projv(VF(0, 0, 0), PA[0])
        self.rem_proj(0, (1, 2))
        self.eload(1, rdy=300)
        self.wload(0, 0, [('B', 'WQ')]); self.wload(0, 1, [('B', 'WQ')])
        self.T_projm(1, 0, 1, PA[1]); self.T_projm(2, 0, 1, PA[0])
        self.wload(3, 0); self.wload(3, 1); self.er_load(1)
        self.T_projv(KF(0, 1, 0), PA[1]); self.T_projv(VF(0, 1, 0), PA[0])
        self.T_projm(0, 0, 0, PA[0])
        self.rem_loads(0, 0)
        self.rem_proj(0, (0, 3))
        self.T_projv(QF[0], PA[0])
        self.eload(2, rdy=600)
        I('s_barrier', pt=[('LW', 'W')], xwr=[('B', 'W')], xrd=[('WR', m, h, s) for m in range(4) for h in range(2) for s in range(4)])
        self.rem_proj(1, (1, 2))
        self.T_smm(0, 0); self.T_srem(0)
        self.rem_proj(1, (0, 3))
        self.T_sremv(0)
        self.stamp(QF[0] + 7)
        if True:
            for r in range(16):
                I(f'v_mov_b32 v{PA[0]+r}, 0'); I(f'v_mov_b32 v{ACC[0]+r}, 0')
            for r in range(8): I(f'v_mov_b32 v{ACC[3]+r}, 0')
            I(f's_mov_b32 s{sPV}, 0x{OOB_G:x}', 'previous batch base: out of range on the first pass')
            I(f's_add_u32 s{sDM}, s{sB}, {BSTRIDE}', 'batch to prefetch')
            I(f's_mov_b32 s{sIT}, 0')
            self.end()
            I('s_waitcnt lgkmcnt(0)')
            p.raw('.p2align 6')
            p.raw('L_loop:   ;')
            p.items.append(('PH', []))
            self.stamp()
            sched.ORDER = True
            self.begin()
            for j in range(6):
                self.T_block(j)
                self.stamp(INV[(j + 1) & 1])
            for r in (aKR, aQ0, aQ1, aVR, aRR): I(f'v_add_u32 v{r}, 2048, v{r}')
            I(f's_mov_b32 s{sPV}, s{sB}')
            I(f's_add_u32 s{sB}, s{sB}, {BSTRIDE}')
            I(f's_add_u32 s{sDM}, s{sDM}, {BSTRIDE}')
            I(f's_add_u32 s{sIT}, s{sIT}, 1')
            I(f's_cmp_eq_u32 s{sIT}, 3')
            I(f's_cselect_b32 s{sDM}, 0x{OOB_G:x}, s{sDM}', 'no batch left to prefetch')
            I(f's_cmp_lt_u32 s{sIT}, {o.x_iters}')
            self.end()
            self.stamp()
            I('s_waitcnt lgkmcnt(0)')
            p.items.append(('BACKEDGE', 'L_loop:'))
            I('s_cbranch_scc1 L_loop', 'nowait')
            self.begin()
            self.T_store(1, sPV)
            self.T_pv(5, 2, 1)
            self.T_ep(5)
            self.T_store(2, sPV)
            sched.VM_GAP = 0
            self.end()
        if o.stamps:
            self.stamp(final=True)
            I('s_memrealtime s[58:59]')
            I('s_waitcnt lgkmcnt(0)')
            I('s_mov_b32 s16, s18'); I('s_mov_b32 s17, s19'); I('s_mov_b32 s18, 0x1000000'); I('s_mov_b32 s19, 0x00020000')
            I('s_lshl_b32 s21, s2, 2'); I('s_add_u32 s21, s21, s20'); I('s_lshl_b32 s21, s21, 7')
            I('v_mov_b32 v1, 0')
            for k in range(22):
                I(f'v_mov_b32 v0, s{60+2*k if k < 21 else 58}')
                I(f'buffer_store_dword v0, v1, s[16:19], s21 offen offset:{4*k}')
        I(f'v_cmp_lt_u32 vcc, s{sLIM}, v{BAD}')
        I('s_cmp_lg_u64 vcc, 0')
        I('s_cbranch_scc1 L_slow')
        p.raw('L_end:')
        I('s_endpgm')
        self.slow_path()
        p.raw('.section .rodata,"a"')
        p.raw('.p2align 6')
        p.raw(f'.amdhsa_kernel {NAME}_kernel')
        p.raw('  .amdhsa_next_free_vgpr 512')
        p.raw(f'  .amdhsa_next_free_sgpr {102 if o.stamps else 72}')
        p.raw('  .amdhsa_accum_offset 256')
        p.raw('  .amdhsa_group_segment_fixed_size 0')
        p.raw('  .amdhsa_kernarg_size 64')
        p.raw('  .amdhsa_user_sgpr_count 2')
        p.raw('  .amdhsa_user_sgpr_kernarg_segment_ptr 1')
        p.raw('  .amdhsa_system_sgpr_workgroup_id_x 1')
        p.raw('.end_amdhsa_kernel')
        import asmlib
        asmlib.HX = o.hx
        p.finalize()
        if o.align: print('align8:', p.align8(o.align))
        return p.text()

if __name__ == '__main__':
    ap = argparse.ArgumentParser()
    ap.add_argument('-o', default=f'cdna_kernels/{NAME}.s')
    ap.add_argument('--nosched', action='store_true')
    ap.add_argument('--window', type=int, default=700)
    ap.add_argument('--ldmod', default='nt')
    ap.add_argument('--stmod', default='nt')
    ap.add_argument('--codepf', type=int, default=1)
    ap.add_argument('--stamps', type=int, default=0)
    ap.add_argument('--pscale', type=float, default=1.0)
    ap.add_argument('--ldslat', type=int, default=128)
    ap.add_argument('--safewar', type=int, default=0)
    ap.add_argument('--hx', type=int, default=0)
    ap.add_argument('--vmgap', type=int, default=150)
    ap.add_argument('--loop', type=int, default=1)
    ap.add_argument('--x_iters', type=int, default=4)
    ap.add_argument('--noise', type=float, default=0)
    ap.add_argument('--seed', type=int, default=0)
    ap.add_argument('--slack', type=int, default=0)
    ap.add_argument('--shadow', type=int, default=1)
    ap.add_argument('--freewait', type=int, default=1)
    ap.add_argument('--alloc2', type=int, default=1)
    ap.add_argument('--tmpl', type=int, default=1)
    ap.add_argument('--fit', type=int, default=1)
    ap.add_argument('--vmc', type=int, default=16)
    ap.add_argument('--dswc', type=int, default=16)
    ap.add_argument('--align', type=int, default=0)
    ap.add_argument('--hoist', type=int, default=400)
    ap.add_argument('--ldsgap', type=int, default=16)
    ap.add_argument('--pkfma', type=int, default=1)
    ap.add_argument('--early', type=int, default=2)
    o = ap.parse_args()
    sched.HOIST = o.hoist; sched.LDS_GAP = o.ldsgap
    sched.FIT = o.fit; sched.VMC = o.vmc; sched.DSWC = o.dswc
    sched.NOISE = o.noise; sched.SEED = o.seed; sched.SLACK = o.slack; sched.SHADOW = o.shadow; sched.FREEWAIT = o.freewait
    sched.VM_GAP = o.vmgap
    import asmlib
    asmlib.SAFE_WAR = o.safewar
    HXV = o.hx
    sched.PIPE_SCALE = o.pscale; sched.LDS_LAT = o.ldslat
    txt = Gen(o).build()
    open(o.o, 'w').write(txt)
    import collections
    c = collections.Counter(l.split()[0] for l in txt.split('L_slow:')[0].split('\n') if l.startswith('    ') and not l.strip().startswith(';'))
    print('fast path instr counts:', sum(c.values()), {k: v for k, v in c.most_common(14)})
```

```python
import sys, struct, argparse
sys.path.insert(0, 'gen')
from asmlib import *
import sched
from sched import schedule

NAME = 'standalone__attention_interact_autoint__recsys'
HEADER = open('cdna_kernels/%s.s.ref' % NAME).read().split('; Override launch')[0]
def f32bits(x): return struct.unpack('<I', struct.pack('<f', x))[0]
CSCALE = f32bits((32.0 ** -0.5) * 1.4426950408889634)
MF32 = 'v_mfma_f32_32x32x16_bf16'
MF32K8 = 'v_mfma_f32_32x32x8_bf16'
MF16 = 'v_mfma_f32_16x16x32_bf16'
MF16K16 = 'v_mfma_f32_16x16x16_bf16'
SMF = 'v_smfmac_f32_16x16x64_bf16'
OOB_G = 0x40000000
OOB_L = 0x40000
def A(a, n=1): return f'a{a}' if n == 1 else f'a[{a}:{a+n-1}]'

WF = lambda m, h, s: ((m * 2 + h) * 4 + s) * 4
EC = lambda t, s: 128 + 16 * t + 4 * s
KRA = lambda h, ks: 176 + 8 * h + 4 * ks
STR0 = 192; NSTR = 8; OUTB = 224
SEL = 240; ONE = 244; SEL16 = 248; ONE16 = 254
VREM = lambda h: 250 + 2 * h
ACC = [0, 16, 32, 48]
PA = [64, 80]
QF = [96, 104]
LS = [112, 116]
SR = 120
SR2 = [120, 120]
INV = [124, 125]; BAD = 126
aE = 127; vA = 128; vB = 129; aOW = 130; aLIN = 131; aKR = 132; aQ1 = 133; aVR = 134; aRR = 135
aPW = 136; aPR = 137; vOR = 138; aQ0 = 139
FD = 140
RR = 156
IDX = 158; aPR6 = 159
tW0 = 104; tW1 = 105; tER = 106; tWQ = 107
KF = lambda h, t, ks: 160 + 24 * h + 8 * t + 4 * ks
VF = lambda h, t, sub: 208 + 24 * h + 8 * t + 4 * sub
sE = 24; sO = 28
sB = 40
sWB = 42
sT = 43; sT2 = 44; sIT = 45; sNX = 46; sPV = 47; sDM = 48; sD2 = 49
sB3 = 50; sVM = 52; sLIM = 54
WSTRIDE = 34816; L_OUT = 12288; L_REM = 24576; L_PSH = 32768
BSTRIDE = 4 * 12800

class Gen:
    def __init__(self, opt):
        self.opt = opt; self.p = Prog(); self.reg = None
        self.strn = 0; self.nstamp = 0; self.nocount = False
    def mk(self, text, comment=None, xrd=(), xwr=(), pw=(), pt=()):
        ins = Ins(text, comment)
        ins.xrd = set(xrd); ins.xwr = set(xwr); ins.pw = set(pw); ins.pt = set(pt)
        if ins.cls == 'vmem':
            if self.nocount: ins.comment = 'nocount'
        return ins
    def I(self, text, comment=None, **kw):
        ins = self.mk(text, comment, **kw)
        (self.p.items if self.reg is None else self.reg).append(ins)
    def group(self, lst):
        g = [self.mk(t, **kw) for t, kw in lst]
        if self.reg is None: self.p.items.extend(g)
        else: self.reg.append(g)
    def begin(self): self.reg = []
    def end(self):
        r = self.reg; self.reg = None
        if self.opt.nosched:
            flat = []
            for it in r: flat.extend(it if isinstance(it, list) else [it])
        else:
            flat, est = schedule(r, window=self.opt.window, verbose=True)
        self.p.items.extend(flat)
    def stamp(self, anchor=None, final=False):
        o = self.opt
        if not o.stamps: return
        if o.stamps == 4 and not (self.nstamp == 0 or final): return
        if final: self.nstamp = 19
        if self.nstamp >= 19 and not final: return
        k = self.nstamp; self.nstamp += 1
        self.I(f's_memtime s[{60+2*k}:{61+2*k}]', xrd=([('v', anchor)] if anchor is not None else []), xwr=[('X', 'stamp')])
    def slot(self):
        r = STR0 + 4 * (self.strn % NSTR); self.strn += 1
        return r
    def cvt(self, dst, a): self.I(f'v_cvt_pk_bf16_f32 v{dst}, v{a}, v{a+1}')

    def eload(self, t, rdy=0):
        for s in range(4):
            self.I(f'ds_read_b128 {A(EC(t,s),4)}, v{aE} offset:{t*4096+s*256}', xrd=[('L', f'E{t}'), ('RDY', rdy)], pt=[('L', f'E{t}')], pw=[('LR', f'E{t}')])
    def dma(self, base, boff, t):
        ld = self.opt.ldmod
        self.I(f's_add_u32 m0, s{sWB}, {t*4096}')
        self.I(f's_add_u32 s{sT}, s{base}, {boff + t*4096}')
        for g in range(4):
            self.I(f'buffer_load_dwordx4 v{vA if g < 2 else vB}, s[{sE}:{sE+3}], s{sT} offen offset:{g*1024} {ld} lds',
                   xwr=[('L', f'E{t}')], pw=[('L', f'E{t}')], pt=[('LR', f'E{t}')])

    def prologue(self):
        I = self.I; p = self.p; o = self.opt
        I('s_cmp_ge_u32 s2, 256')
        I('s_cbranch_scc1 L_end')
        self.stamp()
        if o.stamps: I('s_memrealtime s[100:101]'); I('s_load_dwordx2 s[18:19], s[0:1], 56')
        I('s_load_dwordx4 s[4:7], s[0:1], 0')
        I('s_load_dwordx4 s[8:11], s[0:1], 16')
        I('s_load_dwordx4 s[12:15], s[0:1], 32')
        I('v_lshrrev_b32 v2, 6, v0')
        I('v_and_b32 v1, 63, v0', 'lane')
        I('v_readfirstlane_b32 s20, v2', 'wave id = weight matrix handled in the prologue')
        if o.codepf:
            I('s_getpc_b64 s[16:17]')
            I('s_lshr_b32 s21, s2, 3'); I('s_and_b32 s21, s21, 3'); I(f's_mul_i32 s21, s21, {o.codepf*4096}')
            I('s_add_u32 s16, s16, s21'); I('s_addc_u32 s17, s17, 0')
            I('v_lshlrev_b32 v100, 4, v0', 'tid*16 : 4 KB per pass')
            I('v_mov_b32 v101, s17')
            I('v_add_co_u32 v100, vcc, s16, v100')
            I('v_addc_co_u32 v101, vcc, 0, v101, vcc')
            for k in range(o.codepf):
                if k:
                    I('v_add_co_u32 v100, vcc, 0x1000, v100')
                    I('v_addc_co_u32 v101, vcc, 0, v101, vcc')
                I(f'global_load_dwordx4 {A(OUTB+4*k,4)}, v[100:101], off')
        I('v_and_b32 v6, 7, v1'); I('v_lshrrev_b32 v7, 3, v1')
        I('v_and_b32 v8, 3, v1', 'fq'); I('v_bfe_u32 v9, v1, 2, 1', 'bit2'); I('v_bfe_u32 v10, v1, 3, 1', 'bit3')
        I('v_bfe_u32 v11, v1, 4, 1', 'q&1'); I('v_lshrrev_b32 v12, 5, v1', 'q>>1')
        I(f's_lshl_b32 s{sB}, s2, 4'); I(f's_add_u32 s{sB}, s{sB}, s20'); I(f's_mul_i32 s{sB}, s{sB}, 12800')
        I(f's_mul_i32 s{sWB}, s20, {WSTRIDE}')
        I('v_bfe_u32 v15, v1, 2, 3', 'dg')
        I('s_cmp_eq_u32 s20, 3')
        I('s_cselect_b32 s36, 128, 64', 'row stride'); I('s_cselect_b32 s37, 64, 4096', 'head offset')
        I('s_lshl_b32 s38, s36, 3')
        I('v_mul_lo_u32 v4, v15, s38')
        I('v_lshl_add_u32 v4, v8, 4, v4')
        I('v_mul_lo_u32 v5, v12, s37')
        I('v_add_u32 v4, v4, v5')
        I(f'v_lshlrev_b32 v{vA}, 7, v6')
        I(f'v_xor_b32 v3, 1, v7')
        I(f'v_lshl_add_u32 v{vB}, v3, 4, v{vA}')
        I(f'v_lshl_add_u32 v{vA}, v7, 4, v{vA}')
        I('v_and_b32 v27, 31, v1')
        I(f'v_mul_u32_u24 v13, {BSTRIDE}, v12')
        I('v_lshl_add_u32 v13, v27, 4, v13', 'remainder rows: half wave per batch, 512 B each')
        I('v_bfe_u32 v14, v1, 3, 2', 'g')
        I('v_xor_b32 v3, v12, v11')
        I(f'v_lshlrev_b32 v{aE}, 10, v14')
        I(f'v_lshl_add_u32 v{aOW}, v12, 7, v{aE}')
        I(f'v_lshl_add_u32 v{aE}, v3, 7, v{aE}')
        I(f'v_lshl_add_u32 v{aE}, v6, 4, v{aE}')
        I(f'v_add_u32 v{aE}, s{sWB}, v{aE}')
        I(f'v_lshl_add_u32 v{aOW}, v6, 4, v{aOW}')
        I(f'v_add_u32 v{aOW}, s{sWB}, v{aOW}')
        I(f'v_lshlrev_b32 v{tW0}, 4, v1', 'lane*16')
        I(f'v_add_u32 v{tW1}, {2*WSTRIDE}, v{tW0}')
        I(f'v_add_u32 v{aLIN}, s{sWB}, v{tW0}')
        I(f's_add_u32 s45, s{sWB}, {L_REM}')
        I(f's_mov_b32 s{sB3}, 0xff00ff00'); I(f's_mov_b32 s{sB3+1}, 0xff00ff00')
        I(f's_mov_b32 s{sVM}, 0x00000f0f'); I(f's_mov_b32 s{sVM+1}, 0x00000f0f')
        I(f's_mov_b32 s{sLIM}, 0x5f800000', '2^64')
        I(f'v_mov_b32 v16, 0x{OOB_L:x}')
        I('v_lshlrev_b32 v17, 5, v8', 'fq*32')
        I('v_lshl_add_u32 v18, v12, 4, v17', '+(q>>1)*16')
        I('v_add_u32 v18, s45, v18')
        I('v_cmp_eq_u32 vcc, v9, v11')
        I('v_cndmask_b32 v18, v16, v18, vcc', 'valid iff (q&1)==bit2')
        I(f'v_cndmask_b32 v{aQ0}, v18, v16, s[{sB3}:{sB3+1}]')
        I(f'v_cndmask_b32 v{aQ1}, v16, v18, s[{sB3}:{sB3+1}]')
        I(f'v_lshl_add_u32 v{aPR}, v10, 7, v18')
        I(f'v_add_u32 v{aPR}, {L_PSH - L_REM}, v{aPR}')
        I('v_lshlrev_b32 v19, 3, v12')
        I(f'v_sub_u32 v{aPR6}, v{aPR}, v19', 'key-remainder step: (q>>1)*8 instead of *16')
        I('v_lshlrev_b32 v19, 9, v10'); I('v_lshl_add_u32 v19, v8, 7, v19'); I('v_lshl_add_u32 v19, v12, 4, v19')
        I(f'v_add_u32 v19, s{sWB}, v19')
        I(f'v_cndmask_b32 v{tER}, v16, v19, vcc')
        I('v_and_b32 v19, 1, v1', 'r&1'); I('v_lshl_add_u32 v19, v10, 1, v19', 'key = 2*bit3 + r')
        I('v_lshlrev_b32 v19, 5, v19'); I('v_lshl_add_u32 v19, v12, 4, v19'); I('v_add_u32 v19, s45, v19')
        I('v_cndmask_b32 v19, v16, v19, vcc')
        I('v_bfe_u32 v20, v1, 1, 1', 'bit1')
        I('v_cmp_eq_u32 s[22:23], 0, v20')
        I(f'v_cndmask_b32 v{aKR}, v16, v19, s[22:23]')
        I('s_waitcnt lgkmcnt(0)')
        self.stamp()
        I('s_mov_b32 s32, s6'); I('s_mov_b32 s33, s7')
        I('s_cmp_eq_u32 s20, 1'); I('s_cselect_b32 s32, s8, s32'); I('s_cselect_b32 s33, s9, s33')
        I('s_cmp_eq_u32 s20, 2'); I('s_cselect_b32 s32, s10, s32'); I('s_cselect_b32 s33, s11, s33')
        I('s_cmp_eq_u32 s20, 3'); I('s_cselect_b32 s32, s12, s32'); I('s_cselect_b32 s33, s13, s33')
        I('s_mov_b32 s34, 8192'); I('s_mov_b32 s35, 0x00020000')
        I('s_mov_b32 s37, 0')
        for j in range(8):
            I(f'buffer_load_dwordx4 v[{160+4*j}:{163+4*j}], v4, s[32:35], s37 offen')
            if j < 7: I('s_add_u32 s37, s37, s36')
        for (d, src, n) in ((sE, 4, 52428800), (sO, 14, 52428800)):
            I(f's_mov_b32 s{d}, s{src}'); I(f's_mov_b32 s{d+1}, s{src+1}'); I(f's_mov_b32 s{d+2}, {n}'); I(f's_mov_b32 s{d+3}, 0x00020000')
        rest = []
        J = lambda *a, **k: rest.append((a, k))
        J('v_mov_b32 v19, 0x3f803f80')
        J('v_cndmask_b32 v20, 0, v19, vcc', 'ones iff (q&1)==bit2')
        J('v_cmp_eq_u32 s[22:23], 0, v8', 'row r==0')
        J('v_cndmask_b32 v20, 0, v20, s[22:23]')
        J('v_cndmask_b32 v21, 0, v19, s[22:23]')
        for k in range(2):
            J(f'v_accvgpr_write_b32 a{SEL16+k}, v20'); J(f'v_accvgpr_write_b32 a{ONE16+k}, v21')
        J('v_cmp_eq_u32 vcc, 0, v9')
        J('v_cndmask_b32 v20, 0, v19, vcc', 'rows with bit2==0 sum the even lane groups')
        J('v_xor_b32 v21, v19, v20')
        for k in range(4):
            J(f'v_accvgpr_write_b32 a{SEL+k}, v{20 if k < 2 else 21}'); J(f'v_accvgpr_write_b32 a{ONE+k}, v19')
        J('v_mov_b32 v20, 0x44444444'); J('v_mov_b32 v21, 0xeeeeeeee')
        J(f'v_cndmask_b32 v{IDX}, v21, v20, s[22:23]', 'sparse index: row 0 -> positions 0,1 ; others -> 2,3')
        J('v_lshlrev_b32 v21, 3, v27', 'i*8')
        J('v_add_u32 v21, s45, v21')
        J(f'v_lshl_add_u32 v{aVR}, v12, 2, v21', 'V rem read: 4 bytes at i*8 + hf*4')
        J(f'v_lshl_add_u32 v{INV[0]}, v12, 11, v21', 'V rem write addr: + bb*2048 (prologue only)')
        J('v_mov_b32 v19, 0')
        for h in range(2): J(f'v_accvgpr_write_b32 a{VREM(h)+1}, v19')
        J('v_lshlrev_b32 v23, 4, v11')
        J('v_lshl_add_u32 v23, v12, 3, v23', '(q&1)*16+(q>>1)*8')
        J('v_add_u32 v24, v23, v17', '+fq*32')
        J('v_lshl_add_u32 v25, v9, 7, v24', '+bit2*128 : chunk index inside a 256 B block')
        J('v_add_u32 v25, s45, v25')
        J(f'v_lshl_add_u32 v{aRR}, v10, 8, v25', 'res rem read: +hd*256')
        J(f'v_lshl_add_u32 v{INV[1]}, v10, 11, v25', 'K/Q/res rem write addr: +bb*2048 (prologue only)')
        J(f'v_lshl_add_u32 v{aPW}, v9, 8, v24')
        J(f'v_lshl_add_u32 v{aPW}, v10, 7, v{aPW}')
        J(f'v_add_u32 v{aPW}, s45, v{aPW}')
        J(f'v_add_u32 v{aPW}, {L_PSH - L_REM}, v{aPW}')
        J(f'v_lshl_add_u32 v{vOR}, v8, 7, v23')
        J(f'v_lshl_add_u32 v{vOR}, v10, 6, v{vOR}')
        J(f'v_lshl_add_u32 v{vOR}, v9, 5, v{vOR}')
        J(f'v_mov_b32 v{BAD}, 0')
        J('v_lshlrev_b32 v5, 12, v12')
        J('v_lshl_add_u32 v5, v15, 9, v5')
        J('v_bfe_u32 v14, v8, 1, 1'); J('v_lshl_add_u32 v5, v14, 8, v5')
        J('v_and_b32 v14, 1, v8'); J('v_lshl_add_u32 v5, v14, 6, v5')
        J(f'v_add_u32 v5, s{sWB}, v5')
        J('s_lshl_b32 s21, s20, 10')
        J(f'v_add_u32 v{tWQ}, s21, v{tW0}', 'this wave scales k-step (wave id) of Wq')
        J('s_mov_b32 s21, 0x05040100'); J('s_mov_b32 s22, 0x07060302')
        J(f's_mov_b32 s39, 0x{CSCALE:08x}', 'scale*log2e folded into Wq')
        for r in range(4): J(f'v_mov_b32 v{LS[1]+r}, 1.0'); J(f'v_mov_b32 v{VF(1,2,1)+r}, 0')
        loads = []
        K = lambda *a, **k: loads.append((a, k))
        ld = o.ldmod
        def kdma(t):
            K(f's_add_u32 m0, s{sWB}, {t*4096}'); K(f's_add_u32 s{sT}, s{sB}, {t*4096}')
            for g in range(4):
                K(f'buffer_load_dwordx4 v{vA if g < 2 else vB}, s[{sE}:{sE+3}], s{sT} offen offset:{g*1024} {ld} lds', pw=[('L', f'E{t}')])
        kdma(0)
        for pr in range(2):
            K(f's_add_u32 m0, s{sWB}, {L_PSH + pr*1024}'); K(f's_add_u32 s{sT}, s{sB}, {2*pr*BSTRIDE + 12288}')
            K(f'buffer_load_dwordx4 v13, s[{sE}:{sE+3}], s{sT} offen {ld} lds', pw=[('L', 'RAW')])
        if o.early >= 2: kdma(1)
        if o.early >= 3: kdma(2)
        nv = sum(1 for a, k in loads if a[0].startswith('buffer'))
        per = (len(rest) + nv - 1) // nv
        for a, k in loads:
            I(*a, **k)
            if a[0].startswith('buffer'):
                for _ in range(per):
                    if rest:
                        a2, k2 = rest.pop(0); I(*a2, **k2)
        for a2, k2 in rest: I(*a2, **k2)
        self.stamp()
        if o.delay == 3: I('s_sleep 64')
        for jp in range(4):
            for b in range(8):
                s0 = 160 + 4 * (2 * jp) + (b >> 1); s1 = 160 + 4 * (2 * jp + 1) + (b >> 1)
                I(f'v_perm_b32 v{64+4*b+jp}, v{s1}, v{s0}, s{22 if b & 1 else 21}')
        for b in range(8):
            I(f'ds_write_b128 v5, v[{64+4*b}:{67+4*b}] offset:{L_OUT + (b>>2)*128 + (b&3)*16}')
        for t in range(o.early, 3): self.dma(sB, 0, t)
        I('s_waitcnt lgkmcnt(0)')
        I('s_barrier')
        self.stamp()

    def wload(self, m, h, extra=()):
        for s in range(4):
            self.I(f'ds_read_b128 {A(WF(m,h,s),4)}, v{tW0 if m < 2 else tW1} offset:{(m&1)*WSTRIDE + L_OUT + h*4096 + s*1024}',
                   pw=[('LW', 'W')], xrd=list(extra), xwr=[('WR', m, h, s)])

    def wq_scale(self):
        I = self.I
        T = 32
        for h in range(2):
            I(f'ds_read_b128 {V(T+4*h,4)}, v{tWQ} offset:{L_OUT + h*4096}')
        for d in range(8):
            I(f'v_lshlrev_b32 v{T+8}, 16, v{T+d}'); I(f'v_and_b32 v{T+9}, 0xffff0000, v{T+d}')
            I(f'v_mul_f32 v{T+8}, s39, v{T+8}'); I(f'v_mul_f32 v{T+9}, s39, v{T+9}')
            self.cvt(T + d, T + 8)
        for h in range(2):
            I(f'ds_write_b128 v{tWQ}, {V(T+4*h,4)} offset:{L_OUT + h*4096}', pw=[('LW', 'WQ')], xwr=[('L', 'WQ')])
        I('s_barrier', pt=[('LW', 'WQ')], xrd=[('L', 'WQ')], xwr=[('B', 'WQ')])

    def rem_proj(self, pr, ms):
        I = self.I
        ER = lambda s: STR0 + 16 * pr + 4 * s
        def D(m, h):
            k = 2 * m + h
            if pr == 0: return 184 + 4 * k if k < 6 else FD + 4 * (k - 6)
            return 232 + 4 * k if k < 4 else (FD + 8 + 4 * (k - 6) if k >= 6 else 48 + 4 * (k - 4) + 8)
        for m in ms:
            for h in range(2):
                d = D(m, h)
                for s in range(4):
                    c = '0' if s == 0 else V(d, 4)
                    if m == 2: I(f'{MF16} {V(d,4)}, {A(ER(s),4)}, {A(WF(m,h,s),4)}, {c}')
                    else: I(f'{MF16} {V(d,4)}, {A(WF(m,h,s),4)}, {A(ER(s),4)}, {c}')
                self.cvt(d, d); self.cvt(d + 1, d + 2)
                off = pr * 4096 + h * 256 + {1: 0, 0: 512, 2: 1024, 3: 1536}[m]
                I(f'ds_write_b64 v{INV[0] if m == 2 else INV[1]}, {V(d,2)} offset:{off}', xwr=[('L', 'REM', pr, m, h)])
    def er_load(self, pr):
        for s in range(4):
            self.I(f'ds_read_b128 {A(STR0+16*pr+4*s,4)}, v{tER} offset:{L_PSH + pr*1024 + 32*s}', pt=[('L', 'RAW')], xrd=[('RDY', 200)])

    def tproj(self, h, t):
        I = self.I
        for m in (1, 2):
            acc = PA[m - 1] if not self.opt.alloc2 else PA[1]
            for s in range(4):
                c = '0' if s == 0 else V(acc, 16)
                if m == 1: I(f'{MF32} {V(acc,16)}, {A(WF(1,h,s),4)}, {A(EC(t,s),4)}, {c}')
                else: I(f'{MF32} {V(acc,16)}, {A(EC(t,s),4)}, {A(WF(2,h,s),4)}, {c}')
            dst = KF(h, t, 0) if m == 1 else VF(h, t, 0)
            for i in range(8): self.cvt(dst + i, acc + 2 * i)

    def qproj(self, j):
        h, ft = divmod(j % 6, 3)
        X = ACC[2 + (j & 1)] if not self.opt.alloc2 else PA[0]
        for s in range(4):
            self.I(f'{MF32} {V(X,16)}, {A(WF(0,h,s),4)}, {A(EC(ft,s),4)}, {"0" if s == 0 else V(X,16)}')
        for i in range(8): self.cvt(QF[j & 1] + i, X + 2 * i)

    def rem_loads(self, bi, h):
        ro = bi * 2048
        for ks in range(2):
            self.I(f'ds_read_b128 {A(KRA(h,ks),4)}, v{aKR} offset:{ro + h*256 + ks*128}', xrd=[('L', 'REM', 0, 1, h)])
        self.I(f'ds_read_b32 {A(VREM(h))}, v{aVR} offset:{ro + 1024 + h*256}', xrd=[('L', 'REM', 0, 2, h)])

    def frem_s(self, bi, h):
        I = self.I
        ro = bi * 2048
        for ks in range(2):
            qb = self.slot()
            I(f'ds_read_b128 {A(qb,4)}, v{aQ0 if h == 0 else aQ1} offset:{ro + 512 + h*256 + ks*128}', xrd=[('L', 'REM')])
            for t in range(4):
                a = V(KF(h, t, ks), 4) if t < 3 else A(KRA(h, ks), 4)
                c = '0' if (h == 0 and ks == 0) else V(FD + 4 * t, 4)
                I(f'{MF16} {V(FD+4*t,4)}, {a}, {A(qb,4)}, {c}')

    def frem_rest(self, bi):
        I = self.I
        D = lambda t: FD + 4 * t
        for t in range(3):
            for r in range(4): I(f'v_exp_f32 v{D(t)+r}, v{D(t)+r}')
            self.cvt(D(t), D(t)); self.cvt(D(t) + 1, D(t) + 2)
            I(f'ds_write_b64 v{aPW}, {V(D(t),2)} offset:{t*512}', xwr=[('L', 'PSH')])
        for r in range(2): I(f'v_exp_f32 v{D(3)+r}, v{D(3)+r}')
        self.cvt(D(3), D(3))
        I(f'v_cndmask_b32 v{D(3)+2}, 0, v{D(3)}, s[{sVM}:{sVM+1}]', 'keep only the real key-remainder entries; D3+3 is 0')
        I(f'ds_write_b64 v{aPW}, {V(D(3)+2,2)} offset:{3*512}', xwr=[('L', 'PSH')])
        DH = [FD, FD + 4]; L = FD + 8
        I(f'ds_read_b64 {V(RR,2)}, v{aRR} offset:{bi*2048 + 1536}', xrd=[('L', 'REM')])
        if self.strn % 2: self.strn += 1
        r = self.slot(); self.slot()
        I(f'ds_read_b64 {A(r,2)}, v{aPR6} offset:{6*256}', xrd=[('L', 'PSH')])
        I(f'{MF16K16} {V(L,4)}, {A(ONE16,2)}, {A(r,2)}, 0')
        for h in range(2):
            I(f'{MF16K16} {V(DH[h],4)}, {A(VREM(h),2)}, {A(r,2)}, 0')
        for t in range(3):
            r = self.slot(); self.slot()
            for sub in range(2):
                I(f'ds_read_b128 {A(r+4*sub,4)}, v{aPR} offset:{(2*t+sub)*256}', xrd=[('L', 'PSH')])
                for h in range(2):
                    I(f'{MF16} {V(DH[h],4)}, {V(VF(h,t,sub),4)}, {A(r+4*sub,4)}, {V(DH[h],4)}')
            I(f'{SMF} {V(L,4)}, {A(ONE,4)}, {A(r,8)}, v{IDX}')
        I(f'v_add_f32 v{L}, v{L}, v{L+1}')
        I(f'v_rcp_f32 v{L+1}, v{L}')
        I(f'v_max3_u32 v{BAD}, v{BAD}, v{L}, v{L+1}')
        for r in range(4):
            I(f'v_cndmask_b32 v{DH[0]+r}, v{DH[0]+r}, v{DH[1]+r}, s[{sB3}:{sB3+1}]')
            if r & 1: I(f'v_and_b32 v{DH[1]+r}, 0xffff0000, v{RR+(r>>1)}')
            else: I(f'v_lshlrev_b32 v{DH[1]+r}, 16, v{RR+(r>>1)}')
            I(f'v_fma_f32 v{DH[0]+r}, v{DH[0]+r}, v{L+1}, v{DH[1]+r}')
        self.cvt(DH[0], DH[0]); self.cvt(DH[0] + 1, DH[0] + 2)
        for k in range(2): I(f'v_pk_max_i16 v{DH[0]+k}, v{DH[0]+k}, 0')
        I(f's_add_u32 s{sNX}, s{sB}, {bi*BSTRIDE + 12288}')
        I(f'buffer_store_dwordx2 {V(DH[0],2)}, v{vOR}, s[{sO}:{sO+3}], s{sNX} offen {self.opt.stmod}')

    def block(self, bi, j, has_next, dma_next, part=3, sbase=None):
        I = self.I
        h, ft = divmod(j, 3)
        O = ACC[0]; SA = ACC[1]; X = ACC[2 + (j & 1)]
        S0 = S2 = SA; S1 = X
        if self.opt.alloc2: S0, S1, S2, X = ACC[1], ACC[2], ACC[3], PA[0]
        Q = QF[j & 1]; L = LS[j & 1]; inv = INV[j & 1]
        if sbase is None: sbase = sB
        def smm(t, dst):
            I(f'{MF32} {V(dst,16)}, {V(KF(h,t,0),4)}, {V(Q,4)}, 0')
            I(f'{MF32} {V(dst,16)}, {V(KF(h,t,1),4)}, {V(Q+4,4)}, {V(dst,16)}')
        def soft(buf):
            for i in range(8):
                I(f'v_exp_f32 v{buf+2*i}, v{buf+2*i}')
                I(f'v_exp_f32 v{buf+2*i+1}, v{buf+2*i+1}')
                self.cvt(buf + i, buf + 2 * i)
        def pv(t, buf):
            for sub in range(2):
                first = (t == 0 and sub == 0)
                I(f'{MF32} {V(O,16)}, {V(VF(h,t,sub),4)}, {V(buf+4*sub,4)}, {"0" if first else V(O,16)}')
            I(f'{SMF} {V(L,4)}, {A(SEL,4)}, {V(buf,8)}, v{IDX}')
        if part & 1:
            smm(0, S0); smm(1, S1)
            if ft == 0: self.tproj(h, 2)
            for ks in range(2):
                I(f'{MF16} {V(SR,4)}, {A(KRA(h,ks),4)}, {V(Q+4*ks,4)}, {"0" if ks == 0 else V(SR,4)}')
            for r in range(2): I(f'v_exp_f32 v{SR+r}, v{SR+r}')
            self.cvt(SR + 2, SR)
            I(f'{MF16K16} {V(L,4)}, {A(SEL16,2)}, {V(SR+2,2)}, 0')
            if j == 1: self.rem_loads(bi, 1)
            if j == 1: self.frem_s(bi, 0)
            if j == 3: self.frem_s(bi, 1); self.frem_rest(bi)
            soft(S0); pv(0, S0)
            if j < 5 or has_next: self.qproj(j + 1)
            soft(S1)
            smm(2, S2)
            pv(1, S1)
            if ft > 0 and (h == 0 or has_next): self.tproj(1 - h, ft - 1)
            I(f'{MF32K8} {V(O,16)}, {A(VREM(h),2)}, {V(SR+2,2)}, {V(O,16)}')
            for s in range(4):
                I(f'{MF32} {V(X,16)}, {A(WF(3,h,s),4)}, {A(EC(ft,s),4)}, {"0" if s == 0 else V(X,16)}')
            if h == 1 and has_next: self.eload(ft)
            if h == 0 and dma_next is not None: self.dma(dma_next[0], dma_next[1], ft)
            if j == 5 and has_next: self.rem_loads(bi + 1, 0)
        if part & 2:
            soft(S2); pv(2, S2)
            I(f'v_add_f32 v{L}, v{L}, v{L+1}')
            I(f'v_rcp_f32 v{inv}, v{L}')
            I(f'v_max3_u32 v{BAD}, v{BAD}, v{L}, v{inv}')
            for r in range(16): I(f'v_fma_f32 v{X+r}, v{O+r}, v{inv}, v{X+r}')
            for i in range(8):
                self.cvt(X + i, X + 2 * i)
                I(f'v_pk_max_i16 v{X+i}, v{X+i}, 0')
            for a1 in range(2):
                I(f'ds_write_b128 v{aOW}, {V(X+4*a1,4)} offset:{L_OUT + ft*4096 + h*512 + a1*256}', xwr=[('L', f'O{ft}')], xrd=[('B', 'W')])
        if (part & 2 and not part & 8) or part & 4:
            if h == 1:
                I(f's_add_u32 s{sT2}, s{sbase}, {bi*BSTRIDE + ft*4096}')
                for kk in range(4):
                    r = OUTB + 4 * kk
                    I(f'ds_read_b128 {A(r,4)}, v{aLIN} offset:{L_OUT + ft*4096 + kk*1024}', xrd=[('L', f'O{ft}')])
                    I(f'buffer_store_dwordx4 {A(r,4)}, v{vA}, s[{sO}:{sO+3}], s{sT2} offen offset:{kk*1024} {self.opt.stmod}')

    def T_smm(self, j, t):
        h = (j % 6) // 3; Q = QF[j & 1]; dst = ACC[1 + t]
        self.I(f'{MF32} {V(dst,16)}, {V(KF(h,t,0),4)}, {V(Q,4)}, 0')
        self.I(f'{MF32} {V(dst,16)}, {V(KF(h,t,1),4)}, {V(Q+4,4)}, {V(dst,16)}')
    def T_srem(self, j):
        h = (j % 6) // 3; Q = QF[j & 1]; L = LS[j & 1]; sr = SR2[j & 1]
        for ks in range(2):
            self.I(f'{MF16} {V(sr,4)}, {A(KRA(h,ks),4)}, {V(Q+4*ks,4)}, {"0" if ks == 0 else V(sr,4)}')
    def T_sremv(self, j):
        L = LS[j & 1]; sr = SR2[j & 1]
        for r in range(2): self.I(f'v_exp_f32 v{sr+r}, v{sr+r}')
        self.cvt(sr + 2, sr)
        self.I(f'{MF16K16} {V(L,4)}, {A(SEL16,2)}, {V(sr+2,2)}, 0')
    def T_soft(self, t, half):
        buf = ACC[1 + t]
        for i in range(4 * half, 4 * half + 4):
            self.I(f'v_exp_f32 v{buf+2*i}, v{buf+2*i}')
            self.I(f'v_exp_f32 v{buf+2*i+1}, v{buf+2*i+1}')
            self.cvt(buf + i, buf + 2 * i)
    def T_pv(self, j, t, sub):
        h = (j % 6) // 3; O = ACC[0]; buf = ACC[1 + t]
        first = (t == 0 and sub == 0)
        self.I(f'{MF32} {V(O,16)}, {V(VF(h,t,sub),4)}, {V(buf+4*sub,4)}, {"0" if first else V(O,16)}')
        if sub == 1: self.I(f'{SMF} {V(LS[j & 1],4)}, {A(SEL,4)}, {V(buf,8)}, v{IDX}')
    def T_pvr(self, j):
        h = (j % 6) // 3; O = ACC[0]
        self.I(f'{MF32K8} {V(O,16)}, {A(VREM(h),2)}, {V(SR2[j & 1]+2,2)}, {V(O,16)}')
    def T_projm(self, m, h, t, acc):
        for s in range(4):
            c = '0' if s == 0 else V(acc, 16)
            if m == 2: self.I(f'{MF32} {V(acc,16)}, {A(EC(t,s),4)}, {A(WF(2,h,s),4)}, {c}')
            else: self.I(f'{MF32} {V(acc,16)}, {A(WF(m,h,s),4)}, {A(EC(t,s),4)}, {c}')
    def T_projv(self, dst, acc):
        for i in range(8): self.cvt(dst + i, acc + 2 * i)
    def T_ep(self, j):
        I = self.I
        h, ft = divmod(j % 6, 3)
        O = ACC[0]; R = PA[0]; X = ACC[3]; L = LS[j & 1]; inv = INV[j & 1]
        I(f'v_add_f32 v{L}, v{L}, v{L+1}')
        I(f'v_rcp_f32 v{inv}, v{L}')
        I(f'v_max3_u32 v{BAD}, v{BAD}, v{L}, v{inv}')
        if self.opt.pkfma:
            sel = 'op_sel_hi:[1,0,1]' if inv == INV[0] else 'op_sel:[0,1,0] op_sel_hi:[1,1,1]'
            self.group([(f'v_pk_fma_f32 {V(X+r,2)}, {V(O+r,2)}, {V(INV[0],2)}, {V(R+r,2)} {sel}', {}) for r in range(0, 16, 2)])
        else:
            for r in range(16): I(f'v_fma_f32 v{X+r}, v{O+r}, v{inv}, v{R+r}')
        for a1 in range(2):
            for i in range(4 * a1, 4 * a1 + 4):
                self.cvt(X + i, X + 2 * i)
                I(f'v_pk_max_i16 v{X+i}, v{X+i}, 0')
            I(f'ds_write_b128 v{aOW}, {V(X+4*a1,4)} offset:{L_OUT + ft*4096 + h*512 + a1*256}', xwr=[('L', f'O{ft}')], xrd=[('B', 'W')])
    def T_store(self, ft, sbase):
        I = self.I
        I(f's_add_u32 s{sT2}, s{sbase}, {ft*4096}')
        for kk in range(4):
            r = OUTB + 4 * kk
            I(f'ds_read_b128 {A(r,4)}, v{aLIN} offset:{L_OUT + ft*4096 + kk*1024}', xrd=[('L', f'O{ft}')])
            I(f'buffer_store_dwordx4 {A(r,4)}, v{vA}, s[{sO}:{sO+3}], s{sT2} offen offset:{kk*1024} {self.opt.stmod}')
    def T_block(self, j):
        h, ft = divmod(j, 3)
        ph, pt = (h, 2) if ft == 0 else (1 - h, ft - 1)
        jn = j + 1; hn, fn = divmod(jn % 6, 3); jp = j - 1
        self.T_projm(1, ph, pt, PA[1])
        self.T_pv(jp % 6, 2, 1)
        self.T_soft(0, 0)
        self.T_soft(0, 1)
        self.T_smm(j, 1)
        if j == 0: self.T_store(1, sPV)
        if not self.opt.dmaearly:
            if j < 3: self.dma(sDM, 0, j)
        else:
            if j == 0: self.dma(sDM, 0, 2)
            if j >= 4: self.dma(sD2, 0, j - 4)
        self.T_projv(KF(ph, pt, 0), PA[1])
        self.T_projm(2, ph, pt, PA[1])
        self.T_ep(jp % 6)
        if j == 0: self.T_store(2, sPV)
        if j == 4: self.T_store(0, sB)
        self.T_pv(j, 0, 0); self.T_pv(j, 0, 1)
        self.T_projm(0, hn, fn, PA[0])
        if j == 1: self.rem_loads(0, 1); self.frem_s(0, 0)
        if j == 3: self.frem_s(0, 1)
        self.T_soft(1, 0)
        self.T_smm(j, 2)
        self.T_soft(1, 1)
        self.T_pv(j, 1, 0)
        self.T_pvr(j)
        self.T_projv(QF[jn & 1], PA[0])
        if j == 5: self.rem_loads(1, 0)
        self.T_srem(jn)
        self.T_pv(j, 1, 1)
        self.T_projm(3, h, ft, PA[0])
        if self.opt.delay == 10 + j: self.I('s_sleep 32', xrd=[('v', PA[0])], xwr=[('L', f'E{ft}')])
        if h == 1: self.eload(ft)
        self.T_projv(VF(ph, pt, 0), PA[1])
        self.T_soft(2, 0)
        self.T_sremv(jn)
        self.T_smm(jn, 0)
        if j == 3: self.frem_rest(0)
        self.T_soft(2, 1)
        self.T_pv(j, 2, 0)

    def slow_path(self):
        I = self.I; p = self.p
        p.label('L_slow')
        I('s_waitcnt vmcnt(0) lgkmcnt(0)')
        I('v_mbcnt_lo_u32_b32 v1, -1, 0'); I('v_mbcnt_hi_u32_b32 v1, -1, v1')
        I('v_and_b32 v6, 31, v1'); I('v_lshrrev_b32 v7, 5, v1')
        I('v_lshlrev_b32 v2, 7, v6'); I('v_lshl_add_u32 v2, v7, 4, v2')
        I(f'v_mov_b32 v3, 0x{OOB_G:x}'); I('v_cmp_gt_u32 vcc, 4, v6'); I('v_cndmask_b32 v3, v3, v2, vcc')
        I('v_mov_b32 v5, 0xff800000')
        I('s_mov_b32 s56, 0'); I('s_mov_b32 s57, -1')
        I('s_lshl_b32 s58, s2, 4'); I('s_add_u32 s58, s58, s20'); I('s_mul_i32 s58, s58, 12800'); I('s_mov_b32 s59, 0')
        p.label('L_sbatch')
        E = lambda t, s: 16 + 16 * t + 4 * s
        KFs = lambda t, ks: 80 + 8 * t + 4 * ks
        VFs = lambda u: 112 + 4 * u
        QA = 172
        SS = lambda t: 188 + 16 * t
        for t in range(4): I(f's_add_u32 s{60+t}, s58, {4096*t}')
        for t in range(4):
            for s in range(4):
                I(f'buffer_load_dwordx4 {V(E(t,s),4)}, v{3 if t==3 else 2}, s[{sE}:{sE+3}], s{60+t} offen offset:{32*s}')
        for h in range(2):
            for t in range(4):
                acc = SS(t)
                for s in range(4): I(f'{MF32} {V(acc,16)}, {A(WF(1,h,s),4)}, {V(E(t,s),4)}, {"0" if s==0 else V(acc,16)}')
            for t in range(4):
                for i in range(8): self.cvt(KFs(t, 0) + i, SS(t) + 2 * i)
            for t in range(4):
                acc = SS(t)
                for s in range(4): I(f'{MF32} {V(acc,16)}, {V(E(t,s),4)}, {A(WF(2,h,s),4)}, {"0" if s==0 else V(acc,16)}')
            for t in range(4):
                for i in range(8 if t < 3 else 4): self.cvt(VFs(2 * t) + i, SS(t) + 2 * i)
            for ft in range(4):
                for s in range(4): I(f'{MF32} {V(QA,16)}, {A(WF(0,h,s),4)}, {V(E(ft,s),4)}, {"0" if s==0 else V(QA,16)}')
                for i in range(8): self.cvt(QA + i, QA + 2 * i)
                for t in range(4):
                    I(f'{MF32} {V(SS(t),16)}, {V(KFs(t,0),4)}, {V(QA,4)}, 0')
                    I(f'{MF32} {V(SS(t),16)}, {V(KFs(t,1),4)}, {V(QA+4,4)}, {V(SS(t),16)}')
                for r in range(4): I(f'v_cndmask_b32 v{SS(3)+r}, v{SS(3)+r}, v5, s[56:57]')
                vals = [SS(0) + i for i in range(52)]
                I(f'v_max3_f32 v8, v{vals[0]}, v{vals[1]}, v{vals[2]}')
                k = 3
                while k < 52:
                    if k + 1 < 52: I(f'v_max3_f32 v8, v8, v{vals[k]}, v{vals[k+1]}'); k += 2
                    else: I(f'v_max_f32 v8, v8, v{vals[k]}'); k += 1
                I('v_mov_b32 v9, v8'); I('v_permlane32_swap_b32 v9, v8'); I('v_max_f32 v8, v8, v9', 'true row max')
                for k in range(0, 52, 2):
                    I(f'v_pk_add_f32 {V(vals[k],2)}, {V(vals[k],2)}, v[8:9] op_sel_hi:[1,0] neg_lo:[0,1] neg_hi:[0,1]')
                for k in range(52): I(f'v_exp_f32 v{vals[k]}, v{vals[k]}')
                I(f'v_pk_add_f32 v[10:11], {V(vals[0],2)}, {V(vals[2],2)}')
                for k in range(4, 52, 2): I(f'v_pk_add_f32 v[10:11], v[10:11], {V(vals[k],2)}')
                I('v_add_f32 v10, v10, v11'); I('v_mov_b32 v11, v10'); I('v_permlane32_swap_b32 v11, v10')
                I('v_add_f32 v10, v10, v11'); I('v_rcp_f32 v10, v10')
                PF = {0: SS(0), 1: SS(0) + 4, 2: SS(0) + 8, 3: SS(0) + 12, 4: SS(2), 5: SS(2) + 4, 6: SS(2) + 8}
                for t in range(3):
                    for i in range(8): self.cvt(PF[2 * t] + i, SS(t) + 2 * i)
                self.cvt(PF[6], SS(3)); self.cvt(PF[6] + 1, SS(3) + 2)
                I(f'v_mov_b32 v{PF[6]+2}, 0'); I(f'v_mov_b32 v{PF[6]+3}, 0')
                RA = SS(1)
                for s in range(4): I(f'{MF32} {V(RA,16)}, {A(WF(3,h,s),4)}, {V(E(ft,s),4)}, {"0" if s==0 else V(RA,16)}')
                OA = QA
                for u in range(7): I(f'{MF32} {V(OA,16)}, {V(VFs(u),4)}, {V(PF[u],4)}, {"0" if u==0 else V(OA,16)}')
                for k in range(0, 16, 2):
                    I(f'v_pk_fma_f32 {V(OA+k,2)}, {V(OA+k,2)}, v[10:11], {V(RA+k,2)} op_sel_hi:[1,0,1]')
                for i in range(8): self.cvt(OA + i, OA + 2 * i)
                for i in range(8): I(f'v_pk_max_i16 v{OA+i}, v{OA+i}, 0')
                for k in range(2):
                    I(f'buffer_store_dwordx4 {V(OA+4*k,4)}, v{3 if ft==3 else 2}, s[{sO}:{sO+3}], s{60+ft} offen offset:{64*h+32*k}')
        I(f's_add_u32 s58, s58, {BSTRIDE}'); I('s_add_u32 s59, s59, 1'); I('s_cmp_lt_u32 s59, 4')
        I('s_nop 15')
        I('s_cbranch_scc1 L_sbatch')
        I('s_endpgm')

    def build(self):
        p = self.p; I = self.I; o = self.opt
        p.raw(HEADER.rstrip())
        p.raw(f'; @launch grid=(256,1,1) block=(256,1,1) lds={4*WSTRIDE}')
        p.raw('.amdgcn_target "amdgcn-amd-amdhsa--gfx950"')
        p.raw('.text')
        p.raw(f'.globl {NAME}_kernel')
        p.raw('.p2align 8')
        p.raw(f'.type {NAME}_kernel,@function')
        p.raw(f'{NAME}_kernel:')
        self.prologue()
        p.raw('L_main:   ;')
        sched.ORDER = True
        self.begin()
        self.wload(1, 0); self.eload(0, rdy=0); self.wload(2, 0)
        self.wq_scale()
        self.T_projm(1, 0, 0, PA[1]); self.T_projm(2, 0, 0, PA[0])
        self.er_load(0); self.wload(1, 1); self.wload(2, 1)
        self.T_projv(KF(0, 0, 0), PA[1]); self.T_projv(VF(0, 0, 0), PA[0])
        self.rem_proj(0, (1, 2))
        self.eload(1, rdy=300)
        self.wload(0, 0, [('B', 'WQ')]); self.wload(0, 1, [('B', 'WQ')])
        self.T_projm(1, 0, 1, PA[1]); self.T_projm(2, 0, 1, PA[0])
        self.wload(3, 0); self.wload(3, 1); self.er_load(1)
        self.T_projv(KF(0, 1, 0), PA[1]); self.T_projv(VF(0, 1, 0), PA[0])
        self.T_projm(0, 0, 0, PA[0])
        self.rem_loads(0, 0)
        self.rem_proj(0, (0, 3))
        self.T_projv(QF[0], PA[0])
        self.eload(2, rdy=600)
        I('s_barrier', pt=[('LW', 'W')], xwr=[('B', 'W')], xrd=[('WR', m, h, s) for m in range(4) for h in range(2) for s in range(4)])
        self.rem_proj(1, (1, 2))
        self.T_smm(0, 0); self.T_srem(0)
        self.rem_proj(1, (0, 3))
        self.T_sremv(0)
        self.stamp(QF[0] + 7)
        if True:
            for r in range(16):
                I(f'v_mov_b32 v{PA[0]+r}, 0'); I(f'v_mov_b32 v{ACC[0]+r}, 0')
            for r in range(8): I(f'v_mov_b32 v{ACC[3]+r}, 0')
            I(f's_mov_b32 s{sPV}, 0x{OOB_G:x}', 'previous batch base: out of range on the first pass')
            I(f's_add_u32 s{sDM}, s{sB}, {BSTRIDE}', 'batch to prefetch')
            I(f's_add_u32 s{sD2}, s{sB}, {2*BSTRIDE}', 'batch after that')
            if o.dmaearly:
                self.dma(sDM, 0, 0); self.dma(sDM, 0, 1)
            I(f's_mov_b32 s{sIT}, 0')
            self.end()
            I('s_waitcnt lgkmcnt(0)')
            p.raw('.p2align 6')
            p.raw('L_loop:   ;')
            p.items.append(('PH', [[('L', f'E{t}')] for t in range(2) for g in range(4)] if o.dmaearly else []))
            if o.delay == 1: I('s_sleep 32')
            self.stamp()
            sched.ORDER = True
            self.begin()
            for j in range(6):
                self.T_block(j)
                self.stamp(INV[(j + 1) & 1])
            for r in (aKR, aQ0, aQ1, aVR, aRR): I(f'v_add_u32 v{r}, 2048, v{r}')
            I(f's_mov_b32 s{sPV}, s{sB}')
            I(f's_add_u32 s{sB}, s{sB}, {BSTRIDE}')
            I(f's_mov_b32 s{sDM}, s{sD2}')
            I(f's_add_u32 s{sD2}, s{sD2}, {BSTRIDE}')
            I(f's_add_u32 s{sIT}, s{sIT}, 1')
            I(f's_cmp_ge_u32 s{sIT}, 2')
            I(f's_cselect_b32 s{sD2}, 0x{OOB_G:x}, s{sD2}', 'no batch left to prefetch')
            I(f's_cmp_lt_u32 s{sIT}, {o.x_iters}')
            self.end()
            self.stamp()
            I('s_waitcnt lgkmcnt(0)')
            p.items.append(('BACKEDGE', 'L_loop:'))
            I('s_cbranch_scc1 L_loop', 'nowait')
            self.begin()
            self.T_store(1, sPV)
            self.T_pv(5, 2, 1)
            self.T_ep(5)
            self.T_store(2, sPV)
            sched.VM_GAP = 0
            self.end()
        if o.stamps:
            self.stamp(final=True)
            I('s_memrealtime s[58:59]')
            I('s_waitcnt lgkmcnt(0)')
            I('s_mov_b32 s16, s18'); I('s_mov_b32 s17, s19'); I('s_mov_b32 s18, 0x1000000'); I('s_mov_b32 s19, 0x00020000')
            I('s_lshl_b32 s21, s2, 2'); I('s_add_u32 s21, s21, s20'); I('s_lshl_b32 s21, s21, 7')
            I('v_mov_b32 v1, 0')
            for k in range(22):
                I(f'v_mov_b32 v0, s{60+2*k if k < 21 else 58}')
                I(f'buffer_store_dword v0, v1, s[16:19], s21 offen offset:{4*k}')
        if o.delay == 2: I('s_sleep 127')
        I(f'v_cmp_lt_u32 vcc, s{sLIM}, v{BAD}')
        I('s_cmp_lg_u64 vcc, 0')
        I('s_cbranch_scc1 L_slow')
        p.raw('L_end:')
        I('s_endpgm')
        self.slow_path()
        p.raw('.section .rodata,"a"')
        p.raw('.p2align 6')
        p.raw(f'.amdhsa_kernel {NAME}_kernel')
        p.raw('  .amdhsa_next_free_vgpr 512')
        p.raw(f'  .amdhsa_next_free_sgpr {102 if o.stamps else 72}')
        p.raw('  .amdhsa_accum_offset 256')
        p.raw('  .amdhsa_group_segment_fixed_size 0')
        p.raw('  .amdhsa_kernarg_size 64')
        p.raw('  .amdhsa_user_sgpr_count 2')
        p.raw('  .amdhsa_user_sgpr_kernarg_segment_ptr 1')
        p.raw('  .amdhsa_system_sgpr_workgroup_id_x 1')
        p.raw('.end_amdhsa_kernel')
        import asmlib
        asmlib.HX = o.hx
        p.finalize()
        if o.align: print('align8:', p.align8(o.align))
        return p.text()

if __name__ == '__main__':
    ap = argparse.ArgumentParser()
    ap.add_argument('-o', default=f'cdna_kernels/{NAME}.s')
    ap.add_argument('--nosched', action='store_true')
    ap.add_argument('--window', type=int, default=700)
    ap.add_argument('--ldmod', default='nt')
    ap.add_argument('--stmod', default='nt')
    ap.add_argument('--codepf', type=int, default=1)
    ap.add_argument('--stamps', type=int, default=0)
    ap.add_argument('--pscale', type=float, default=1.0)
    ap.add_argument('--ldslat', type=int, default=128)
    ap.add_argument('--safewar', type=int, default=0)
    ap.add_argument('--hx', type=int, default=0)
    ap.add_argument('--vmgap', type=int, default=150)
    ap.add_argument('--loop', type=int, default=1)
    ap.add_argument('--x_iters', type=int, default=4)
    ap.add_argument('--noise', type=float, default=0)
    ap.add_argument('--seed', type=int, default=0)
    ap.add_argument('--slack', type=int, default=0)
    ap.add_argument('--shadow', type=int, default=1)
    ap.add_argument('--freewait', type=int, default=1)
    ap.add_argument('--alloc2', type=int, default=1)
    ap.add_argument('--tmpl', type=int, default=1)
    ap.add_argument('--fit', type=int, default=1)
    ap.add_argument('--vmc', type=int, default=16)
    ap.add_argument('--dswc', type=int, default=16)
    ap.add_argument('--align', type=int, default=0)
    ap.add_argument('--hoist', type=int, default=400)
    ap.add_argument('--ldsgap', type=int, default=16)
    ap.add_argument('--pkfma', type=int, default=1)
    ap.add_argument('--early', type=int, default=2)
    ap.add_argument('--delay', type=int, default=-1)
    ap.add_argument('--dmaearly', type=int, default=1)
    o = ap.parse_args()
    sched.HOIST = o.hoist; sched.LDS_GAP = o.ldsgap
    sched.FIT = o.fit; sched.VMC = o.vmc; sched.DSWC = o.dswc
    sched.NOISE = o.noise; sched.SEED = o.seed; sched.SLACK = o.slack; sched.SHADOW = o.shadow; sched.FREEWAIT = o.freewait
    sched.VM_GAP = o.vmgap
    import asmlib
    asmlib.SAFE_WAR = o.safewar
    HXV = o.hx
    sched.PIPE_SCALE = o.pscale; sched.LDS_LAT = o.ldslat
    txt = Gen(o).build()
    open(o.o, 'w').write(txt)
    import collections
    c = collections.Counter(l.split()[0] for l in txt.split('L_slow:')[0].split('\n') if l.startswith('    ') and not l.strip().startswith(';'))
    print('fast path instr counts:', sum(c.values()), {k: v for k, v in c.most_common(14)})
```
